```python
import torch

def _softmax(x, axis=-1):
    return torch.softmax(x, dim=axis)
def _gelu(x):
    return torch.nn.functional.gelu(x, approximate="tanh")
def _silu(x):
    return torch.nn.functional.silu(x)
def _sigmoid(x):
    return torch.sigmoid(x)
def _layernorm(x, axis=-1, eps=1e-5):
    m = x.mean(dim=axis, keepdim=True)
    v = x.var(dim=axis, keepdim=True, unbiased=False)
    return (x - m) / torch.sqrt(v + eps)
def _scatter_add(tgt, idx, src, axis=0):
    return tgt.clone().index_add_(axis, idx, src)
def _segment_sum(src, seg, n):
    out = torch.zeros((n,) + src.shape[1:], dtype=src.dtype)
    return out.index_add_(0, seg, src)
def _pad(x, pw):
    flat = tuple(v for pair in reversed(pw) for v in pair)
    return torch.nn.functional.pad(x, flat)

kernel_name = 'sequential_preLN__compressed_kv_cla__swiglu_ffn__prompt'

def setup_inputs():

    _w = (lambda a: (lambda t: t.to(torch.bfloat16) if t.is_floating_point() else t)(torch.as_tensor(a)))
    def _A_setup():
        B, H, Sq, Sk, D, M = 1, 32, 2048, 2048, 128, 576
        Dc = 4 * D
        return {
            "x": _w((lambda *s: torch.randn(*s, dtype=torch.bfloat16) * 0.05)(B, Sq, M)),
            "c_kv": _w((lambda *s: torch.randn(*s, dtype=torch.bfloat16) * 0.4)(B, Sk, Dc)),
            "w_q": _w((lambda *s: torch.randn(*s, dtype=torch.bfloat16) * 1.6)(M, H, D) * (M ** -0.5)),
            "w_uk": _w((lambda *s: torch.randn(*s, dtype=torch.bfloat16) * 1.6)(Dc, H, D) * (Dc ** -0.5)),
            "w_uv": _w((lambda *s: torch.randn(*s, dtype=torch.bfloat16) * 0.4)(Dc, H, D) * (Dc ** -0.5)),
            "w_o": _w((lambda *s: torch.randn(*s, dtype=torch.bfloat16) * 0.4)(H, D, M) * ((H * D) ** -0.5)),
        }
    _A_in = _A_setup()

    def _B_setup():
        B, S, D, F = 1, 2048, 576, 4608
        return {
            "x": _w((lambda *s: torch.randn(*s, dtype=torch.bfloat16) * 0.05)(B, S, D)),
            "w_gate": _w((lambda *s: torch.randn(*s, dtype=torch.bfloat16) * 0.05)(D, F)),
            "w_up": _w((lambda *s: torch.randn(*s, dtype=torch.bfloat16) * 0.05)(D, F)),
            "w_down": _w((lambda *s: torch.randn(*s, dtype=torch.bfloat16) * 0.05)(F, D)),
        }
    _B_in = _B_setup()

    return {
        "A_x": _A_in["x"],
        "A_c_kv": _A_in["c_kv"],
        "A_w_q": _A_in["w_q"],
        "A_w_uk": _A_in["w_uk"],
        "A_w_uv": _A_in["w_uv"],
        "A_w_o": _A_in["w_o"],
        "B_x": _B_in["x"],
        "B_w_gate": _B_in["w_gate"],
        "B_w_up": _B_in["w_up"],
        "B_w_down": _B_in["w_down"],
    }

def reference(A_x, A_c_kv, A_w_q, A_w_uk, A_w_uv, A_w_o, B_x, B_w_gate, B_w_up, B_w_down):
    def _A_ref(x, c_kv, w_q, w_uk, w_uv, w_o):
        B, Sq, M = x.shape[0], x.shape[1], x.shape[2]
        Sk = c_kv.shape[1]
        H, D = w_q.shape[1], w_q.shape[2]
        q = torch.einsum("bqm,mhd->bhqd", x, w_q)
        k = torch.einsum("bkc,chd->bhkd", c_kv, w_uk)
        v = torch.einsum("bkc,chd->bhkd", c_kv, w_uv)
        scores = torch.einsum("bhqd,bhkd->bhqk", q, k) * (D ** -0.5)
        off = Sk - Sq
        qi = torch.arange(Sq)[:, None]
        kj = torch.arange(Sk)[None, :]
        cmask = kj <= (qi + off)
        scores = torch.where(cmask[None, None], scores, -1e9)
        p = _softmax(scores, axis=-1)
        ctx = torch.einsum("bhqk,bhkd->bhqd", p, v)
        return torch.einsum("bhqd,hdm->bqm", ctx, w_o)

    def _B_ref(x, w_gate, w_up, w_down):
        g = _silu(x @ w_gate)
        u = x @ w_up
        return (g * u) @ w_down

    x = A_x
    h = x + _A_ref(_layernorm(x, axis=-1), A_c_kv, A_w_q, A_w_uk, A_w_uv, A_w_o)
    h2 = h + _B_ref(_layernorm(h, axis=-1), B_w_gate, B_w_up, B_w_down)
    return h2
```

```python
from gen_common import *
import math

QS_OFF = 100 * MB
SCALE_C = (128 ** -0.5) * math.log2(math.e)
NEGBIG = 0xf149f2ca
THR = 65536.0


class Vm:
    def __init__(self):
        self.q = []

    def issue(self, tag):
        self.q.append(tag)

    def need(self, a, tags):
        idx = -1
        for i, t in enumerate(self.q):
            if t in tags:
                idx = i
        if idx < 0:
            return
        n = len(self.q) - 1 - idx
        assert n <= 63
        a(f"s_waitcnt vmcnt({n})")
        self.q = self.q[idx + 1:]


def gen_k2(a):
    name = "k2_attn_kernel"
    kernel_header(a, name)
    O = 192
    S = 160
    Q = 128
    NEGM = 112
    P = 96
    FR = 64
    PT = 48
    vK = 32
    vV = 40
    vL = 44
    vFloor = 45
    vLim = 46
    vLane16 = 27
    a("s_cmp_ge_u32 s2, 256")
    a("s_cbranch_scc1 L_k2_end")
    a(f"s_load_dwordx2 s[4:5], s[0:1], {KA_WQ}")
    a(f"s_load_dwordx2 s[6:7], s[0:1], {KA_WS}")
    a("v_lshrrev_b32 v1, 6, v0")
    a("v_and_b32 v2, 63, v0")
    a("s_nop 0")
    a("v_readfirstlane_b32 s32, v1")
    a("s_and_b32 s33, s2, 7")
    a("s_lshl_b32 s33, s33, 2")
    a("s_lshr_b32 s48, s2, 3")
    a("s_and_b32 s48, s48, 3")
    a("s_add_u32 s33, s33, s48")
    a("s_lshr_b32 s34, s2, 5")
    a("s_and_b32 s35, s32, 3")
    a("s_lshr_b32 s36, s32, 2")
    a(f"v_lshlrev_b32 {vr(vLane16)}, 4, v2")
    a("s_waitcnt lgkmcnt(0)")
    stamp(a, 0)
    a("s_lshl_b32 s48, s33, 8")
    a("s_add_u32 s4, s4, s48")
    a("s_addc_u32 s5, s5, 0")
    a(f"s_sub_u32 s49, {576 * 8192}, s48")
    make_srd(a, 16, "s4", "s5", "s49")
    make_srd(a, 20, "s6", "s7", WS_BYTES)
    make_srd(a, 24, "s6", "s7", WS_BYTES)
    make_srd(a, 28, "s6", "s7", WS_BYTES)
    a("s_sub_u32 s48, 15, s34")
    a("s_cmp_eq_u32 s36, 1")
    a("s_cselect_b32 s48, s48, s34")
    a("s_lshl_b32 s48, s48, 2")
    a("s_add_u32 s48, s48, s35")
    a("s_mul_i32 s50, s48, 36864")
    a(f"s_add_u32 s50, s50, {XN_OFF}")
    vWq0, vWq1 = 24, 25
    a("v_lshrrev_b32 v3, 4, v2")
    a("v_bfe_u32 v4, v2, 2, 2")
    a("v_xor_b32 v4, v4, v3")
    a("v_lshlrev_b32 v4, 6, v4")
    a("v_and_b32 v5, 3, v2")
    a("v_lshl_add_u32 v4, v5, 4, v4")
    a("s_lshl_b32 s48, s32, 3")
    a("v_add_u32 v3, s48, v3")
    a(f"v_lshl_add_u32 {vr(vWq0)}, v3, 13, v4")
    a(f"v_add_u32 {vr(vWq1)}, {4 * 8192}, {vr(vWq0)}")
    a("s_lshl_b32 s51, s32, 11")
    a("s_add_u32 s51, s51, 65536")
    vm = Vm()
    XF = 48
    WR = 32
    vWa = 28

    def dma_wq(st):
        a(f"s_add_u32 m0, s51, {(st % 6) * 16384}")
        a(f"s_mov_b32 s52, {st * 64 * 8192}")
        a(f"buffer_load_dwordx4 {vr(vWq0)}, s[16:19], s52 offen lds")
        vm.issue(("W", st))
        a("s_add_u32 m0, m0, 1024")
        a("s_nop 0")
        a(f"buffer_load_dwordx4 {vr(vWq1)}, s[16:19], s52 offen lds")
        vm.issue(("W", st))

    def ld_x(s):
        if s % 4 == 0 and s > 0:
            a("s_add_u32 s50, s50, 4096")
        a(f"buffer_load_dwordx4 {vr(XF + 4 * s, 4)}, {vr(vLane16)}, s[20:23], s50 offen offset:{(s % 4) * 1024}")
        vm.issue(("X", s))

    for st in range(5):
        dma_wq(st)
        for s in range(4 * st, 4 * st + 4):
            ld_x(s)
    for s in range(20, 36):
        ld_x(s)
    a("s_lshl_b32 s48, s33, 19")
    a("s_lshl_b32 s49, s32, 12")
    a("s_add_u32 s48, s48, s49")
    a(f"s_add_u32 s53, s48, {KP_OFF}")
    a(f"s_add_u32 s54, s48, {VP_OFF}")
    a("s_mov_b32 s42, s49")

    def dma_kv(sK, sV, track=None):
        a("s_mov_b32 m0, s42")
        a("s_nop 0")
        for j in range(4):
            a(f"buffer_load_dwordx4 {vr(vLane16)}, s[24:27], {sK} offen offset:{j * 1024} lds")
            if track: track.issue(("KV", 0))
        a("s_add_u32 m0, s42, 32768")
        a("s_nop 0")
        for j in range(4):
            a(f"buffer_load_dwordx4 {vr(vLane16)}, s[24:27], {sV} offen offset:{j * 1024} lds")
            if track: track.issue(("KV", 0))
        a("s_xor_b32 s42, s42, 65536")

    dma_kv("s53", "s54", vm)
    a("v_lshrrev_b32 v3, 5, v2")
    a("v_bfe_u32 v4, v2, 2, 2")
    a("v_lshl_add_u32 v3, v3, 3, v4")
    a("v_lshlrev_b32 v3, 8, v3")
    a("v_bfe_u32 v5, v2, 4, 1")
    a("v_lshl_add_u32 v3, v5, 5, v3")
    a("v_and_b32 v5, 3, v2")
    a("v_lshl_add_u32 v3, v5, 3, v3")
    a("v_add_u32 v3, 65536, v3")
    for dt in range(4):
        a(f"v_xor_b32 v5, {dt}, v4")
        a(f"v_lshl_add_u32 {vr(vWa + dt)}, v5, 6, v3")
    for i in range(64):
        a(f"v_mov_b32 {vr(O + i)}, 0")
    lg = Lgkm()
    seq = [(st, s, dt) for st in range(9) for s in range(4) for dt in range(4)]
    AH = 3

    def rd_wq(idx):
        st, s, dt = seq[idx]
        ring = idx % 4
        for i2 in range(2):
            a(f"ds_read_b64_tr_b16 {vr(WR + 4 * ring + 2 * i2, 2)}, {vr(vWa + dt)} offset:{(16 * s + 4 * i2) * 256}")
            lg.issue(("W", ring))
        if s == 3:
            d = 16384 if (st % 6) != 5 else -5 * 16384
            a(f"v_add_u32 {vr(vWa + dt)}, {d & 0xffffffff}, {vr(vWa + dt)}")

    vm.need(a, [("W", 0)])
    a("s_barrier")
    for i in range(AH):
        rd_wq(i)
    for idx, (st, s, dt) in enumerate(seq):
        if s == 0 and dt == 0:
            if st + 1 < 9:
                vm.need(a, [("W", st + 1)])
            a("s_barrier")
            if st + 5 < 9:
                dma_wq(st + 5)
        if dt == 0:
            vm.need(a, [("X", 4 * st + s)])
        if idx + AH < len(seq):
            rd_wq(idx + AH)
        lg.need(a, [("W", idx % 4)])
        a(f"v_mfma_f32_32x32x16_bf16 {vr(O + 16 * dt, 16)}, {vr(WR + 4 * (idx % 4), 4)}, {vr(XF + 4 * (4 * st + s), 4)}, {vr(O + 16 * dt, 16)}")
    a("s_nop 7")
    a("s_nop 7")
    stamp(a, 1)
    a(f"s_mov_b32 s48, {SCALE_C!r}")
    for i in range(64):
        a(f"v_mul_f32 {vr(O + i)}, s48, {vr(O + i)}")
    for i in range(32):
        a(f"v_cvt_pk_bf16_f32 {vr(Q + i)}, {vr(O + 2 * i)}, {vr(O + 2 * i + 1)}")
    a("s_barrier")
    a("s_lshl_b32 s48, s35, 13")
    a(f"v_add_u32 v3, s48, {vr(vLane16)}")
    a(f"v_add_u32 v4, 131072, v3")
    a("s_lshl_b32 s55, s2, 15")
    a("s_add_u32 s55, s55, s48")
    a(f"s_add_u32 s55, s55, {QS_OFF}")
    a("s_add_u32 s56, s55, 4096")
    a("s_cmp_eq_u32 s36, 1")
    a("s_cbranch_scc1 L_k2_qw1")
    for i in range(8):
        a(f"buffer_store_dwordx4 {vr(Q + 4 * i, 4)}, {vr(vLane16)}, s[20:23], {'s55' if i < 4 else 's56'} offen offset:{(i % 4) * 1024}")
    a("s_barrier")
    for i in range(8):
        a(f"ds_read_b128 {vr(Q + 4 * i, 4)}, v4 offset:{i * 1024}")
    a("s_branch L_k2_qw2")
    a.label("L_k2_qw1")
    for i in range(8):
        a(f"ds_write_b128 v4, {vr(Q + 4 * i, 4)} offset:{i * 1024}")
    a("s_waitcnt lgkmcnt(0)")
    a("s_barrier")
    a.label("L_k2_qw2")
    a("v_and_b32 v3, 31, v2")
    a("v_lshrrev_b32 v4, 5, v2")
    a("s_lshl_b32 s48, s36, 14")
    a("v_and_b32 v5, 15, v3")
    a("v_xor_b32 v5, v5, v4")
    a("v_lshlrev_b32 v6, 8, v3")
    a("v_add_u32 v6, s48, v6")
    for s_ in range(8):
        a(f"v_xor_b32 v7, {2 * s_}, v5")
        a(f"v_lshl_add_u32 {vr(vK + s_)}, v7, 4, v6")
    a("v_bfe_u32 v5, v3, 1, 3")
    a("v_xor_b32 v5, v5, v4")
    a("v_lshlrev_b32 v6, 7, v3")
    a("s_add_u32 s48, s48, 32768")
    a("v_add_u32 v6, s48, v6")
    for ks in range(4):
        a(f"v_xor_b32 v7, {2 * ks}, v5")
        a(f"v_lshl_add_u32 {vr(vV + ks)}, v7, 4, v6")
    a("s_lshl_b32 s48, s35, 5")
    a("s_lshl_b32 s49, s36, 6")
    a("s_sub_u32 s48, s48, s49")
    a("v_add_u32 v5, s48, v3")
    a("v_lshlrev_b32 v6, 2, v4")
    a(f"v_sub_u32 {vr(vLim)}, v5, v6")
    a("s_sub_u32 s37, 15, s34")
    a("s_mov_b32 s43, 0")
    a(f"s_mov_b32 s57, {THR!r}")
    a.label("L_k2_block")
    for i in range(64):
        a(f"v_mov_b32 {vr(O + i)}, 0")
    for i in range(16):
        a(f"v_mov_b32 {vr(NEGM + i)}, 0")
    a(f"v_mov_b32 {vr(vL)}, 0")
    a(f"v_mov_b32 {vr(vFloor)}, {NEGBIG}")
    a("s_mov_b32 s44, 1")
    a("s_mov_b32 s38, 0")
    a("s_mov_b32 s40, s53")
    a("s_mov_b32 s41, s54")

    def softmax_common(lbl_rare, lbl_back):
        for k in range(16):
            t0, t1 = PT + (2 * k) % 16, PT + (2 * k + 1) % 16
            a(f"v_exp_f32 {vr(t0)}, {vr(S + 2 * k)}")
            a(f"v_exp_f32 {vr(t1)}, {vr(S + 2 * k + 1)}")
            if k == 0:
                a("s_nop 0")
                a(f"v_mov_b32 v8, {vr(t0)}")
                a(f"v_mov_b32 v9, {vr(t1)}")
            else:
                a(f"v_add_f32 v8, v8, {vr(t0)}")
                a(f"v_add_f32 v9, v9, {vr(t1)}")
            a(f"v_cvt_pk_bf16_f32 {vr(P + k)}, {vr(t0)}, {vr(t1)}")
        a("v_add_f32 v8, v8, v9")

    def iteration(diag, tag):
        lg = Lgkm()
        a("s_waitcnt vmcnt(0)")
        a("s_barrier")
        if not diag:
            a("s_add_u32 s40, s40, 32768")
            a("s_add_u32 s41, s41, 32768")
            dma_kv("s40", "s41")
        else:
            a("s_cmp_eq_u32 s43, 0")
            a(f"s_cselect_b32 s26, {WS_BYTES}, 0")
            dma_kv("s53", "s54")
            a("s_cmp_eq_u32 s36, 1")
            a("s_cselect_b32 s48, 2, 0")
            a("s_cmp_lt_u32 s35, s48")
            a(f"s_cbranch_scc1 L_k2_{tag}_skip")
        kseq = [(t, s_) for t in range(2) for s_ in range(8)]
        vseq = [(ks, dt) for ks in range(4) for dt in range(4)]
        A = 6

        def rdk(i):
            t, s_ = kseq[i]
            a(f"ds_read_b128 {vr(FR + 4 * (i % 8), 4)}, {vr(vK + s_)} offset:{t * 8192}")
            lg.issue(("F", i % 8))

        def rdv(i):
            ks, dt = vseq[i]
            a(f"ds_read_b128 {vr(FR + 4 * (i % 8), 4)}, {vr(vV + ks)} offset:{dt * 4096}")
            lg.issue(("F", i % 8))
        for i in range(A):
            rdk(i)
        for i, (t, s_) in enumerate(kseq):
            if i + A < 16:
                rdk(i + A)
            lg.need(a, [("F", i % 8)])
            c_ = vr(NEGM, 16) if s_ == 0 else vr(S + 16 * t, 16)
            a(f"v_mfma_f32_32x32x16_bf16 {vr(S + 16 * t, 16)}, {vr(FR + 4 * (i % 8), 4)}, {vr(Q + 4 * s_, 4)}, {c_}")
        for i in range(8):
            rdv(i)
        a("s_nop 7")
        a("s_nop 3")
        if diag:
            a(f"v_mov_b32 v10, {NEGBIG}")
            items = [(t, r) for t in range(2) for r in range(16)]
            for i in range(len(items) + 2):
                if i < len(items):
                    t, r = items[i]
                    cst = 32 * t + 8 * (r // 4) + (r % 4)
                    a(f"v_cmp_le_i32 s[{60 + 2 * (i % 3)}:{61 + 2 * (i % 3)}], {cst}, {vr(vLim)}")
                else:
                    a("s_nop 0")
                if i >= 2:
                    t, r = items[i - 2]
                    j = (i - 2) % 3
                    a(f"v_cndmask_b32 {vr(S + 16 * t + r)}, v10, {vr(S + 16 * t + r)}, s[{60 + 2 * j}:{61 + 2 * j}]")
        a("s_cmp_eq_u32 s44, 1")
        a(f"s_cbranch_scc1 L_k2_{tag}_rare")
        softmax_common(None, None)
        a("v_cmp_lt_f32 vcc, s57, v8")
        a("s_nop 1")
        a(f"s_cbranch_vccz L_k2_{tag}_go")
        a.label(f"L_k2_{tag}_rare")
        a("s_mov_b32 s44, 0")
        a(f"v_max3_f32 v10, {vr(S)}, {vr(S + 1)}, {vr(S + 2)}")
        for i in range(3, 31, 2):
            a(f"v_max3_f32 v10, v10, {vr(S + i)}, {vr(S + i + 1)}")
        a(f"v_max3_f32 v10, v10, {vr(S + 31)}, {vr(vFloor)}")
        a("v_mov_b32 v11, v10")
        a("s_nop 1")
        a("v_permlane32_swap_b32 v10, v11")
        a("s_nop 1")
        a("v_max_f32 v10, v10, v11")
        a(f"v_mov_b32 {vr(vFloor)}, 0")
        a("v_max_f32 v11, 0, v10")
        a("v_exp_f32 v11, -v11")
        for i in range(32):
            a(f"v_sub_f32 {vr(S + i)}, {vr(S + i)}, v10")
        for i in range(16):
            a(f"v_sub_f32 {vr(NEGM + i)}, {vr(NEGM + i)}, v10")
        for i in range(64):
            a(f"v_mul_f32 {vr(O + i)}, {vr(O + i)}, v11")
        a(f"v_mul_f32 {vr(vL)}, {vr(vL)}, v11")
        softmax_common(None, None)
        a.label(f"L_k2_{tag}_go")
        a(f"v_add_f32 {vr(vL)}, {vr(vL)}, v8")
        a("s_nop 0")
        for i, (ks, dt) in enumerate(vseq):
            lg.need(a, [("F", i % 8)])
            a(f"v_mfma_f32_32x32x16_bf16 {vr(O + 16 * dt, 16)}, {vr(FR + 4 * (i % 8), 4)}, {vr(P + 4 * ks, 4)}, {vr(O + 16 * dt, 16)}")
            if i + 8 < 16:
                rdv(i + 8)
        if diag:
            a.label(f"L_k2_{tag}_skip")
        for i in range(8):
            a(f"v_xor_b32 {vr(vK + i)}, 0x10000, {vr(vK + i)}")
        for i in range(4):
            a(f"v_xor_b32 {vr(vV + i)}, 0x10000, {vr(vV + i)}")

    a("s_waitcnt lgkmcnt(0)")
    a("s_cmp_eq_u32 s37, 0")
    a("s_cbranch_scc1 L_k2_diag")
    a.label("L_k2_loop")
    iteration(False, "it")
    a("s_add_u32 s38, s38, 1")
    a("s_cmp_lt_u32 s38, s37")
    a("s_cbranch_scc1 L_k2_loop")
    a.label("L_k2_diag")
    iteration(True, "dg")
    a("s_cmp_eq_u32 s44, 1")
    a(f"s_cselect_b32 s48, {0x7149f2ca}, 0")
    a(f"v_add_f32 v12, s48, {vr(NEGM)}")
    a(f"v_mov_b32 v10, {vr(vL)}")
    a(f"v_mov_b32 v11, {vr(vL)}")
    a("s_nop 1")
    a("v_permlane32_swap_b32 v10, v11")
    a("s_nop 1")
    a("v_add_f32 v13, v10, v11")
    a("s_barrier")
    a("s_and_b32 s48, s42, 0x10000")
    a("s_lshl_b32 s49, s32, 13")
    a("s_add_u32 s49, s49, s48")
    a("s_xor_b32 s50, s49, 32768")
    a(f"v_add_u32 v3, s49, {vr(vLane16)}")
    a(f"v_add_u32 v4, s50, {vr(vLane16)}")
    a("s_lshl_b32 s49, s32, 9")
    a("s_add_u32 s49, s49, 131072")
    a("s_xor_b32 s50, s49, 2048")
    a("v_lshlrev_b32 v5, 3, v2")
    a("v_add_u32 v6, s50, v5")
    a("v_add_u32 v5, s49, v5")
    a("ds_write_b64 v5, v[12:13]")
    a("s_cmp_eq_u32 s36, 1")
    a("s_cbranch_scc1 L_k2_m1")
    for i in range(8):
        a(f"ds_write_b128 v3, {vr(O + 32 + 4 * i, 4)} offset:{i * 1024}")
    a("s_branch L_k2_m2")
    a.label("L_k2_m1")
    for i in range(8):
        a(f"ds_write_b128 v3, {vr(O + 4 * i, 4)} offset:{i * 1024}")
    for i in range(32):
        a(f"v_mov_b32 {vr(O + i)}, {vr(O + 32 + i)}")
    a.label("L_k2_m2")
    a("s_waitcnt lgkmcnt(0)")
    a("s_barrier")
    a("ds_read_b64 v[14:15], v6")
    for i in range(8):
        a(f"ds_read_b128 {vr(O + 32 + 4 * i, 4)}, v4 offset:{i * 1024}")
    for i in range(8):
        a(f"buffer_load_dwordx4 {vr(Q + 4 * i, 4)}, {vr(vLane16)}, s[20:23], {'s55' if i < 4 else 's56'} offen offset:{(i % 4) * 1024}")
    a("s_waitcnt lgkmcnt(8)")
    a("v_min_f32 v16, v12, v14")
    a("v_sub_f32 v17, v16, v12")
    a("v_sub_f32 v18, v16, v14")
    a("v_exp_f32 v17, v17")
    a("v_exp_f32 v18, v18")
    a("s_nop 0")
    a("v_mul_f32 v19, v13, v17")
    a("v_fmac_f32 v19, v15, v18")
    a("v_rcp_f32 v19, v19")
    a("s_nop 0")
    a("v_mul_f32 v17, v17, v19")
    a("v_mul_f32 v18, v18, v19")
    a("s_waitcnt lgkmcnt(0)")
    for i in range(32):
        a(f"v_mul_f32 {vr(O + i)}, {vr(O + i)}, v17")
        a(f"v_fmac_f32 {vr(O + i)}, {vr(O + 32 + i)}, v18")
    for i in range(16):
        a(f"v_cvt_pk_bf16_f32 {vr(S + i)}, {vr(O + 2 * i)}, {vr(O + 2 * i + 1)}")
    a("s_lshl_b32 s48, s33, 1")
    a("s_add_u32 s48, s48, s36")
    a("s_lshl_b32 s48, s48, 11")
    a("s_lshl_b32 s49, s37, 7")
    a("s_add_u32 s48, s48, s49")
    a("s_lshl_b32 s49, s35, 5")
    a("s_add_u32 s48, s48, s49")
    a("s_lshl_b32 s48, s48, 7")
    a(f"s_add_u32 s48, s48, {CTX_OFF}")
    a("v_and_b32 v3, 31, v2")
    a("v_lshrrev_b32 v4, 5, v2")
    a("v_lshlrev_b32 v3, 7, v3")
    a("v_lshl_add_u32 v3, v4, 4, v3")
    for i in range(4):
        a(f"buffer_store_dwordx4 {vr(S + 4 * i, 4)}, v3, s[20:23], s48 offen offset:{i * 32}")
    a("s_cmp_eq_u32 s43, 1")
    a("s_cbranch_scc1 L_k2_fin")
    a("s_mov_b32 s43, 1")
    a("s_mov_b32 s37, s34")
    a("s_branch L_k2_block")
    a.label("L_k2_fin")
    if STAMPS:
        a("s_waitcnt vmcnt(0)")
        stamp(a, 2)
        stamp_flush(a, 3, 1, 2, 32, s_t=70, kid=1)
    a.label("L_k2_end")
    a("s_endpgm")
    return name, "grid=(256,1,1) block=(512,1,1) lds=163840", 256
```

```python
MB = 1 << 20
XN_OFF = 0
KP_OFF = 4 * MB
VP_OFF = 20 * MB
CTX_OFF = 36 * MB
PART_OFF = 52 * MB
H_OFF = 72 * MB
HN_OFF = 76 * MB
ACT_OFF = 80 * MB
WS_BYTES = 268435456

KA_X, KA_CKV, KA_WQ, KA_WUK, KA_WUV, KA_WO, KA_BX, KA_WG, KA_WU, KA_WD, KA_OUT, KA_DBG, KA_WS = [8 * i for i in range(13)]


class Asm:
    def __init__(self):
        self.L = []

    def __call__(self, s):
        for line in s.split("\n"):
            line = line.strip()
            if line:
                self.L.append("    " + line)

    def label(self, l):
        self.L.append(l + ":")

    def comment(self, s):
        self.L.append("    ; " + s)

    def text(self):
        return "\n".join(self.L) + "\n"


class Lgkm:
    def __init__(self):
        self.q = []

    def issue(self, tag):
        self.q.append(tag)

    def need(self, a, tags):
        idx = -1
        for i, t in enumerate(self.q):
            if t in tags:
                idx = i
        if idx < 0:
            return
        n = len(self.q) - 1 - idx
        assert n <= 15, n
        a(f"s_waitcnt lgkmcnt({n})")
        self.q = self.q[idx + 1:]


def vr(b, n=1):
    return f"v{b}" if n == 1 else f"v[{b}:{b + n - 1}]"


def sr(b, n=1):
    return f"s{b}" if n == 1 else f"s[{b}:{b + n - 1}]"


def kernel_header(a, name):
    a.L.append(f".globl {name}")
    a.L.append(".p2align 8")
    a.L.append(f".type {name},@function")
    a.label(name)


def kernel_desc(name, vgpr=256, sgpr=102):
    acc = (vgpr + 3) // 4 * 4
    return f""".amdhsa_kernel {name}
  .amdhsa_next_free_vgpr {vgpr}
  .amdhsa_next_free_sgpr {sgpr}
  .amdhsa_accum_offset {acc}
  .amdhsa_group_segment_fixed_size 0
  .amdhsa_kernarg_size 104
  .amdhsa_user_sgpr_count 2
  .amdhsa_user_sgpr_kernarg_segment_ptr 1
  .amdhsa_system_sgpr_workgroup_id_x 1
.end_amdhsa_kernel
"""


def wave_sum(a, v, t0, t1):
    a("s_nop 1")
    a(f"v_add_f32_dpp {vr(v)}, {vr(v)}, {vr(v)} quad_perm:[1,0,3,2] row_mask:0xf bank_mask:0xf")
    a("s_nop 1")
    a(f"v_add_f32_dpp {vr(v)}, {vr(v)}, {vr(v)} quad_perm:[2,3,0,1] row_mask:0xf bank_mask:0xf")
    a("s_nop 1")
    a(f"v_add_f32_dpp {vr(v)}, {vr(v)}, {vr(v)} row_half_mirror row_mask:0xf bank_mask:0xf")
    a("s_nop 1")
    a(f"v_add_f32_dpp {vr(v)}, {vr(v)}, {vr(v)} row_mirror row_mask:0xf bank_mask:0xf")
    a(f"v_mov_b32 {vr(t0)}, {vr(v)}")
    a("s_nop 1")
    a(f"v_permlane16_swap_b32 {vr(v)}, {vr(t0)}")
    a("s_nop 1")
    a(f"v_add_f32 {vr(v)}, {vr(v)}, {vr(t0)}")
    a(f"v_mov_b32 {vr(t0)}, {vr(v)}")
    a("s_nop 1")
    a(f"v_permlane32_swap_b32 {vr(v)}, {vr(t0)}")
    a("s_nop 1")
    a(f"v_add_f32 {vr(v)}, {vr(v)}, {vr(t0)}")


def round_bf16(a, v, t):
    a(f"v_cvt_pk_bf16_f32 {vr(t)}, {vr(v)}, {vr(v)}")
    a(f"v_lshlrev_b32 {vr(v)}, 16, {vr(t)}")


def make_srd(a, s, base_lo, base_hi, nrec):
    a(f"s_mov_b32 {sr(s)}, {base_lo}")
    a(f"s_and_b32 {sr(s + 1)}, {base_hi}, 0xffff")
    a(f"s_mov_b32 {sr(s + 2)}, {nrec}")
    a(f"s_mov_b32 {sr(s + 3)}, 0x00020000")


STAMP_OFF = 200 * MB
import os
STAMPS = bool(os.environ.get("STAMPS"))


def stamp(a, idx, s_t=70, srd=28):
    if not STAMPS:
        return
    a("s_waitcnt lgkmcnt(0)")
    a(f"s_memtime s[{s_t}:{s_t + 1}]")
    a("s_waitcnt lgkmcnt(0)")
    a(f"v_mov_b32 v254, s{s_t}") if False else None
    a(f"s_mov_b32 s{s_t + 2 + idx}, s{s_t}")


def stamp_flush(a, n, vtmp0, vtmp1, s_w, s_t=90, srd=28, kid=0):
    if not STAMPS:
        return
    a(f"s_lshl_b32 s{s_t}, s2, 3")
    a(f"s_add_u32 s{s_t}, s{s_t}, s{s_w}")
    a(f"s_lshl_b32 s{s_t}, s{s_t}, 6")
    a(f"s_add_u32 s{s_t}, s{s_t}, {STAMP_OFF + kid * MB}")
    a(f"v_mov_b32 v{vtmp0}, 0")
    for i in range(n):
        a(f"v_mov_b32 v{vtmp1}, s{s_t + 2 + i}")
        a(f"buffer_store_dword v{vtmp1}, v{vtmp0}, s[{srd}:{srd + 3}], s{s_t} offen offset:{4 * i}")
```

```python
from gen_common import *


class GemmCfg:
    pass


ENV = os.environ.get


def gemm_prologue_and_loop(a, c, tag):
    TN, TM, R, AH = c.TN, c.TM, c.R, c.AHEAD
    NSW, WSLOT, NST, TSLOT, TPER = c.NSW, c.WSLOT, c.NST, c.TSLOT, c.TPER
    lg = Lgkm()

    def ring_adv(sreg, slot, ns):
        a(f"s_add_u32 {sr(sreg)}, {sr(sreg)}, {slot}")
        a(f"s_cmp_eq_u32 {sr(sreg)}, {ns * slot}")
        a(f"s_cselect_b32 {sr(sreg)}, 0, {sr(sreg)}")

    def finW():
        c.advW()
        ring_adv(c.s_dmaW, WSLOT, NSW)

    def finT():
        c.advT()
        ring_adv(c.s_dmaT, TSLOT, NST)

    def rd_w(nt, ring, dreg):
        for j, (ar, imm) in enumerate(c.wread(nt)):
            if ENV("NOLDS"):
                continue
            a(f"ds_read_b64_tr_b16 {vr(c.wfrag(ring) + 2 * j, 2)}, {vr(ar)} offset:{imm}")
            lg.issue(("W", ring))
        for r_ in c.wadv(nt):
            a(f"v_add_u32 {vr(r_)}, {sr(dreg)}, {vr(r_)}")

    def rd_t(buf, tt, dreg):
        ar, imm = c.tread(buf, tt)
        if not ENV("NOLDS"):
            a(f"ds_read_b128 {vr(c.tfrag(buf, tt), 4)}, {vr(ar)} offset:{imm}")
            lg.issue(("T", buf))
        if tt == TM - 1:
            for r_ in c.tadv(buf):
                a(f"v_add_u32 {vr(r_)}, {sr(dreg)}, {vr(r_)}")

    a(f"s_mov_b32 {sr(c.s_dmaW)}, 0")
    a(f"s_mov_b32 {sr(c.s_dmaT)}, 0")
    stamp(a, 7)
    DW = len(c.dmaW())
    DT = len(c.dmaT(0))
    issued = []
    if TPER == 1:
        assert NST == NSW
        for s in range(NSW - 1):
            for f in c.dmaW():
                f(); issued.append(("W", s))
            finW()
            for f in c.dmaT(0):
                f(); issued.append(("T", s))
            finT()
        VM_LOOP = (NSW - 3) * (DW + DT)
    else:
        tq = [(t, h) for t in range(NST - 1) for h in range(2)] + [(NST - 1, 0)]
        for s in range(NSW - 1):
            for f in c.dmaW():
                f(); issued.append(("W", s))
            finW()
            n_t = 2 if len(tq) > (NSW - 1 - s) else 1
            for _ in range(n_t):
                if tq:
                    t, h = tq.pop(0)
                    for f in c.dmaT(h):
                        f(); issued.append(("T", t))
                    if h == 1:
                        finT()
        assert not tq
        VM_LOOP = (NSW - 3) * (DW + DT) + DT
    if getattr(c, "mid", None):
        c.mid(len(issued))
    for nt in range(TN):
        for tt in range(TM):
            for r_ in range(4):
                a(f"v_mov_b32 {vr(c.acc(nt, tt) + r_)}, 0")
    a(f"s_mov_b32 {sr(c.s_dB)}, {WSLOT}")
    a(f"s_mov_b32 {sr(c.s_slotW)}, {WSLOT}")
    a(f"s_mov_b32 {sr(c.s_sl)}, 0")
    a(f"s_mov_b32 {sr(c.s_dT)}, {TSLOT}")
    a(f"s_mov_b32 {sr(c.s_slotT)}, {TSLOT}")
    a(f"s_mov_b32 {sr(c.s_slT)}, 0")
    stamp(a, 6)
    last0 = max(i for i, x in enumerate(issued) if x[1] == 0)
    a(f"s_waitcnt vmcnt({len(issued) - 1 - last0})")
    a("s_barrier")
    stamp(a, 1)
    TPOS = c.TPOS
    order = []
    for n in range(TN):
        if n + AH >= TN:
            order.append(("W", n + AH - TN))
        if 0 <= n - TPOS < TM:
            order.append(("T", n - TPOS))
    for kind, i in order:
        if kind == "W":
            rd_w(i, i % R, c.s_dB)
        else:
            rd_t(0, i, c.s_dT)
    q0 = list(lg.q)
    a(f"s_mov_b32 {sr(c.s_cnt)}, {c.NSTEPS // 2}")
    a.label(f"L_{tag}_loop")
    for p in range(2):
        a(f"s_waitcnt vmcnt({VM_LOOP})")
        if not ENV("NOBAR"):
            a("s_barrier")
        a(f"s_mov_b32 {sr(c.s_dA)}, {sr(c.s_dB)}")
        a(f"s_add_u32 {sr(c.s_sl)}, {sr(c.s_sl)}, 1")
        a(f"s_cmp_eq_u32 {sr(c.s_sl)}, {NSW}")
        a(f"s_cselect_b32 {sr(c.s_sl)}, 0, {sr(c.s_sl)}")
        a(f"s_cmp_eq_u32 {sr(c.s_sl)}, {NSW - 1}")
        a(f"s_cselect_b32 {sr(c.s_dB)}, {(-(NSW - 1) * WSLOT) & 0xffffffff}, {sr(c.s_slotW)}")
        if TPER == 1 or p == 1:
            a(f"s_add_u32 {sr(c.s_slT)}, {sr(c.s_slT)}, 1")
            a(f"s_cmp_eq_u32 {sr(c.s_slT)}, {NST}")
            a(f"s_cselect_b32 {sr(c.s_slT)}, 0, {sr(c.s_slT)}")
            a(f"s_cmp_eq_u32 {sr(c.s_slT)}, {NST - 1}")
            a(f"s_cselect_b32 {sr(c.s_dT)}, {(-(NST - 1) * TSLOT) & 0xffffffff}, {sr(c.s_slotT)}")
        h = 0 if TPER == 1 else (1 - p)
        dmas = c.dmaW() + [finW] + c.dmaT(h) + ([finT] if (TPER == 1 or h == 1) else [])
        if ENV("NODMA"):
            dmas = []
        slots = [(n, tt) for n in range(TN) for tt in range(TM) if tt % c.DMA_EVERY == 0]
        k = 0
        for n in range(TN):
            gi = p * TN + n
            nt2 = n + AH
            if nt2 < TN:
                rd_w(nt2, (gi + AH) % R, c.s_dA)
            else:
                rd_w(nt2 - TN, (gi + AH) % R, c.s_dB)
            if 0 <= n - TPOS < TM:
                rd_t(p ^ 1, n - TPOS, c.s_dT)
            need = [("W", gi % R)]
            if n == 0:
                need.append(("T", p))
            lg.need(a, need)
            for tt in range(TM):
                w_, t_ = vr(c.wfrag(gi % R), 4), vr(c.tfrag(p, tt), 4)
                ac = vr(c.acc(n, tt), 4)
                if c.swap:
                    a(f"v_mfma_f32_16x16x32_bf16 {ac}, {t_}, {w_}, {ac}")
                else:
                    a(f"v_mfma_f32_16x16x32_bf16 {ac}, {w_}, {t_}, {ac}")
                if (n, tt) in slots and dmas:
                    f = dmas.pop(0)
                    f()
                    while dmas and dmas[0] in (finW, finT):
                        dmas.pop(0)()
        assert not dmas
    assert lg.q == q0[len(q0) - len(lg.q):], (lg.q, q0)
    a(f"s_sub_u32 {sr(c.s_cnt)}, {sr(c.s_cnt)}, 1")
    a(f"s_cmp_lg_u32 {sr(c.s_cnt)}, 0")
    a(f"s_cbranch_scc1 L_{tag}_loop")
    a("s_waitcnt lgkmcnt(0)")
    a("s_nop 7")
    a("s_nop 7")
    stamp(a, 2)


def gen_k1(a):
    name = "k1_kv_kernel"
    kernel_header(a, name)
    a("s_cmp_ge_u32 s2, 256")
    a("s_cbranch_scc1 L_k1_end")
    a(f"s_load_dwordx4 s[4:7], s[0:1], {KA_X}")
    a(f"s_load_dwordx4 s[8:11], s[0:1], {KA_WUK}")
    a(f"s_load_dwordx2 s[12:13], s[0:1], {KA_WS}")
    a("v_lshrrev_b32 v1, 6, v0")
    a("v_and_b32 v2, 63, v0")
    a("s_nop 0")
    a("v_readfirstlane_b32 s32, v1")
    a("s_and_b32 s34, s2, 7")
    a("s_lshl_b32 s34, s34, 2")
    a("s_lshr_b32 s48, s2, 3")
    a("s_and_b32 s48, s48, 3")
    a("s_add_u32 s34, s34, s48")
    a("s_lshr_b32 s33, s2, 5")
    a("s_lshr_b32 s35, s32, 1")
    a("s_and_b32 s36, s32, 1")
    a("s_lshl_b32 s40, s32, 11")
    a("s_waitcnt lgkmcnt(0)")
    stamp(a, 0)
    a("s_lshl_b32 s48, s33, 18")
    a("s_add_u32 s6, s6, s48")
    a("s_addc_u32 s7, s7, 0")
    make_srd(a, 16, "s6", "s7", 256 * 1024)
    a(f"s_mov_b32 s46, {256 * 1024}")
    a("s_cmp_ge_u32 s34, 16")
    a("s_cselect_b32 s8, s10, s8")
    a("s_cselect_b32 s9, s11, s9")
    a("s_and_b32 s48, s34, 15")
    a("s_lshl_b32 s48, s48, 9")
    a("s_add_u32 s8, s8, s48")
    a("s_addc_u32 s9, s9, 0")
    a(f"s_sub_u32 s47, {512 * 8192}, s48")
    make_srd(a, 20, "s8", "s9", "s47")
    make_srd(a, 24, "s4", "s5", 2048 * 1152)
    make_srd(a, 28, "s12", "s13", WS_BYTES)
    a("s_lshl_b32 s49, s2, 3")
    a("s_add_u32 s49, s49, s32")
    a("s_mul_i32 s50, s49, 1152")
    a("v_lshlrev_b32 v3, 4, v2")
    for i in range(8, 12):
        a(f"v_mov_b32 v{i}, 0")
    a("buffer_load_dwordx4 v[4:7], v3, s[24:27], s50 offen")
    a("s_mov_b64 exec, 0xff")
    a("buffer_load_dwordx4 v[8:11], v3, s[24:27], s50 offen offset:1024")
    a("s_mov_b64 exec, -1")
    vA = 56
    vW0, vW1 = 66, 67
    vT0, vT1 = 70, 71
    vWa = 72
    WBASE = 3 * 32768
    a("v_lshrrev_b32 v20, 3, v2")
    a("s_lshl_b32 s48, s32, 5")
    a("v_add_u32 v20, s48, v20")
    a("v_lshlrev_b32 v20, 10, v20")
    a("v_lshrrev_b32 v21, 5, v2")
    a("v_and_b32 v22, 7, v2")
    a("v_bfe_u32 v24, v2, 4, 1")
    a("v_lshlrev_b32 v24, 2, v24")
    a("v_xor_b32 v22, v22, v24")
    for j in range(4):
        a(f"v_sub_u32 v23, {(-2 * (j >> 1)) & 3}, v21")
        a("v_and_b32 v23, 3, v23")
        a("v_xor_b32 v23, v23, v22")
        a("v_lshl_add_u32 v23, v23, 4, v20")
        a(f"v_add_u32 {vr(vA + j)}, {j * 8 * 1024}, v23")
    a("v_lshrrev_b32 v20, 5, v2")
    a("v_bfe_u32 v21, v2, 1, 4")
    a("v_and_b32 v22, 1, v2")
    a("s_and_b32 s48, s35, 1")
    a("s_lshl_b32 s48, s48, 2")
    a("s_lshl_b32 s51, s32, 2")
    for j, vd in ((0, vW0), (1, vW1)):
        a(f"v_add_u32 v23, {2 * j}, v20")
        a("v_or_b32 v24, s48, v23")
        a("v_xor_b32 v24, v24, v21")
        a("v_lshrrev_b32 v25, 1, v24")
        a("v_lshlrev_b32 v25, 2, v25")
        a("v_and_b32 v24, 1, v24")
        a("v_add_u32 v25, v25, v24")
        a("v_lshl_add_u32 v25, v22, 1, v25")
        a("v_add_u32 v23, s51, v23")
        a("v_lshlrev_b32 v23, 13, v23")
        a(f"v_lshl_add_u32 {vr(vd)}, v25, 4, v23")
    a("v_and_b32 v62, 15, v2")
    a("v_lshrrev_b32 v61, 4, v2")
    a("v_bfe_u32 v20, v2, 3, 1")
    a("v_lshlrev_b32 v20, 4, v20")
    a("v_and_b32 v21, 7, v2")
    a("v_add_u32 v60, v20, v21")
    a("v_lshrrev_b32 v20, 2, v62")
    a("v_sub_u32 v20, 0, v20")
    a("v_and_b32 v20, 3, v20")
    a("v_xor_b32 v20, v20, v61")
    a("v_bfe_u32 v21, v2, 1, 1")
    a("v_lshl_or_b32 v20, v21, 2, v20")
    a("s_lshl_b32 s48, s35, 6")
    a("v_add_u32 v21, s48, v60")
    a("v_lshlrev_b32 v21, 7, v21")
    a(f"v_lshl_add_u32 {vr(vT0)}, v20, 4, v21")
    a(f"v_xor_b32 {vr(vT1)}, 64, {vr(vT0)}")
    a("v_bfe_u32 v20, v2, 2, 2")
    a("v_and_b32 v21, 1, v61")
    a("v_lshl_or_b32 v21, v21, 2, v20")
    a("v_lshl_add_u32 v22, v61, 3, v20")
    a("v_lshlrev_b32 v22, 9, v22")
    a("v_and_b32 v23, 3, v2")
    a("v_lshl_add_u32 v22, v23, 3, v22")
    a("s_lshl_b32 s48, s36, 8")
    a(f"s_add_u32 s48, s48, {WBASE}")
    a("v_add_u32 v22, s48, v22")
    for nt in range(8):
        a(f"v_xor_b32 v23, {nt}, v21")
        a(f"v_lshl_add_u32 {vr(vWa + nt)}, v23, 5, v22")
    a("s_mov_b32 s37, 0")
    a("s_mov_b32 s38, 0")

    a("s_mov_b32 s44, 0")
    a("s_mov_b32 s53, 0")
    a("s_lshl_b32 s54, s32, 12")
    a(f"s_add_u32 s40, s40, {WBASE}")
    c = GemmCfg()
    c.TN, c.TM, c.R, c.AHEAD, c.NSTEPS = 8, 4, 4, 3, 16
    c.NSW, c.WSLOT, c.NST, c.TSLOT, c.TPER = 4, 16384, 3, 32768, 2
    c.TPOS = 0
    c.DMA_EVERY = 4
    c.acc = lambda nt, tt: 128 + (nt * 4 + tt) * 4
    c.tfrag = lambda buf, tt: 96 + buf * 16 + tt * 4
    c.wfrag = lambda r_: 80 + r_ * 4
    c.wread = lambda nt: [(vWa + nt, 0), (vWa + nt, 2048)]
    c.wadv = lambda nt: [vWa + nt]
    c.tread = lambda q, tt: ((vT0, vT1)[q], (32 * (tt >> 1) + 8 * (tt & 1)) * 128)
    c.tadv = lambda q: [(vT0, vT1)[q]]
    c.s_dA, c.s_dB, c.s_sl, c.s_dmaW, c.s_cnt, c.s_slotW = 41, 42, 43, 39, 45, 52
    c.s_dT, c.s_slT, c.s_dmaT, c.s_slotT = 55, 56, 57, 58

    def dmaW():
        def d2():
            a("s_add_u32 m0, s39, s40")
            a("s_nop 0")
            a(f"buffer_load_dwordx4 {vr(vW0)}, s[20:23], s38 offen lds")

        def d3():
            a("s_add_u32 m0, m0, 1024")
            a("s_nop 0")
            a(f"buffer_load_dwordx4 {vr(vW1)}, s[20:23], s38 offen lds")
        return [d2, d3]
    c.dmaW = dmaW

    def dmaT(h):
        def d0():
            a("s_add_u32 m0, s57, s54")
            if h:
                a("s_add_u32 m0, m0, 2048")
            a("s_nop 0")
            a(f"buffer_load_dwordx4 {vr(vA + 2 * h)}, s[16:19], s37 offen lds")

        def d1():
            a("s_add_u32 m0, m0, 1024")
            a("s_nop 0")
            a(f"buffer_load_dwordx4 {vr(vA + 2 * h + 1)}, s[16:19], s37 offen lds")
        return [d0, d1]
    c.dmaT = dmaT

    def advW():
        a(f"s_add_u32 s38, s38, {32 * 8192}")
        a("s_add_u32 s44, s44, 1")
        a(f"s_cmp_lt_u32 s44, {c.NSTEPS}")
        a("s_cselect_b32 s22, s47, 0")
    c.advW = advW

    def advT():
        a("s_add_u32 s37, s37, 128")
        a("s_add_u32 s53, s53, 1")
        a(f"s_cmp_lt_u32 s53, {c.NSTEPS // 2}")
        a("s_cselect_b32 s18, s46, 0")
    c.advT = advT

    def mid(nis):
        stamp(a, 4)
        a(f"s_waitcnt vmcnt({nis})")
        stamp(a, 5)
        for i in range(8):
            a(f"v_lshlrev_b32 v{20 + 2 * i}, 16, v{4 + i}")
            a(f"v_and_b32 v{21 + 2 * i}, 0xffff0000, v{4 + i}")
        a("v_add_f32 v36, v20, v21")
        for i in range(22, 36):
            a(f"v_add_f32 v36, v36, v{i}")
        wave_sum(a, 36, 37, 38)
        a(f"v_mul_f32 v36, {1.0 / 576.0!r}, v36")
        a("v_mov_b32 v39, 0")
        for i in range(20, 28):
            a(f"v_sub_f32 v37, v{i}, v36")
            a("v_fmac_f32 v39, v37, v37")
        a("s_mov_b64 exec, 0xff")
        for i in range(28, 36):
            a(f"v_sub_f32 v37, v{i}, v36")
            a("v_fmac_f32 v39, v37, v37")
        a("s_mov_b64 exec, -1")
        wave_sum(a, 39, 37, 38)
        a(f"v_mul_f32 v39, {1.0 / 576.0!r}, v39")
        round_bf16(a, 39, 37)
        a("v_add_f32 v39, 0x3727c5ac, v39")
        round_bf16(a, 39, 37)
        a("v_sqrt_f32 v39, v39")
        a("s_nop 0")
        round_bf16(a, 39, 37)
        a("v_rcp_f32 v39, v39")
        round_bf16(a, 36, 37)
        for i in range(8):
            a(f"v_sub_f32 v{20 + 2 * i}, v{20 + 2 * i}, v36")
            a(f"v_sub_f32 v{21 + 2 * i}, v{21 + 2 * i}, v36")
            a(f"v_cvt_pk_bf16_f32 v37, v{20 + 2 * i}, v{21 + 2 * i}")
            a(f"v_lshlrev_b32 v{20 + 2 * i}, 16, v37")
            a(f"v_and_b32 v{21 + 2 * i}, 0xffff0000, v37")
            a(f"v_mul_f32 v{20 + 2 * i}, v{20 + 2 * i}, v39")
            a(f"v_mul_f32 v{21 + 2 * i}, v{21 + 2 * i}, v39")
            a(f"v_cvt_pk_bf16_f32 v{4 + i}, v{20 + 2 * i}, v{21 + 2 * i}")
        a("s_lshr_b32 s50, s49, 5")
        a("s_mul_i32 s50, s50, 36864")
        a("s_and_b32 s51, s49, 31")
        a("s_lshl_b32 s51, s51, 4")
        a("s_add_u32 s50, s50, s51")
        a(f"s_add_u32 s50, s50, {XN_OFF}")
        a("v_lshrrev_b32 v37, 1, v2")
        a("v_lshlrev_b32 v37, 10, v37")
        a("v_and_b32 v38, 1, v2")
        a("v_lshl_add_u32 v37, v38, 9, v37")
        a("buffer_store_dwordx4 v[4:7], v37, s[28:31], s50 offen")
        a(f"s_add_u32 s50, s50, {32 * 1024}")
        a("s_mov_b64 exec, 0xff")
        a("buffer_store_dwordx4 v[8:11], v37, s[28:31], s50 offen")
        a("s_mov_b64 exec, -1")
    c.mid = mid

    a("s_cmp_ge_u32 s34, 16")
    a("s_cbranch_scc1 L_k1_vpath")
    c.swap = False
    gemm_prologue_and_loop(a, c, "k1k")
    a("s_lshl_b32 s48, s34, 1")
    a("s_add_u32 s48, s48, s36")
    a("s_lshl_b32 s48, s48, 11")
    a("s_lshl_b32 s49, s33, 8")
    a("s_add_u32 s48, s48, s49")
    a("s_lshl_b32 s49, s35, 6")
    a("s_add_u32 s48, s48, s49")
    a("s_lshl_b32 s48, s48, 8")
    a(f"s_add_u32 s48, s48, {KP_OFF}")
    a("v_and_b32 v20, 7, v60")
    a("v_xor_b32 v20, v20, v61")
    a("v_lshlrev_b32 v21, 8, v60")
    a("v_lshl_add_u32 v21, v20, 4, v21")
    for x in range(4):
        a(f"v_xor_b32 v{24 + x}, {x << 6}, v21")
    k = 0
    for tt in range(4):
        a(f"s_add_u32 s49, s48, {(32 * (tt >> 1) + 8 * (tt & 1)) * 256}")
        for P in range(4):
            t = 32 + (k % 4) * 4
            k += 1
            a0, a1 = c.acc(2 * P, tt), c.acc(2 * P + 1, tt)
            a(f"v_cvt_pk_bf16_f32 v{t}, v{a0}, v{a0 + 1}")
            a(f"v_cvt_pk_bf16_f32 v{t + 1}, v{a0 + 2}, v{a0 + 3}")
            a(f"v_cvt_pk_bf16_f32 v{t + 2}, v{a1}, v{a1 + 1}")
            a(f"v_cvt_pk_bf16_f32 v{t + 3}, v{a1 + 2}, v{a1 + 3}")
            a(f"buffer_store_dwordx4 v[{t}:{t + 3}], v{24 + (P ^ (2 * (tt & 1)))}, s[28:31], s49 offen")
    if STAMPS:
        a("s_waitcnt vmcnt(0)")
        stamp(a, 3)
        stamp_flush(a, 8, 1, 2, 32, s_t=70)
    a("s_endpgm")
    a.label("L_k1_vpath")
    c.swap = True
    gemm_prologue_and_loop(a, c, "k1v")
    a("s_and_b32 s48, s34, 15")
    a("s_lshl_b32 s48, s48, 1")
    a("s_add_u32 s48, s48, s36")
    a("s_lshl_b32 s48, s48, 5")
    a("s_lshl_b32 s49, s33, 2")
    a("s_add_u32 s48, s48, s49")
    a("s_add_u32 s48, s48, s35")
    a("s_lshl_b32 s48, s48, 14")
    a(f"s_add_u32 s48, s48, {VP_OFF}")
    a("v_bfe_u32 v20, v62, 1, 2")
    a("v_xor_b32 v20, v20, v61")
    a("v_lshlrev_b32 v21, 7, v60")
    a("v_lshl_add_u32 v24, v20, 4, v21")
    a("v_xor_b32 v25, 64, v24")
    k = 0
    for nt in range(8):
        P, T = nt >> 1, nt & 1
        a(f"s_add_u32 s49, s48, {(32 * P + 8 * T) * 128}")
        for Q in range(2):
            t = 32 + (k % 4) * 4
            k += 1
            a0, a1 = c.acc(nt, 2 * Q), c.acc(nt, 2 * Q + 1)
            a(f"v_cvt_pk_bf16_f32 v{t}, v{a0}, v{a0 + 1}")
            a(f"v_cvt_pk_bf16_f32 v{t + 1}, v{a0 + 2}, v{a0 + 3}")
            a(f"v_cvt_pk_bf16_f32 v{t + 2}, v{a1}, v{a1 + 1}")
            a(f"v_cvt_pk_bf16_f32 v{t + 3}, v{a1 + 2}, v{a1 + 3}")
            a(f"buffer_store_dwordx4 v[{t}:{t + 3}], v{24 + (Q ^ T)}, s[28:31], s49 offen")
    if STAMPS:
        a("s_waitcnt vmcnt(0)")
        stamp(a, 3)
        stamp_flush(a, 8, 1, 2, 32, s_t=70)
    a.label("L_k1_end")
    a("s_endpgm")
    return name, "grid=(256,1,1) block=(512,1,1) lds=163840", 256


def gen_empty(a):
    name = "k0_empty_kernel"
    kernel_header(a, name)
    a("s_endpgm")
    return name, "grid=(256,1,1) block=(512,1,1) lds=163840", 256
```

```python
import math
from gen_common import *
from gen_gemm import *


def div18(a, vq, vr_, vin, vtmp):
    a(f"v_mul_u32_u24 {vr(vq)}, 3641, {vr(vin)}")
    a(f"v_lshrrev_b32 {vr(vq)}, 16, {vr(vq)}")
    a(f"v_mul_u32_u24 {vr(vtmp)}, 18, {vr(vq)}")
    a(f"v_sub_u32 {vr(vr_)}, {vr(vin)}, {vr(vtmp)}")


def gen_splitk(name, KA_W, A_OFF, NSTAGE, kid):
    def g(a):
        kernel_header(a, name)
        a("s_cmp_ge_u32 s2, 256")
        a(f"s_cbranch_scc1 L_{name}_end")
        a(f"s_load_dwordx2 s[8:9], s[0:1], {KA_W}")
        a(f"s_load_dwordx2 s[12:13], s[0:1], {KA_WS}")
        a("v_lshrrev_b32 v1, 6, v0")
        a("v_and_b32 v2, 63, v0")
        a("s_nop 0")
        a("v_readfirstlane_b32 s32, v1")
        a("s_and_b32 s48, s2, 7")
        a("s_lshr_b32 s49, s2, 3")
        a("s_lshr_b32 s33, s48, 1")
        a("s_and_b32 s34, s48, 1")
        a("s_lshl_b32 s34, s34, 3")
        a("s_lshr_b32 s50, s49, 2")
        a("s_add_u32 s34, s34, s50")
        a("s_and_b32 s35, s49, 3")
        a("s_and_b32 s36, s32, 3")
        a("s_lshr_b32 s37, s32, 2")
        a("s_waitcnt lgkmcnt(0)")
        stamp(a, 0)
        KTOT = NSTAGE * 64 * 4
        make_srd(a, 20, "s8", "s9", KTOT * 1152)
        a(f"s_mov_b32 s47, {KTOT * 1152}")
        make_srd(a, 16, "s12", "s13", WS_BYTES)
        a(f"s_mov_b32 s46, {WS_BYTES}")
        make_srd(a, 28, "s12", "s13", WS_BYTES)
        TS, WS_ = 16384, 18432
        WBASE = 4 * TS
        vA0, vA1, vW0, vW1, vW2, vT, vWa = 64, 65, 66, 67, 68, 70, 71
        a("v_lshrrev_b32 v20, 3, v2")
        a("s_lshl_b32 s48, s32, 4")
        a("v_add_u32 v20, s48, v20")
        a("v_lshlrev_b32 v20, 7, v20")
        a("v_lshrrev_b32 v21, 4, v2")
        a("v_and_b32 v22, 7, v2")
        a("v_xor_b32 v21, v21, v22")
        a(f"v_lshl_add_u32 {vr(vA0)}, v21, 4, v20")
        a("v_xor_b32 v21, 4, v21")
        a("v_lshl_add_u32 v21, v21, 4, v20")
        a(f"v_add_u32 {vr(vA1)}, 1024, v21")
        a(f"s_mul_i32 s38, s33, {NSTAGE * 262144}")
        a("s_lshl_b32 s48, s34, 14")
        a("s_add_u32 s38, s38, s48")
        a(f"s_add_u32 s38, s38, {A_OFF}")
        for j, vd in ((0, vW0), (1, vW1), (2, vW2)):
            a(f"v_add_u32 v20, {64 * j}, v2")
            div18(a, 21, 22, 20, 23)
            a("s_lshl_b32 s48, s32, 3")
            a("v_add_u32 v21, s48, v21")
            a("v_mul_u32_u24 v21, 1152, v21")
            a(f"v_lshl_add_u32 {vr(vd)}, v22, 4, v21")
        a(f"s_mul_i32 s39, s33, {NSTAGE * 64 * 1152}")
        a("s_mul_i32 s48, s35, 288")
        a("s_add_u32 s39, s39, s48")
        a("s_lshl_b32 s40, s32, 11")
        a("s_mul_i32 s41, s32, 2304")
        a(f"s_add_u32 s41, s41, {WBASE}")
        a("v_and_b32 v62, 15, v2")
        a("v_lshrrev_b32 v61, 4, v2")
        a("s_lshl_b32 s48, s37, 2")
        a("v_add_u32 v20, s48, v61")
        a("v_lshrrev_b32 v21, 1, v62")
        a("v_xor_b32 v20, v20, v21")
        a("s_lshl_b32 s48, s36, 5")
        a("v_add_u32 v21, s48, v62")
        a("v_lshlrev_b32 v21, 7, v21")
        a(f"v_lshl_add_u32 {vr(vT)}, v20, 4, v21")
        a("v_lshrrev_b32 v20, 5, v2")
        a("v_lshlrev_b32 v20, 4, v20")
        a("v_bfe_u32 v21, v2, 2, 3")
        a("v_add_u32 v20, v20, v21")
        a("s_lshl_b32 s48, s37, 5")
        a("v_add_u32 v20, s48, v20")
        a("v_mul_u32_u24 v20, 288, v20")
        a("v_and_b32 v21, 3, v2")
        a("v_lshl_add_u32 v20, v21, 3, v20")
        a(f"v_add_u32 {vr(vWa)}, {WBASE}, v20")
        a("s_mov_b32 s44, 0")
        c = GemmCfg()
        c.TN, c.TM, c.R, c.AHEAD, c.NSTEPS = 9, 2, 6, 5, NSTAGE
        c.NSW, c.WSLOT, c.NST, c.TSLOT, c.TPER = 4, WS_, 4, TS, 1
        c.TPOS = 0
        c.DMA_EVERY = 2
        c.swap = False
        c.acc = lambda nt, tt: 128 + (nt * 2 + tt) * 4
        c.tfrag = lambda buf, tt: 112 + buf * 8 + tt * 4
        c.wfrag = lambda r_: 80 + r_ * 4
        c.wread = lambda nt: [(vWa, nt * 32), (vWa, nt * 32 + 8 * 288)]
        c.wadv = lambda nt: [vWa] if nt == 8 else []
        c.tread = lambda q, tt: (vT, tt * 2048)
        c.tadv = lambda q: [vT]
        c.s_dA, c.s_dB, c.s_sl, c.s_dmaW, c.s_cnt, c.s_slotW = 50, 51, 52, 53, 45, 54
        c.s_dT, c.s_slT, c.s_dmaT, c.s_slotT = 55, 56, 57, 58

        def dmaW():
            def d0():
                a("s_add_u32 m0, s53, s41")
                a("s_nop 0")
                a(f"buffer_load_dwordx4 {vr(vW0)}, s[20:23], s39 offen lds")

            def d1():
                a("s_add_u32 m0, m0, 1024")
                a("s_nop 0")
                a(f"buffer_load_dwordx4 {vr(vW1)}, s[20:23], s39 offen lds")

            def d2():
                a("s_add_u32 m0, m0, 1024")
                a("s_mov_b64 exec, 0xffff")
                a(f"buffer_load_dwordx4 {vr(vW2)}, s[20:23], s39 offen lds")
                a("s_mov_b64 exec, -1")
            return [d0, d1, d2]
        c.dmaW = dmaW

        def dmaT(h):
            def d0():
                a("s_add_u32 m0, s57, s40")
                a("s_nop 0")
                a(f"buffer_load_dwordx4 {vr(vA0)}, s[16:19], s38 offen lds")

            def d1():
                a("s_add_u32 m0, m0, 1024")
                a("s_nop 0")
                a(f"buffer_load_dwordx4 {vr(vA1)}, s[16:19], s38 offen lds")
            return [d0, d1]
        c.dmaT = dmaT

        def advW():
            a(f"s_add_u32 s39, s39, {64 * 1152}")
        c.advW = advW

        def advT():
            a("s_add_u32 s38, s38, 262144")
            a("s_add_u32 s44, s44, 1")
            a(f"s_cmp_lt_u32 s44, {NSTAGE}")
            a("s_cselect_b32 s18, s46, 0")
            a("s_cselect_b32 s22, s47, 0")
        c.advT = advT
        gemm_prologue_and_loop(a, c, name)
        a("s_waitcnt vmcnt(0)")
        a("s_barrier")
        a("s_mul_i32 s48, s32, 9216")
        a("s_xor_b32 s49, s32, 4")
        a("s_mul_i32 s49, s49, 9216")
        a("v_lshlrev_b32 v3, 4, v2")
        a("v_add_u32 v4, s49, v3")
        a("v_add_u32 v3, s48, v3")
        a("s_cmp_eq_u32 s37, 1")
        a(f"s_cbranch_scc1 L_{name}_e1")
        for nt in range(9):
            a(f"ds_write_b128 v3, {vr(c.acc(nt, 1), 4)} offset:{nt * 1024}")
        a(f"s_branch L_{name}_e2")
        a.label(f"L_{name}_e1")
        for nt in range(9):
            a(f"ds_write_b128 v3, {vr(c.acc(nt, 0), 4)} offset:{nt * 1024}")
        for nt in range(9):
            for r_ in range(4):
                a(f"v_mov_b32 {vr(c.acc(nt, 0) + r_)}, {vr(c.acc(nt, 1) + r_)}")
        a.label(f"L_{name}_e2")
        a("s_waitcnt lgkmcnt(0)")
        a("s_barrier")
        for nt in range(9):
            a(f"ds_read_b128 {vr(c.acc(nt, 1), 4)}, v4 offset:{nt * 1024}")
        a(f"s_mul_i32 s48, s33, {2048 * 576 * 4}")
        a("s_lshl_b32 s49, s34, 7")
        a("s_lshl_b32 s50, s36, 5")
        a("s_add_u32 s49, s49, s50")
        a("s_lshl_b32 s50, s37, 4")
        a("s_add_u32 s49, s49, s50")
        a("s_mul_i32 s49, s49, 2304")
        a("s_add_u32 s48, s48, s49")
        a("s_mul_i32 s49, s35, 576")
        a("s_add_u32 s48, s48, s49")
        a(f"s_add_u32 s48, s48, {PART_OFF}")
        a("v_mul_u32_u24 v5, 2304, v62")
        a("v_lshl_add_u32 v5, v61, 4, v5")
        for nt in range(9):
            a(f"s_waitcnt lgkmcnt({8 - nt})")
            for r_ in range(4):
                a(f"v_add_f32 {vr(c.acc(nt, 0) + r_)}, {vr(c.acc(nt, 0) + r_)}, {vr(c.acc(nt, 1) + r_)}")
            a(f"buffer_store_dwordx4 {vr(c.acc(nt, 0), 4)}, v5, s[28:31], s48 offen offset:{nt * 64}")
        if STAMPS:
            a("s_waitcnt vmcnt(0)")
            stamp(a, 3)
            stamp(a, 4); stamp(a, 5)
            stamp_flush(a, 8, 1, 2, 32, s_t=70, kid=kid)
        a.label(f"L_{name}_end")
        a("s_endpgm")
        return name, "grid=(256,1,1) block=(512,1,1) lds=139264", 208
    return g


gen_k3 = gen_splitk("k3_oproj_kernel", KA_WO, CTX_OFF, 16, 2)
gen_k6 = gen_splitk("k6_down_kernel", KA_WD, ACT_OFF, 18, 5)


def gen_reduce(name, do_ln):
    def g(a):
        kernel_header(a, name)
        a("s_cmp_ge_u32 s2, 256")
        a(f"s_cbranch_scc1 L_{name}_end")
        a(f"s_load_dwordx2 s[4:5], s[0:1], {KA_X if do_ln else KA_OUT}")
        a(f"s_load_dwordx2 s[12:13], s[0:1], {KA_WS}")
        a("v_lshrrev_b32 v1, 6, v0")
        a("v_and_b32 v2, 63, v0")
        a("s_nop 0")
        a("v_readfirstlane_b32 s32, v1")
        a("s_lshl_b32 s49, s2, 3")
        a("s_add_u32 s49, s49, s32")
        a("v_lshrrev_b32 v3, 1, v2")
        a("v_lshlrev_b32 v3, 4, v3")
        a("v_and_b32 v4, 1, v2")
        a("v_lshl_add_u32 v3, v4, 2, v3")
        a("v_lshlrev_b32 v4, 2, v3")
        a("v_lshlrev_b32 v5, 1, v3")
        a("s_mul_i32 s50, s49, 2304")
        a(f"s_add_u32 s50, s50, {PART_OFF}")
        a("s_mul_i32 s51, s49, 1152")
        a("s_waitcnt lgkmcnt(0)")
        make_srd(a, 24, "s4", "s5", 2048 * 1152)
        make_srd(a, 28, "s12", "s13", WS_BYTES)
        for i in range(16, 88):
            a(f"v_mov_b32 v{i}, 0")
        for ks in range(4):
            b = 16 + 16 * ks
            a(f"buffer_load_dwordx4 v[{b}:{b + 3}], v4, s[28:31], s50 offen")
            a(f"buffer_load_dwordx4 v[{b + 4}:{b + 7}], v4, s[28:31], s50 offen offset:32")
            a("s_mov_b64 exec, 0xff")
            a(f"buffer_load_dwordx4 v[{b + 8}:{b + 11}], v4, s[28:31], s50 offen offset:2048")
            a(f"buffer_load_dwordx4 v[{b + 12}:{b + 15}], v4, s[28:31], s50 offen offset:2080")
            a("s_mov_b64 exec, -1")
            if ks < 3:
                a(f"s_add_u32 s50, s50, {2048 * 576 * 4}")
        if do_ln:
            rs, so = "s[24:27]", "s51"
        else:
            a(f"s_add_u32 s52, s51, {H_OFF}")
            rs, so = "s[28:31]", "s52"
        a(f"buffer_load_dwordx2 v[80:81], v5, {rs}, {so} offen")
        a(f"buffer_load_dwordx2 v[82:83], v5, {rs}, {so} offen offset:16")
        a("s_mov_b64 exec, 0xff")
        a(f"buffer_load_dwordx2 v[84:85], v5, {rs}, {so} offen offset:1024")
        a(f"buffer_load_dwordx2 v[86:87], v5, {rs}, {so} offen offset:1040")
        a("s_mov_b64 exec, -1")
        a("s_waitcnt vmcnt(0)")
        for i in range(16):
            a(f"v_add_f32 v{16 + i}, v{16 + i}, v{32 + i}")
            a(f"v_add_f32 v{48 + i}, v{48 + i}, v{64 + i}")
        for i in range(16):
            a(f"v_add_f32 v{16 + i}, v{16 + i}, v{48 + i}")
        for i in range(8):
            a(f"v_cvt_pk_bf16_f32 v6, v{16 + 2 * i}, v{17 + 2 * i}")
            a(f"v_lshlrev_b32 v{16 + 2 * i}, 16, v6")
            a(f"v_and_b32 v{17 + 2 * i}, 0xffff0000, v6")
            a(f"v_lshlrev_b32 v6, 16, v{80 + i}")
            a(f"v_and_b32 v7, 0xffff0000, v{80 + i}")
            a(f"v_add_f32 v{16 + 2 * i}, v{16 + 2 * i}, v6")
            a(f"v_add_f32 v{17 + 2 * i}, v{17 + 2 * i}, v7")
            a(f"v_cvt_pk_bf16_f32 v{80 + i}, v{16 + 2 * i}, v{17 + 2 * i}")
        if do_ln:
            a(f"s_add_u32 s52, s51, {H_OFF}")
            rs, so = "s[28:31]", "s52"
        else:
            rs, so = "s[24:27]", "s51"
        a(f"buffer_store_dwordx2 v[80:81], v5, {rs}, {so} offen")
        a(f"buffer_store_dwordx2 v[82:83], v5, {rs}, {so} offen offset:16")
        a("s_mov_b64 exec, 0xff")
        a(f"buffer_store_dwordx2 v[84:85], v5, {rs}, {so} offen offset:1024")
        a(f"buffer_store_dwordx2 v[86:87], v5, {rs}, {so} offen offset:1040")
        a("s_mov_b64 exec, -1")
        if do_ln:
            for i in range(8):
                a(f"v_lshlrev_b32 v{20 + 2 * i}, 16, v{80 + i}")
                a(f"v_and_b32 v{21 + 2 * i}, 0xffff0000, v{80 + i}")
            a("v_add_f32 v36, v20, v21")
            for i in range(22, 36):
                a(f"v_add_f32 v36, v36, v{i}")
            wave_sum(a, 36, 37, 38)
            a(f"v_mul_f32 v36, {1.0 / 576.0!r}, v36")
            a("v_mov_b32 v39, 0")
            for i in range(20, 28):
                a(f"v_sub_f32 v37, v{i}, v36")
                a("v_fmac_f32 v39, v37, v37")
            a("s_mov_b64 exec, 0xff")
            for i in range(28, 36):
                a(f"v_sub_f32 v37, v{i}, v36")
                a("v_fmac_f32 v39, v37, v37")
            a("s_mov_b64 exec, -1")
            wave_sum(a, 39, 37, 38)
            a(f"v_mul_f32 v39, {1.0 / 576.0!r}, v39")
            round_bf16(a, 39, 37)
            a("v_add_f32 v39, 0x3727c5ac, v39")
            round_bf16(a, 39, 37)
            a("v_sqrt_f32 v39, v39")
            a("s_nop 0")
            round_bf16(a, 39, 37)
            a("v_rcp_f32 v39, v39")
            round_bf16(a, 36, 37)
            for i in range(8):
                a(f"v_sub_f32 v{20 + 2 * i}, v{20 + 2 * i}, v36")
                a(f"v_sub_f32 v{21 + 2 * i}, v{21 + 2 * i}, v36")
                a(f"v_cvt_pk_bf16_f32 v37, v{20 + 2 * i}, v{21 + 2 * i}")
                a(f"v_lshlrev_b32 v{20 + 2 * i}, 16, v37")
                a(f"v_and_b32 v{21 + 2 * i}, 0xffff0000, v37")
                a(f"v_mul_f32 v{20 + 2 * i}, v{20 + 2 * i}, v39")
                a(f"v_mul_f32 v{21 + 2 * i}, v{21 + 2 * i}, v39")
                a(f"v_cvt_pk_bf16_f32 v{8 + i}, v{20 + 2 * i}, v{21 + 2 * i}")
            a("v_lshrrev_b32 v37, 2, v2")
            a("v_lshlrev_b32 v37, 17, v37")
            a("v_and_b32 v38, 3, v2")
            a("v_lshl_add_u32 v37, v38, 4, v37")
            a("s_lshl_b32 s50, s49, 6")
            a(f"s_add_u32 s50, s50, {HN_OFF}")
            a("buffer_store_dwordx4 v[8:11], v37, s[28:31], s50 offen")
            a(f"s_add_u32 s50, s50, {16 * 131072}")
            a("s_mov_b64 exec, 0xff")
            a("buffer_store_dwordx4 v[12:15], v37, s[28:31], s50 offen")
            a("s_mov_b64 exec, -1")
        a.label(f"L_{name}_end")
        a("s_endpgm")
        return name, "grid=(256,1,1) block=(512,1,1) lds=0", 88
    return g


gen_k4 = gen_reduce("k4_ln2_kernel", True)
gen_k7 = gen_reduce("k7_out_kernel", False)


def gen_k5(a):
    name = "k5_ffn1_kernel"
    kernel_header(a, name)
    a("s_cmp_ge_u32 s2, 256")
    a(f"s_cbranch_scc1 L_{name}_end")
    a(f"s_load_dwordx4 s[8:11], s[0:1], {KA_WG}")
    a(f"s_load_dwordx2 s[12:13], s[0:1], {KA_WS}")
    a("v_lshrrev_b32 v1, 6, v0")
    a("v_and_b32 v2, 63, v0")
    a("s_nop 0")
    a("v_readfirstlane_b32 s32, v1")
    a("s_and_b32 s35, s2, 7")
    a("s_lshl_b32 s35, s35, 2")
    a("s_lshr_b32 s48, s2, 3")
    a("s_and_b32 s48, s48, 3")
    a("s_add_u32 s35, s35, s48")
    a("s_lshr_b32 s34, s2, 5")
    a("s_and_b32 s36, s32, 3")
    a("s_lshr_b32 s37, s32, 2")
    a("s_waitcnt lgkmcnt(0)")
    stamp(a, 0)
    a("s_cmp_eq_u32 s37, 1")
    a("s_cselect_b32 s8, s10, s8")
    a("s_cselect_b32 s9, s11, s9")
    make_srd(a, 20, "s8", "s9", 576 * 9216)
    a(f"s_mov_b32 s47, {576 * 9216}")
    make_srd(a, 16, "s12", "s13", WS_BYTES)
    a(f"s_mov_b32 s46, {WS_BYTES}")
    make_srd(a, 28, "s12", "s13", WS_BYTES)
    TS, WS_ = 16384, 18432
    WBASE = 4 * TS
    vA0, vW0, vW1, vW2, vT, vWa, vWb = 64, 66, 67, 68, 69, 70, 71
    a("v_lshrrev_b32 v20, 2, v2")
    a("s_lshl_b32 s48, s32, 5")
    a("v_add_u32 v20, s48, v20")
    a("v_lshlrev_b32 v20, 6, v20")
    a("v_lshrrev_b32 v21, 4, v2")
    a("v_sub_u32 v21, 0, v21")
    a("v_and_b32 v21, 3, v21")
    a("v_and_b32 v22, 3, v2")
    a("v_xor_b32 v21, v21, v22")
    a(f"v_lshl_add_u32 {vr(vA0)}, v21, 4, v20")
    a("s_lshl_b32 s38, s34, 14")
    a(f"s_add_u32 s38, s38, {HN_OFF}")
    for j, vd in ((0, vW0), (1, vW1), (2, vW2)):
        a(f"v_add_u32 v20, {64 * j}, v2")
        div18(a, 21, 22, 20, 23)
        a("v_and_b32 v23, 1, v22")
        a("v_bfe_u32 v24, v22, 1, 1")
        a("v_lshl_or_b32 v23, v23, 1, v24")
        a("v_and_b32 v24, 28, v22")
        a("v_or_b32 v23, v23, v24")
        a("v_cmp_gt_u32 vcc, 16, v22")
        a("s_nop 1")
        a("v_cndmask_b32 v22, v22, v23, vcc")
        a("s_lshl_b32 s48, s36, 3")
        a("v_add_u32 v21, s48, v21")
        a("v_mul_u32_u24 v21, 9216, v21")
        a(f"v_lshl_add_u32 {vr(vd)}, v22, 4, v21")
    a("s_mul_i32 s39, s35, 288")
    a("s_lshl_b32 s40, s32, 11")
    a("s_mul_i32 s41, s32, 2304")
    a(f"s_add_u32 s41, s41, {WBASE}")
    a("v_and_b32 v62, 15, v2")
    a("v_lshrrev_b32 v61, 4, v2")
    a("v_lshrrev_b32 v20, 2, v62")
    a("v_sub_u32 v20, 0, v20")
    a("v_and_b32 v20, 3, v20")
    a("v_xor_b32 v20, v20, v61")
    a("s_lshl_b32 s48, s32, 5")
    a("v_add_u32 v21, s48, v62")
    a("v_lshlrev_b32 v21, 6, v21")
    a(f"v_lshl_add_u32 {vr(vT)}, v20, 4, v21")
    a("v_lshrrev_b32 v20, 5, v2")
    a("v_lshlrev_b32 v20, 4, v20")
    a("v_bfe_u32 v21, v2, 2, 3")
    a("v_add_u32 v20, v20, v21")
    a("v_mul_u32_u24 v20, 288, v20")
    a(f"v_add_u32 v20, {WBASE}, v20")
    a("v_and_b32 v21, 3, v2")
    a(f"v_lshl_add_u32 {vr(vWa)}, v21, 3, v20")
    a("v_and_b32 v22, 1, v2")
    a("v_lshl_add_u32 v20, v22, 4, v20")
    a("v_bfe_u32 v22, v2, 1, 1")
    a(f"v_lshl_add_u32 {vr(vWb)}, v22, 3, v20")
    a("s_mov_b32 s44, 0")
    c = GemmCfg()
    c.TN, c.TM, c.R, c.AHEAD, c.NSTEPS = 18, 2, 6, 5, 18
    c.NSW, c.WSLOT, c.NST, c.TSLOT, c.TPER = 4, WS_, 4, TS, 1
    c.TPOS = 0
    c.DMA_EVERY = 2
    c.swap = False
    c.acc = lambda nt, tt: 112 + (nt * 2 + tt) * 4
    c.tfrag = lambda buf, tt: 96 + buf * 8 + tt * 4
    c.wfrag = lambda r_: 72 + r_ * 4

    def wread(nt):
        pl, u = nt // 9, nt % 9
        r_ = vWb if u == 8 else vWa
        return [(r_, pl * 9216 + u * 32), (r_, pl * 9216 + u * 32 + 8 * 288)]
    c.wread = wread
    c.wadv = lambda nt: [vWa] if nt == 16 else ([vWb] if nt == 17 else [])
    c.tread = lambda q, tt: (vT, tt * 1024)
    c.tadv = lambda q: [vT]
    c.s_dA, c.s_dB, c.s_sl, c.s_dmaW, c.s_cnt, c.s_slotW = 50, 51, 52, 53, 45, 54
    c.s_dT, c.s_slT, c.s_dmaT, c.s_slotT = 55, 56, 57, 58

    def dmaW():
        def d0():
            a("s_add_u32 m0, s53, s41")
            a("s_nop 0")
            a(f"buffer_load_dwordx4 {vr(vW0)}, s[20:23], s39 offen lds")

        def d1():
            a("s_add_u32 m0, m0, 1024")
            a("s_nop 0")
            a(f"buffer_load_dwordx4 {vr(vW1)}, s[20:23], s39 offen lds")

        def d2():
            a("s_add_u32 m0, m0, 1024")
            a("s_mov_b64 exec, 0xffff")
            a(f"buffer_load_dwordx4 {vr(vW2)}, s[20:23], s39 offen lds")
            a("s_mov_b64 exec, -1")
        return [d0, d1, d2]
    c.dmaW = dmaW

    def dmaT(h):
        def d0():
            a("s_add_u32 m0, s57, s40")
            a("s_nop 0")
            a(f"buffer_load_dwordx4 {vr(vA0)}, s[16:19], s38 offen lds")

        def d1():
            a(f"buffer_load_dwordx4 {vr(vA0)}, s[16:19], s38 offen offset:1024 lds")
        return [d0, d1]
    c.dmaT = dmaT

    def advW():
        a(f"s_add_u32 s39, s39, {32 * 9216}")
    c.advW = advW

    def advT():
        a("s_add_u32 s38, s38, 131072")
        a("s_add_u32 s44, s44, 1")
        a(f"s_cmp_lt_u32 s44, {c.NSTEPS}")
        a("s_cselect_b32 s18, s46, 0")
        a("s_cselect_b32 s22, s47, 0")
    c.advT = advT
    gemm_prologue_and_loop(a, c, name)
    a(f"s_mov_b32 s48, {-math.log2(math.e)!r}")

    def act4(g0, u0):
        for r_ in range(4):
            a(f"v_mul_f32 v{20 + r_}, s48, v{g0 + r_}")
        for r_ in range(4):
            a(f"v_exp_f32 v{20 + r_}, v{20 + r_}")
        for r_ in range(4):
            a(f"v_add_f32 v{20 + r_}, 1.0, v{20 + r_}")
        for r_ in range(4):
            a(f"v_rcp_f32 v{20 + r_}, v{20 + r_}")
        for r_ in range(4):
            a(f"v_mul_f32 v{g0 + r_}, v{g0 + r_}, v{u0 + r_}")
        for r_ in range(4):
            a(f"v_mul_f32 v{g0 + r_}, v{g0 + r_}, v{20 + r_}")
    a("s_lshl_b32 s49, s34, 8")
    a("s_lshl_b32 s50, s32, 5")
    a("s_add_u32 s49, s49, s50")
    a("s_lshl_b32 s49, s49, 7")
    a(f"s_add_u32 s49, s49, {ACT_OFF}")
    a("s_mul_i32 s50, s35, 144")
    a("v_lshlrev_b32 v3, 7, v62")
    a("v_lshrrev_b32 v4, 1, v61")
    a("v_and_b32 v5, 1, v61")
    a("v_lshl_add_u32 v6, v5, 4, v3")
    a("v_lshl_add_u32 v7, v61, 3, v3")
    k = 0
    for P_ in range(4):
        a(f"s_add_u32 s51, s50, {32 * P_}")
        a("v_lshl_add_u32 v8, v4, 4, s51")
        a("v_lshrrev_b32 v9, 6, v8")
        a("v_lshlrev_b32 v9, 18, v9")
        a("v_and_b32 v8, 63, v8")
        a("v_lshl_add_u32 v9, v8, 1, v9")
        a(f"v_add_u32 v{10 + P_}, v9, v6")
        for tt in range(2):
            t = 32 + (k % 4) * 4
            k += 1
            for T_ in range(2):
                g0, u0 = c.acc(2 * P_ + T_, tt), c.acc(9 + 2 * P_ + T_, tt)
                act4(g0, u0)
                a(f"v_cvt_pk_bf16_f32 v{t + 2 * T_}, v{g0}, v{g0 + 1}")
                a(f"v_cvt_pk_bf16_f32 v{t + 2 * T_ + 1}, v{g0 + 2}, v{g0 + 3}")
            a(f"buffer_store_dwordx4 v[{t}:{t + 3}], v{10 + P_}, s[28:31], s49 offen offset:{tt * 2048}")
    a("s_add_u32 s51, s50, 128")
    a("s_lshr_b32 s52, s51, 6")
    a("s_lshl_b32 s52, s52, 18")
    a("s_and_b32 s51, s51, 63")
    a("s_lshl_b32 s51, s51, 1")
    a("s_add_u32 s52, s52, s51")
    a("s_add_u32 s49, s49, s52")
    for tt in range(2):
        t = 32 + (k % 4) * 4
        k += 1
        g0, u0 = c.acc(8, tt), c.acc(17, tt)
        act4(g0, u0)
        a(f"v_cvt_pk_bf16_f32 v{t}, v{g0}, v{g0 + 1}")
        a(f"v_cvt_pk_bf16_f32 v{t + 1}, v{g0 + 2}, v{g0 + 3}")
        a(f"buffer_store_dwordx2 v[{t}:{t + 1}], v7, s[28:31], s49 offen offset:{tt * 2048}")
    if STAMPS:
        a("s_waitcnt vmcnt(0)")
        stamp(a, 3)
        stamp(a, 4); stamp(a, 5)
        stamp_flush(a, 8, 1, 2, 32, s_t=70, kid=4)
    a.label(f"L_{name}_end")
    a("s_endpgm")
    return name, "grid=(256,1,1) block=(512,1,1) lds=139264", 256
```

```python
import sys
from gen_common import *
from gen_gemm import *
from gen_attn import *
from gen_gemm2 import *

HEADER = open("sequential_preLN__compressed_kv_cla__swiglu_ffn__prompt.s.ref").read().split("; Override launch")[0]

def build(gens, out):
    a = Asm()
    infos = []
    for g in gens:
        infos.append(g(a))
    s = HEADER
    for name, launch, vg in infos:
        s += f"; @launch kernel={name} {launch}\n"
    s += '.amdgcn_target "amdgcn-amd-amdhsa--gfx950"\n.text\n'
    s += a.text()
    s += '.section .rodata,"a"\n'
    seen = set()
    for name, launch, vg in infos:
        if name in seen: continue
        seen.add(name)
        s += ".p2align 6\n" + kernel_desc(name, vg)
    open(out, "w").write(s)

if __name__ == "__main__":
    gens = [gen_k1, gen_k2, gen_k3, gen_k4, gen_k5, gen_k6, gen_k7]
    if os.environ.get("ONLY"):
        gens = [gens[int(i) - 1] for i in os.environ["ONLY"].split(",")]
    build(gens, sys.argv[1] if len(sys.argv) > 1 else "out.s")
```

```python
from gen_common import *
import math

QS_OFF = 100 * MB
SCALE_C = (128 ** -0.5) * math.log2(math.e)
NEGBIG = 0xf149f2ca
THR = 65536.0
FLOOR0 = 0xe0ad78ec


class Vm:
    def __init__(self):
        self.q = []

    def issue(self, tag):
        self.q.append(tag)

    def need(self, a, tags):
        idx = -1
        for i, t in enumerate(self.q):
            if t in tags:
                idx = i
        if idx < 0:
            return
        n = len(self.q) - 1 - idx
        assert n <= 63
        a(f"s_waitcnt vmcnt({n})")
        self.q = self.q[idx + 1:]


def gen_k2(a):
    name = "k2_attn_kernel"
    kernel_header(a, name)
    O = 192
    S = 160
    Q = 128
    NEGM = 112
    P = 96
    FR = 64
    PT = 48
    vK = 32
    vV = 40
    vL = 44
    vFloor = 45
    vLim = 46
    vLane16 = 27
    a("s_cmp_ge_u32 s2, 256")
    a("s_cbranch_scc1 L_k2_end")
    a(f"s_load_dwordx2 s[4:5], s[0:1], {KA_WQ}")
    a(f"s_load_dwordx2 s[6:7], s[0:1], {KA_WS}")
    a(f"s_load_dwordx2 s[8:9], s[0:1], {KA_WO}")
    a(f"s_load_dwordx4 s[12:15], s[0:1], {KA_WG}")
    a(f"s_load_dwordx2 s[10:11], s[0:1], {KA_WD}")
    a("v_lshrrev_b32 v1, 6, v0")
    a("v_and_b32 v2, 63, v0")
    a("s_nop 0")
    a("v_readfirstlane_b32 s32, v1")
    a("s_and_b32 s33, s2, 7")
    a("s_lshl_b32 s33, s33, 2")
    a("s_lshr_b32 s48, s2, 3")
    a("s_and_b32 s48, s48, 3")
    a("s_add_u32 s33, s33, s48")
    a("s_lshr_b32 s34, s2, 5")
    a("s_and_b32 s35, s32, 3")
    a("s_lshr_b32 s36, s32, 2")
    a(f"v_lshlrev_b32 {vr(vLane16)}, 4, v2")
    a("s_waitcnt lgkmcnt(0)")
    stamp(a, 0)
    a("s_lshl_b32 s48, s33, 8")
    a("s_add_u32 s4, s4, s48")
    a("s_addc_u32 s5, s5, 0")
    a(f"s_sub_u32 s49, {576 * 8192}, s48")
    make_srd(a, 16, "s4", "s5", "s49")
    make_srd(a, 20, "s6", "s7", WS_BYTES)
    make_srd(a, 24, "s6", "s7", WS_BYTES)
    make_srd(a, 28, "s6", "s7", WS_BYTES)
    a("s_sub_u32 s48, 15, s34")
    a("s_cmp_eq_u32 s36, 1")
    a("s_cselect_b32 s48, s48, s34")
    a("s_lshl_b32 s48, s48, 2")
    a("s_add_u32 s48, s48, s35")
    a("s_mul_i32 s50, s48, 36864")
    a(f"s_add_u32 s50, s50, {XN_OFF}")
    vWq0, vWq1 = 24, 25
    a("v_lshrrev_b32 v3, 4, v2")
    a("v_bfe_u32 v4, v2, 2, 2")
    a("v_xor_b32 v4, v4, v3")
    a("v_lshlrev_b32 v4, 6, v4")
    a("v_and_b32 v5, 3, v2")
    a("v_lshl_add_u32 v4, v5, 4, v4")
    a("s_lshl_b32 s48, s32, 3")
    a("v_add_u32 v3, s48, v3")
    a(f"v_lshl_add_u32 {vr(vWq0)}, v3, 13, v4")
    a(f"v_add_u32 {vr(vWq1)}, {4 * 8192}, {vr(vWq0)}")
    a("s_lshl_b32 s51, s32, 11")
    a("s_add_u32 s51, s51, 65536")
    vm = Vm()
    XF = 48
    WR = 32
    vWa = 28

    def dma_wq(st):
        a(f"s_add_u32 m0, s51, {(st % 6) * 16384}")
        a(f"s_mov_b32 s52, {st * 64 * 8192}")
        a(f"buffer_load_dwordx4 {vr(vWq0)}, s[16:19], s52 offen lds")
        vm.issue(("W", st))
        a("s_add_u32 m0, m0, 1024")
        a("s_nop 0")
        a(f"buffer_load_dwordx4 {vr(vWq1)}, s[16:19], s52 offen lds")
        vm.issue(("W", st))

    def ld_x(s):
        if s % 4 == 0 and s > 0:
            a("s_add_u32 s50, s50, 4096")
        a(f"buffer_load_dwordx4 {vr(XF + 4 * s, 4)}, {vr(vLane16)}, s[20:23], s50 offen offset:{(s % 4) * 1024}")
        vm.issue(("X", s))

    LEAD = 4
    for st in range(LEAD):
        dma_wq(st)
        for s_ in range(4 * st, 4 * st + 4):
            ld_x(s_)
    a("s_lshl_b32 s48, s33, 19")
    a("s_bfe_u32 s59, s32, 0x10001")
    a("s_and_b32 s49, s32, 1")
    a("s_lshl_b32 s49, s49, 12")
    a("s_add_u32 s40, s48, s49")
    a(f"s_add_u32 s58, s40, {KP_OFF}")
    a("s_xor_b32 s49, s59, 1")
    a("s_lshl_b32 s49, s49, 13")
    a("s_add_u32 s40, s58, s49")
    a("s_lshl_b32 s49, s35, 12")
    a("s_add_u32 s41, s48, s49")
    a(f"s_add_u32 s41, s41, {VP_OFF}")
    a("s_lshl_b32 s42, s32, 12")
    a("s_add_u32 s45, s42, 32768")
    a("s_lshl_b32 s37, s34, 1")
    a("s_add_u32 s37, s37, 2")

    def dma_k(sK, track=None):
        a("s_mov_b32 m0, s42")
        a("s_xor_b32 s42, s42, 65536")
        for j in range(4):
            a(f"buffer_load_dwordx4 {vr(vLane16)}, s[24:27], {sK} offen offset:{j * 1024} lds")
            if track: track.issue(("KV", 0))

    def dma_v(sV, track=None):
        a("s_mov_b32 m0, s45")
        a("s_xor_b32 s45, s45, 65536")
        for j in range(4):
            a(f"buffer_load_dwordx4 {vr(vLane16)}, s[24:27], {sV} offen offset:{j * 1024} lds")
            if track: track.issue(("KV", 0))

    a("v_lshrrev_b32 v3, 5, v2")
    a("v_bfe_u32 v4, v2, 2, 2")
    a("v_lshl_add_u32 v3, v3, 3, v4")
    a("v_lshlrev_b32 v3, 8, v3")
    a("v_bfe_u32 v5, v2, 4, 1")
    a("v_lshl_add_u32 v3, v5, 5, v3")
    a("v_and_b32 v5, 3, v2")
    a("v_lshl_add_u32 v3, v5, 3, v3")
    a("v_add_u32 v3, 65536, v3")
    for dt in range(4):
        a(f"v_xor_b32 v5, {dt}, v4")
        a(f"v_lshl_add_u32 {vr(vWa + dt)}, v5, 6, v3")
    for i in range(64):
        a(f"v_mov_b32 {vr(O + i)}, 0")
    lg = Lgkm()
    seq = [(st, s, dt) for st in range(9) for s in range(4) for dt in range(4)]
    AH = 3

    def rd_wq(idx):
        st, s, dt = seq[idx]
        ring = idx % 4
        for i2 in range(2):
            a(f"ds_read_b64_tr_b16 {vr(WR + 4 * ring + 2 * i2, 2)}, {vr(vWa + dt)} offset:{(16 * s + 4 * i2) * 256}")
            lg.issue(("W", ring))
        if s == 3:
            d = 16384 if (st % 6) != 5 else -5 * 16384
            a(f"v_add_u32 {vr(vWa + dt)}, {d & 0xffffffff}, {vr(vWa + dt)}")

    vm.need(a, [("W", 0)])
    a("s_barrier")
    for i in range(AH):
        rd_wq(i)
    for idx, (st, s, dt) in enumerate(seq):
        if s == 0 and dt == 0:
            if st + 1 < 9:
                vm.need(a, [("W", st + 1)])
            a("s_barrier")
            if st + LEAD < 9:
                dma_wq(st + LEAD)
                for s2_ in range(4 * (st + LEAD), 4 * (st + LEAD) + 4):
                    ld_x(s2_)
            if st + LEAD == 9:
                dma_k("s58", vm)
                dma_v("s41", vm)
        if dt == 0:
            vm.need(a, [("X", 4 * st + s)])
        if idx + AH < len(seq):
            rd_wq(idx + AH)
        lg.need(a, [("W", idx % 4)])
        a(f"v_mfma_f32_32x32x16_bf16 {vr(O + 16 * dt, 16)}, {vr(WR + 4 * (idx % 4), 4)}, {vr(XF + 4 * (4 * st + s), 4)}, {vr(O + 16 * dt, 16)}")
    a("s_nop 7")
    a("s_nop 7")
    stamp(a, 1)
    a(f"s_mov_b32 s48, {SCALE_C!r}")
    for i in range(64):
        a(f"v_mul_f32 {vr(O + i)}, s48, {vr(O + i)}")
    for i in range(32):
        a(f"v_cvt_pk_bf16_f32 {vr(Q + i)}, {vr(O + 2 * i)}, {vr(O + 2 * i + 1)}")
    a("s_barrier")
    a("s_lshl_b32 s48, s35, 13")
    a("s_add_u32 s48, s48, 131072")
    a(f"v_add_u32 v22, s48, {vr(vLane16)}")
    a("s_cmp_eq_u32 s36, 0")
    a("s_cbranch_scc1 L_k2_qw2")
    for i in range(8):
        a(f"ds_write_b128 v22, {vr(Q + 4 * i, 4)} offset:{i * 1024}")
    a.label("L_k2_qw2")
    a("v_and_b32 v3, 31, v2")
    a("v_lshrrev_b32 v4, 5, v2")
    a("s_lshl_b32 s48, s36, 14")
    a("v_and_b32 v5, 15, v3")
    a("v_xor_b32 v5, v5, v4")
    a("v_lshlrev_b32 v6, 8, v3")
    a("v_add_u32 v6, s48, v6")
    for s_ in range(8):
        a(f"v_xor_b32 v7, {2 * s_}, v5")
        a(f"v_lshl_add_u32 {vr(vK + s_)}, v7, 4, v6")
    a("v_bfe_u32 v5, v3, 1, 3")
    a("v_xor_b32 v5, v5, v4")
    a("v_lshlrev_b32 v6, 7, v3")
    a("s_add_u32 s48, s48, 32768")
    a("v_add_u32 v6, s48, v6")
    for ks in range(4):
        a(f"v_xor_b32 v7, {2 * ks}, v5")
        a(f"v_lshl_add_u32 {vr(vV + ks)}, v7, 4, v6")
    a("v_lshlrev_b32 v6, 2, v4")
    a(f"v_sub_u32 {vr(vLim)}, v3, v6")
    a("s_sub_u32 s56, 15, s34")
    a("s_lshl_b32 s56, s56, 7")
    a("s_lshl_b32 s48, s35, 5")
    a("s_add_u32 s56, s56, s48")
    a("s_lshl_b32 s39, s34, 7")
    a("s_add_u32 s39, s39, s48")
    a("s_sub_u32 s53, s37, 1")
    a("s_cmp_eq_u32 s36, 1")
    a("s_cselect_b32 s39, s56, s39")
    a("s_cselect_b32 s53, 100, s53")
    make_srd(a, 16, "s8", "s9", 4096 * 576 * 2)
    a("s_lshl_b32 s46, s2, 3")
    a("s_add_u32 s46, s46, s32")
    a(f"s_mul_i32 s46, s46, {11 * 128}")
    a("s_mov_b32 s47, 8")
    a("v_lshlrev_b32 v20, 7, v2")

    def dstamp(k):
        if not STAMPS:
            return
        a("s_waitcnt lgkmcnt(0)")
        a("s_memtime s[70:71]")
        a("s_waitcnt lgkmcnt(0)")
        a(f"s_mov_b32 s{72 + 3 + k}, s70")
    SA, SB = S, S + 16
    PA, PB = P, P + 8
    PSA, PSB = 8, 9

    def sm_part(Sx, Px, ps, part):
        out = []
        b = 8 * part
        for k in range(4):
            t0, t1 = PT + (2 * k) % 8, PT + (2 * k + 1) % 8
            out.append(f"v_exp_f32 {vr(t0)}, {vr(Sx + b + 2 * k)}")
            out.append(f"v_exp_f32 {vr(t1)}, {vr(Sx + b + 2 * k + 1)}")
        for k in range(4):
            t0, t1 = PT + (2 * k) % 8, PT + (2 * k + 1) % 8
            if part == 0 and k == 0:
                out.append(f"v_add_f32 {vr(ps)}, {vr(t0)}, {vr(t1)}")
            else:
                out.append(f"v_add_f32 {vr(ps)}, {vr(ps)}, {vr(t0)}")
                out.append(f"v_add_f32 {vr(ps)}, {vr(ps)}, {vr(t1)}")
            out.append(f"v_cvt_pk_bf16_f32 {vr(Px + 4 * part + k)}, {vr(t0)}, {vr(t1)}")
        ex = [o for o in out if o.startswith("v_exp")]
        co = [o for o in out if not o.startswith("v_exp")]
        res = ex[:3]
        ex = ex[3:]
        while ex or co:
            if ex:
                res.append(ex.pop(0))
            take = 2 if len(co) > 2 * len(ex) else 1
            for _ in range(take):
                if co:
                    res.append(co.pop(0))
        return res

    ool = Asm()

    def mask(Sx, sT, t, tag):
        a(f"s_lshl_b32 s48, {sT}, 6")
        a("s_sub_i32 s48, s39, s48")
        a(f"s_cmp_lt_i32 s48, {31 + 32 * t}")
        a(f"s_cbranch_scc1 L_k2_{tag}_mask")
        a.label(f"L_k2_{tag}_nomask")
        o = ool
        o.label(f"L_k2_{tag}_mask")
        o(f"s_sub_i32 s48, s48, {32 * t}")
        o(f"v_add_u32 v11, s48, {vr(vLim)}")
        o(f"v_mov_b32 v10, {NEGBIG}")
        o("s_nop 7")
        for i in range(18):
            if i < 16:
                cst = 8 * (i // 4) + (i % 4)
                o(f"v_cmp_le_i32 s[{60 + 2 * (i % 3)}:{61 + 2 * (i % 3)}], {cst}, v11")
            else:
                o("s_nop 0")
            if i >= 2:
                j = (i - 2) % 3
                o(f"v_cndmask_b32 {vr(Sx + i - 2)}, v10, {vr(Sx + i - 2)}, s[{60 + 2 * j}:{61 + 2 * j}]")
        o(f"s_branch L_k2_{tag}_nomask")

    def tile_of(dst, src, add):
        a(f"s_add_u32 {dst}, {src}, {add}")
        a(f"s_lshl_b32 s49, {dst}, 1")
        a("s_sub_u32 s49, s49, s37")
        a("s_add_u32 s49, s49, s36")
        a(f"s_cmp_lt_u32 {dst}, s37")
        a(f"s_cselect_b32 {dst}, {dst}, s49")

    def chk(Sx, Sy, Px, ps, tag):
        a(f"v_cmp_nge_f32 vcc, s57, {vr(ps)}")
        a(f"s_cbranch_vccnz L_k2_{tag}_rare")
        a.label(f"L_k2_{tag}_go")
        a(f"v_add_f32 {vr(vL)}, {vr(vL)}, {vr(ps)}")
        o = ool
        o.label(f"L_k2_{tag}_rare")
        o(f"s_mov_b32 s57, {THR!r}")
        o("s_nop 7")
        o("s_nop 3")
        o(f"v_max3_f32 v10, {vr(Sx)}, {vr(Sx + 1)}, {vr(vFloor)}")
        for i in range(2, 16, 2):
            o(f"v_max3_f32 v10, v10, {vr(Sx + i)}, {vr(Sx + i + 1)}")
        o("v_mov_b32 v11, v10")
        o("s_nop 1")
        o("v_permlane32_swap_b32 v10, v11")
        o("s_nop 1")
        o("v_max_f32 v10, v10, v11")
        o(f"v_mov_b32 {vr(vFloor)}, 0")
        o("v_max_f32 v11, 0, v10")
        o("v_exp_f32 v11, -v11")
        for i in range(16):
            o(f"v_sub_f32 {vr(Sx + i)}, {vr(Sx + i)}, v10")
        for i in range(16):
            o(f"v_sub_f32 {vr(Sy + i)}, {vr(Sy + i)}, v10")
        for i in range(16):
            o(f"v_sub_f32 {vr(NEGM + i)}, {vr(NEGM + i)}, v10")
        for i in range(64):
            o(f"v_mul_f32 {vr(O + i)}, {vr(O + i)}, v11")
        o(f"v_mul_f32 {vr(vL)}, {vr(vL)}, v11")
        for part in range(2):
            for x in sm_part(Sx, Px, ps, part):
                o(x)
            o("s_nop 0")
        o(f"s_branch L_k2_{tag}_go")

    def togK_l():
        return [f"v_xor_b32 {vr(vK + i)}, 0x10000, {vr(vK + i)}" for i in range(8)]

    def togV_l():
        return [f"v_xor_b32 {vr(vV + i)}, 0x10000, {vr(vV + i)}" for i in range(4)]

    def rd(n, lg):
        seg, i = (n % 32) // 8, n % 8
        dst = vr(FR + 4 * (n % 8), 4)
        if os.environ.get("A_NOLDS"):
            return
        if seg in (0, 2):
            a(f"ds_read_b128 {dst}, {vr(vK + i)} offset:{(seg // 2) * 8192}")
        else:
            ks, dt = 2 * (seg // 2) + i // 4, i % 4
            a(f"ds_read_b128 {dst}, {vr(vV + ks)} offset:{dt * 4096}")
        lg.issue(("F", n % 8))

    def mfma(n):
        seg, i = n // 8, n % 8
        fr = vr(FR + 4 * (n % 8), 4)
        if seg in (0, 2):
            Sx = SB if seg == 0 else SA
            c_ = vr(NEGM, 16) if i == 0 else vr(Sx, 16)
            a(f"v_mfma_f32_32x32x16_bf16 {vr(Sx, 16)}, {fr}, {vr(Q + 4 * i, 4)}, {c_}")
        else:
            dt = i % 4
            Px = PA if seg == 1 else PB
            a(f"v_mfma_f32_32x32x16_bf16 {vr(O + 16 * dt, 16)}, {fr}, {vr(Px + 4 * (i // 4), 4)}, {vr(O + 16 * dt, 16)}")

    def spread(lst, positions):
        d = {p: [] for p in positions}
        k = len(lst)
        m = len(positions)
        idx = 0
        for j, p in enumerate(positions):
            cnt = k // m + (1 if j < k % m else 0)
            d[p] = lst[idx:idx + cnt]
            idx += cnt
        return d

    def dma_list(kind, sreg):
        m0s = "s42" if kind == "K" else "s45"

        def first():
            a(f"s_mov_b32 m0, {m0s}")
            a(f"s_xor_b32 {m0s}, {m0s}, 65536")
            a(f"buffer_load_dwordx4 {vr(vLane16)}, s[24:27], {sreg} offen lds")
        fs = [first]
        for j in range(1, 4):
            fs.append(lambda j=j: a(f"buffer_load_dwordx4 {vr(vLane16)}, s[24:27], {sreg} offen offset:{j * 1024} lds"))
        return fs

    def pf():
        a("s_mov_b64 exec, 0x7ff")
        a("buffer_load_dword v21, v20, s[16:19], s46 offen")
        a("s_mov_b64 exec, -1")
        a("s_sub_u32 s47, s47, 1")
        a(f"s_add_u32 s46, s46, {2048 * 11 * 128}")
        a("s_bitcmp1_b32 s47, 0")
        a(f"s_cbranch_scc0 L_k2_pfrot")
        a.label("L_k2_pfdone")
        o = ool
        o.label("L_k2_pfrot")
        o(f"s_sub_u32 s46, s46, {2 * 2048 * 11 * 128}")
        o("s_mov_b32 s16, s12")
        o("s_and_b32 s17, s13, 0xffff")
        o("s_cmp_gt_i32 s47, 0")
        o(f"s_cselect_b32 s18, {576 * 4608 * 2}, 0")
        o("s_mov_b64 s[12:13], s[14:15]")
        o("s_mov_b64 s[14:15], s[10:11]")
        o("s_branch L_k2_pfdone")

    def ctx_addr(a, sq):
        a("s_lshl_b32 s48, s33, 12")
        a(f"s_add_u32 s48, s48, {sq}")
        a("s_lshl_b32 s48, s48, 7")
        a(f"s_add_u32 s48, s48, {CTX_OFF}")
        a("v_and_b32 v3, 31, v2")
        a("v_lshrrev_b32 v4, 5, v2")
        a("v_lshlrev_b32 v3, 7, v3")
        a("v_lshl_add_u32 v3, v4, 4, v3")

    def dma_offsets():
        a("s_add_u32 s50, s38, s59")
        tile_of("s50", "s50", 2)
        a("s_lshl_b32 s50, s50, 14")
        a("s_add_u32 s50, s50, s40")
        tile_of("s51", "s38", 2)
        a("s_mov_b32 s43, s51")
        a("s_lshl_b32 s51, s51, 14")
        a("s_add_u32 s51, s51, s41")
        a("s_cmp_lt_i32 s38, 15")
        a(f"s_cselect_b32 s26, {WS_BYTES}, 0")

    DQ = int(os.environ.get("DQ", "2"))
    R0 = int(os.environ.get('R0', '26'))
    AHD = 8
    for i in range(64):
        a(f"v_mov_b32 {vr(O + i)}, 0")
    for i in range(16):
        a(f"v_mov_b32 {vr(NEGM + i)}, 0")
    for i in range(8):
        a(f"v_mov_b32 {vr(PB + i)}, 0")
    a(f"v_mov_b32 {vr(vL)}, 0")
    a(f"v_mov_b32 {vr(vFloor)}, {FLOOR0}")
    a("s_mov_b32 s57, -1.0")
    a("s_mov_b32 s38, -1")
    a("s_mov_b32 s55, 0")
    a("s_waitcnt vmcnt(0) lgkmcnt(0)")
    a("s_barrier")
    a("s_lshl_b32 s50, s59, 14")
    a("s_add_u32 s50, s50, s40")
    dma_k("s50")
    a("s_mov_b64 exec, 1")
    a("buffer_load_dword v21, v20, s[20:23], s40 offen")
    a("s_mov_b64 exec, -1")
    lg = Lgkm()
    for n in range(16, 24):
        rd(n, lg)
    dma_offsets()
    for n in range(16, 24):
        lg.need(a, [("F", n % 8)])
        mfma(n)
    for x in togK_l():
        a(x)
    mask(SA, "s55", 0, "p0")
    dstamp(0)

    def post4(a_):
        pass

    if os.environ.get("PRIO"):
        a(f"s_cmp_eq_u32 s36, {os.environ['PRIO']}")
        a("s_cbranch_scc0 L_k2_loop")
        a("s_setprio 1")
    a.label("L_k2_loop")
    lg = Lgkm()
    a("s_waitcnt vmcnt(1)")
    a("s_barrier")
    dl = dma_list("K", "s50") + dma_list("V", "s51")
    if os.environ.get("A_NODMA"):
        dl = []
    novalu = os.environ.get("A_NOVALU")
    valu = {}
    valu.update(spread(sm_part(SA, PA, PSA, 0), list(range(R0, 32))))
    valu.update(spread(sm_part(SA, PA, PSA, 1), list(range(0, 8))))
    valu.update(spread(["s_nop 1", "s_nop 1"] + sm_part(SB, PB, PSB, 0) + togK_l(), list(range(8, 16))))
    valu.update(spread(sm_part(SB, PB, PSB, 1) + togV_l(), list(range(16, 24))))
    valu.update({p: [] for p in range(24, R0)})
    if novalu:
        for k in valu:
            valu[k] = [x for x in valu[k] if x.startswith("v_xor")]
    order = list(range(R0, 32)) + list(range(0, R0))
    for n in range(32, R0 + AHD):
        rd(n, lg)
    for k, n in enumerate(order):
        nn = n + AHD if n >= R0 else n + AHD
        lg.need(a, [("F", n % 8)]) if n < R0 else None
        mfma(n)
        if n >= R0:
            rd(n + AHD, lg)
        elif n + AHD < 32:
            rd(n + AHD, lg)
        for x in valu[n]:
            a(x)
        if dl and k % DQ == 0:
            dl.pop(0)()
            if not dl:
                pf()
        if n == 31:
            a("s_cmp_eq_u32 s38, s53")
            a("s_cbranch_scc1 L_k2_fin_small")
            a.label("L_k2_fin_small_done")
            a("s_mov_b32 s54, s55")
            a("s_mov_b32 s55, s43")
            a("s_add_u32 s38, s38, 1")
            o = ool
            o.label("L_k2_fin_small")
            o(f"v_mov_b32 v10, {vr(vL)}")
            o(f"v_mov_b32 v11, {vr(vL)}")
            ctx_addr(o, "s52")
            o("v_permlane32_swap_b32 v10, v11")
            o("s_nop 1")
            o("v_add_f32 v10, v10, v11")
            o("v_rcp_f32 v10, v10")
            o(f"s_add_u32 s49, s48, {2048 * 128}")
            for c4 in range(8):
                for i in range(8):
                    o(f"v_mul_f32 {vr(O + 8 * c4 + i)}, {vr(O + 8 * c4 + i)}, v10")
                for i in range(4):
                    o(f"v_cvt_pk_bf16_f32 {vr(O + 8 * c4 + i)}, {vr(O + 8 * c4 + 2 * i)}, {vr(O + 8 * c4 + 2 * i + 1)}")
                o(f"buffer_store_dwordx4 {vr(O + 8 * c4, 4)}, v3, s[20:23], {'s48' if c4 < 4 else 's49'} offen offset:{(c4 % 4) * 32}")
            o("s_nop 1")
            for i in range(64):
                o(f"v_mov_b32 {vr(O + i)}, 0")
            o(f"v_mov_b32 {vr(vL)}, 0")
            o(f"v_mov_b32 {vr(vFloor)}, {FLOOR0}")
            o("s_mov_b32 s57, -1.0")
            o("s_branch L_k2_fin_small_done")
        if n == 7:
            mask(SB, "s54", 1, "m1")
            chk(SA, SB, PA, PSA, "a")
            a("s_cmp_eq_u32 s38, s53")
            a("s_cbranch_scc1 L_k2_sw1")
            a.label("L_k2_sw1_done")
            o = ool
            o.label("L_k2_sw1")
            for i in range(8):
                o(f"ds_read_b128 {vr(Q + 4 * i, 4)}, v22 offset:{i * 1024}")
            o("s_mov_b32 s52, s39")
            o("s_mov_b32 s39, s56")
            o("s_branch L_k2_sw1_done")
        if n == 23:
            mask(SA, "s55", 0, "m0")
            chk(SB, SA, PB, PSB, "b")
        if n == 24:
            dma_offsets()
    a("s_waitcnt lgkmcnt(0)")
    a("s_cmp_lt_i32 s38, 16")
    a("s_cbranch_scc1 L_k2_loop")
    for n in range(R0, 32):
        mfma(n)
    dstamp(1)
    a(f"v_mov_b32 v12, {vr(NEGM)}")
    a(f"v_mov_b32 v10, {vr(vL)}")
    a(f"v_mov_b32 v11, {vr(vL)}")
    a("s_nop 1")
    a("v_permlane32_swap_b32 v10, v11")
    a("s_nop 1")
    a("v_add_f32 v13, v10, v11")
    a("s_barrier")
    a("s_and_b32 s48, s42, 0x10000")
    a("s_and_b32 s49, s45, 0x18000")
    a("s_lshl_b32 s50, s35, 13")
    a("s_add_u32 s48, s48, s50")
    a("s_add_u32 s49, s49, s50")
    a("s_cmp_eq_u32 s36, 1")
    a("s_cselect_b32 s50, s48, s49")
    a("s_cselect_b32 s49, s49, s48")
    a(f"v_add_u32 v3, s49, {vr(vLane16)}")
    a(f"v_add_u32 v4, s50, {vr(vLane16)}")
    a("s_lshl_b32 s49, s32, 9")
    a("s_add_u32 s49, s49, 131072")
    a("s_xor_b32 s50, s49, 2048")
    a("v_lshlrev_b32 v5, 3, v2")
    a("v_add_u32 v6, s50, v5")
    a("v_add_u32 v5, s49, v5")
    a("ds_write_b64 v5, v[12:13]")
    a("s_cmp_eq_u32 s36, 1")
    a("s_cbranch_scc1 L_k2_m1")
    for i in range(8):
        a(f"ds_write_b128 v3, {vr(O + 32 + 4 * i, 4)} offset:{i * 1024}")
    a("s_branch L_k2_m2")
    a.label("L_k2_m1")
    for i in range(8):
        a(f"ds_write_b128 v3, {vr(O + 4 * i, 4)} offset:{i * 1024}")
    for i in range(32):
        a(f"v_mov_b32 {vr(O + i)}, {vr(O + 32 + i)}")
    a.label("L_k2_m2")
    a("s_waitcnt lgkmcnt(0)")
    a("s_barrier")
    a("ds_read_b64 v[14:15], v6")
    for i in range(8):
        a(f"ds_read_b128 {vr(O + 32 + 4 * i, 4)}, v4 offset:{i * 1024}")
    a("s_waitcnt lgkmcnt(8)")
    a("v_min_f32 v16, v12, v14")
    a("v_sub_f32 v17, v16, v12")
    a("v_sub_f32 v18, v16, v14")
    a("v_exp_f32 v17, v17")
    a("v_exp_f32 v18, v18")
    a("s_nop 0")
    a("v_mul_f32 v19, v13, v17")
    a("v_fmac_f32 v19, v15, v18")
    a("v_rcp_f32 v19, v19")
    a("s_nop 0")
    a("v_mul_f32 v17, v17, v19")
    a("v_mul_f32 v18, v18, v19")
    a("s_waitcnt lgkmcnt(0)")
    for i in range(32):
        a(f"v_mul_f32 {vr(O + i)}, {vr(O + i)}, v17")
        a(f"v_fmac_f32 {vr(O + i)}, {vr(O + 32 + i)}, v18")
    for i in range(16):
        a(f"v_cvt_pk_bf16_f32 {vr(S + i)}, {vr(O + 2 * i)}, {vr(O + 2 * i + 1)}")
    ctx_addr(a, "s56")
    a("s_lshl_b32 s49, s36, 18")
    a("s_add_u32 s48, s48, s49")
    for i in range(4):
        a(f"buffer_store_dwordx4 {vr(S + 4 * i, 4)}, v3, s[20:23], s48 offen offset:{i * 32}{STF}")
    a.label("L_k2_fin")
    if STAMPS:
        a("s_waitcnt vmcnt(0)")
        stamp(a, 2)
        stamp_flush(a, 5, 1, 2, 32, s_t=70, kid=1)
    a.label("L_k2_end")
    a("s_endpgm")
    a.L += ool.L
    return name, "grid=(256,1,1) block=(512,1,1) lds=163840", 256
```

```python
MB = 1 << 20
XN_OFF = 0
KP_OFF = 4 * MB
VP_OFF = 20 * MB
CTX_OFF = 36 * MB
PART_OFF = 52 * MB
H_OFF = 72 * MB
HN_OFF = 76 * MB
ACT_OFF = 80 * MB
WS_BYTES = 268435456

KA_X, KA_CKV, KA_WQ, KA_WUK, KA_WUV, KA_WO, KA_BX, KA_WG, KA_WU, KA_WD, KA_OUT, KA_DBG, KA_WS = [8 * i for i in range(13)]


class Asm:
    def __init__(self):
        self.L = []

    def __call__(self, s):
        for line in s.split("\n"):
            line = line.strip()
            if line:
                self.L.append("    " + line)

    def label(self, l):
        self.L.append(l + ":")

    def comment(self, s):
        self.L.append("    ; " + s)

    def text(self):
        return "\n".join(self.L) + "\n"


class Lgkm:
    def __init__(self):
        self.q = []

    def issue(self, tag):
        self.q.append(tag)

    def need(self, a, tags):
        idx = -1
        for i, t in enumerate(self.q):
            if t in tags:
                idx = i
        if idx < 0:
            return
        n = len(self.q) - 1 - idx
        assert n <= 15, n
        a(f"s_waitcnt lgkmcnt({n})")
        self.q = self.q[idx + 1:]


def vr(b, n=1):
    return f"v{b}" if n == 1 else f"v[{b}:{b + n - 1}]"


def sr(b, n=1):
    return f"s{b}" if n == 1 else f"s[{b}:{b + n - 1}]"


def kernel_header(a, name):
    a.L.append(f".globl {name}")
    a.L.append(".p2align 8")
    a.L.append(f".type {name},@function")
    a.label(name)


def kernel_desc(name, vgpr=256, sgpr=102):
    acc = (vgpr + 3) // 4 * 4
    return f""".amdhsa_kernel {name}
  .amdhsa_next_free_vgpr {vgpr}
  .amdhsa_next_free_sgpr {sgpr}
  .amdhsa_accum_offset {acc}
  .amdhsa_group_segment_fixed_size 0
  .amdhsa_kernarg_size 104
  .amdhsa_user_sgpr_count 2
  .amdhsa_user_sgpr_kernarg_segment_ptr 1
  .amdhsa_system_sgpr_workgroup_id_x 1
.end_amdhsa_kernel
"""


def wave_sum(a, v, t0, t1):
    a("s_nop 1")
    a(f"v_add_f32_dpp {vr(v)}, {vr(v)}, {vr(v)} quad_perm:[1,0,3,2] row_mask:0xf bank_mask:0xf")
    a("s_nop 1")
    a(f"v_add_f32_dpp {vr(v)}, {vr(v)}, {vr(v)} quad_perm:[2,3,0,1] row_mask:0xf bank_mask:0xf")
    a("s_nop 1")
    a(f"v_add_f32_dpp {vr(v)}, {vr(v)}, {vr(v)} row_half_mirror row_mask:0xf bank_mask:0xf")
    a("s_nop 1")
    a(f"v_add_f32_dpp {vr(v)}, {vr(v)}, {vr(v)} row_mirror row_mask:0xf bank_mask:0xf")
    a(f"v_mov_b32 {vr(t0)}, {vr(v)}")
    a("s_nop 1")
    a(f"v_permlane16_swap_b32 {vr(v)}, {vr(t0)}")
    a("s_nop 1")
    a(f"v_add_f32 {vr(v)}, {vr(v)}, {vr(t0)}")
    a(f"v_mov_b32 {vr(t0)}, {vr(v)}")
    a("s_nop 1")
    a(f"v_permlane32_swap_b32 {vr(v)}, {vr(t0)}")
    a("s_nop 1")
    a(f"v_add_f32 {vr(v)}, {vr(v)}, {vr(t0)}")


def round_bf16(a, v, t):
    a(f"v_cvt_pk_bf16_f32 {vr(t)}, {vr(v)}, {vr(v)}")
    a(f"v_lshlrev_b32 {vr(v)}, 16, {vr(t)}")


def make_srd(a, s, base_lo, base_hi, nrec):
    a(f"s_mov_b32 {sr(s)}, {base_lo}")
    a(f"s_and_b32 {sr(s + 1)}, {base_hi}, 0xffff")
    a(f"s_mov_b32 {sr(s + 2)}, {nrec}")
    a(f"s_mov_b32 {sr(s + 3)}, 0x00020000")


STAMP_OFF = 200 * MB
import os
STAMPS = bool(os.environ.get("STAMPS"))


def stamp(a, idx, s_t=70, srd=28):
    if not STAMPS:
        return
    a("s_waitcnt lgkmcnt(0)")
    a(f"s_memtime s[{s_t}:{s_t + 1}]")
    a("s_waitcnt lgkmcnt(0)")
    a(f"v_mov_b32 v254, s{s_t}") if False else None
    a(f"s_mov_b32 s{s_t + 2 + idx}, s{s_t}")
    if idx == 0:
        a(f"s_memrealtime s[{s_t}:{s_t + 1}]")
        a("s_waitcnt lgkmcnt(0)")
        a(f"s_mov_b32 s{s_t + 2 + 14}, s{s_t}")


def stamp_flush(a, n, vtmp0, vtmp1, s_w, s_t=90, srd=28, kid=0):
    if not STAMPS:
        return
    if s_t == 70:
        a(f"s_memrealtime s[{s_t}:{s_t + 1}]")
        a("s_waitcnt lgkmcnt(0)")
        a(f"s_mov_b32 s{s_t + 2 + 15}, s{s_t}")
    a(f"s_lshl_b32 s{s_t}, s2, 3")
    a(f"s_add_u32 s{s_t}, s{s_t}, s{s_w}")
    a(f"s_lshl_b32 s{s_t}, s{s_t}, 6")
    a(f"s_add_u32 s{s_t}, s{s_t}, {STAMP_OFF + kid * MB}")
    a(f"v_mov_b32 v{vtmp0}, 0")
    for i in list(range(n)) + ([14, 15] if s_t == 70 else []):
        a(f"v_mov_b32 v{vtmp1}, s{s_t + 2 + i}")
        a(f"buffer_store_dword v{vtmp1}, v{vtmp0}, s[{srd}:{srd + 3}], s{s_t} offen offset:{4 * i}")


def prefetch(a, ptrs, s_w, srd, vtmp, vdst, lanes, s_tmp):
    if os.environ.get("NOPF"):
        return
    a(f"s_lshl_b32 s{s_tmp}, s2, 3")
    a(f"s_add_u32 s{s_tmp}, s{s_tmp}, s{s_w}")
    a(f"s_mul_i32 s{s_tmp}, s{s_tmp}, {lanes * 128}")
    a(f"v_and_b32 v{vtmp}, 63, v0")
    a(f"v_lshlrev_b32 v{vtmp}, 7, v{vtmp}")
    a(f"s_mov_b64 exec, {(1 << lanes) - 1}")
    for i, (lo, hi, nb) in enumerate(ptrs):
        make_srd(a, srd, lo, hi, nb)
        a(f"buffer_load_dword v{vdst + i}, v{vtmp}, s[{srd}:{srd + 3}], s{s_tmp} offen")
    a("s_mov_b64 exec, -1")

STF = os.environ.get("STF", "")
```

```python
from gen_common import *


class GemmCfg:
    pass


ENV = os.environ.get


def gemm_prologue_and_loop(a, c, tag):
    TN, TM, R, AH = c.TN, c.TM, c.R, c.AHEAD
    NSW, WSLOT, NST, TSLOT, TPER = c.NSW, c.WSLOT, c.NST, c.TSLOT, c.TPER
    lg = Lgkm()

    def ring_adv(sreg, slot, ns):
        a(f"s_add_u32 {sr(sreg)}, {sr(sreg)}, {slot}")
        a(f"s_cmp_eq_u32 {sr(sreg)}, {ns * slot}")
        a(f"s_cselect_b32 {sr(sreg)}, 0, {sr(sreg)}")

    def finW():
        c.advW()
        ring_adv(c.s_dmaW, WSLOT, NSW)

    def finT():
        c.advT()
        ring_adv(c.s_dmaT, TSLOT, NST)

    def rd_w(nt, ring, dreg):
        for j, (ar, imm) in enumerate(c.wread(nt)):
            if ENV("NOLDS"):
                continue
            a(f"ds_read_b64_tr_b16 {vr(c.wfrag(ring) + 2 * j, 2)}, {vr(ar)} offset:{imm}")
            lg.issue(("W", ring))
        for r_ in c.wadv(nt):
            a(f"v_add_u32 {vr(r_)}, {sr(dreg)}, {vr(r_)}")

    def rd_t(buf, tt, dreg):
        ar, imm = c.tread(buf, tt)
        if not ENV("NOLDS"):
            a(f"ds_read_b128 {vr(c.tfrag(buf, tt), 4)}, {vr(ar)} offset:{imm}")
            lg.issue(("T", buf))
        if tt == TM - 1:
            for r_ in c.tadv(buf):
                a(f"v_add_u32 {vr(r_)}, {sr(dreg)}, {vr(r_)}")

    a(f"s_mov_b32 {sr(c.s_dmaW)}, 0")
    a(f"s_mov_b32 {sr(c.s_dmaT)}, 0")
    stamp(a, 7)
    DW = len(c.dmaW())
    DT = len(c.dmaT(0))
    issued = []
    if TPER == 1:
        assert NST == NSW
        for s in range(NSW - 1):
            for f in c.dmaW():
                f(); issued.append(("W", s))
            finW()
            for f in c.dmaT(0):
                f(); issued.append(("T", s))
            finT()
        VM_LOOP = (NSW - 3) * (DW + DT)
    else:
        tq = [(t, h) for t in range(NST - 1) for h in range(2)] + [(NST - 1, 0)]
        for s in range(NSW - 1):
            for f in c.dmaW():
                f(); issued.append(("W", s))
            finW()
            n_t = 2 if len(tq) > (NSW - 1 - s) else 1
            for _ in range(n_t):
                if tq:
                    t, h = tq.pop(0)
                    for f in c.dmaT(h):
                        f(); issued.append(("T", t))
                    if h == 1:
                        finT()
        assert not tq
        VM_LOOP = (NSW - 3) * (DW + DT) + DT
    if getattr(c, "mid", None):
        c.mid(len(issued))
    for nt in range(TN):
        for tt in range(TM):
            for r_ in range(4):
                a(f"v_mov_b32 {vr(c.acc(nt, tt) + r_)}, 0")
    a(f"s_mov_b32 {sr(c.s_dB)}, {WSLOT}")
    a(f"s_mov_b32 {sr(c.s_slotW)}, {WSLOT}")
    a(f"s_mov_b32 {sr(c.s_sl)}, 0")
    a(f"s_mov_b32 {sr(c.s_dT)}, {TSLOT}")
    a(f"s_mov_b32 {sr(c.s_slotT)}, {TSLOT}")
    a(f"s_mov_b32 {sr(c.s_slT)}, 0")
    stamp(a, 6)
    last0 = max(i for i, x in enumerate(issued) if x[1] == 0)
    a(f"s_waitcnt vmcnt({len(issued) - 1 - last0})")
    a("s_barrier")
    stamp(a, 1)
    TPOS = c.TPOS
    order = []
    for n in range(TN):
        if n + AH >= TN:
            order.append(("W", n + AH - TN))
        if 0 <= n - TPOS < TM:
            order.append(("T", n - TPOS))
    for kind, i in order:
        if kind == "W":
            rd_w(i, i % R, c.s_dB)
        else:
            rd_t(0, i, c.s_dT)
    q0 = list(lg.q)
    a(f"s_mov_b32 {sr(c.s_cnt)}, {c.NSTEPS // 2}")
    a.label(f"L_{tag}_loop")
    for p in range(2):
        a(f"s_waitcnt vmcnt({VM_LOOP})")
        if not ENV("NOBAR"):
            a("s_barrier")
        a(f"s_mov_b32 {sr(c.s_dA)}, {sr(c.s_dB)}")
        a(f"s_add_u32 {sr(c.s_sl)}, {sr(c.s_sl)}, 1")
        a(f"s_cmp_eq_u32 {sr(c.s_sl)}, {NSW}")
        a(f"s_cselect_b32 {sr(c.s_sl)}, 0, {sr(c.s_sl)}")
        a(f"s_cmp_eq_u32 {sr(c.s_sl)}, {NSW - 1}")
        a(f"s_cselect_b32 {sr(c.s_dB)}, {(-(NSW - 1) * WSLOT) & 0xffffffff}, {sr(c.s_slotW)}")
        if TPER == 1 or p == 1:
            a(f"s_add_u32 {sr(c.s_slT)}, {sr(c.s_slT)}, 1")
            a(f"s_cmp_eq_u32 {sr(c.s_slT)}, {NST}")
            a(f"s_cselect_b32 {sr(c.s_slT)}, 0, {sr(c.s_slT)}")
            a(f"s_cmp_eq_u32 {sr(c.s_slT)}, {NST - 1}")
            a(f"s_cselect_b32 {sr(c.s_dT)}, {(-(NST - 1) * TSLOT) & 0xffffffff}, {sr(c.s_slotT)}")
        h = 0 if TPER == 1 else (1 - p)
        dmas = c.dmaW() + [finW] + c.dmaT(h) + ([finT] if (TPER == 1 or h == 1) else [])
        if ENV("NODMA"):
            dmas = []
        allp = [(n, tt) for n in range(TN) for tt in range(TM)]
        nd = DW + DT
        frac = float(ENV("DFRAC", "0.8"))
        slots = [allp[int(j * len(allp) * frac / nd)] for j in range(nd)]
        k = 0
        for n in range(TN):
            gi = p * TN + n
            nt2 = n + AH
            if nt2 < TN:
                rd_w(nt2, (gi + AH) % R, c.s_dA)
            else:
                rd_w(nt2 - TN, (gi + AH) % R, c.s_dB)
            if 0 <= n - TPOS < TM:
                rd_t(p ^ 1, n - TPOS, c.s_dT)
            need = [("W", gi % R)]
            if n == 0:
                need.append(("T", p))
            lg.need(a, need)
            for tt in range(TM):
                w_, t_ = vr(c.wfrag(gi % R), 4), vr(c.tfrag(p, tt), 4)
                ac = vr(c.acc(n, tt), 4)
                if c.swap:
                    a(f"v_mfma_f32_16x16x32_bf16 {ac}, {t_}, {w_}, {ac}")
                else:
                    a(f"v_mfma_f32_16x16x32_bf16 {ac}, {w_}, {t_}, {ac}")
                if (n, tt) in slots and dmas:
                    f = dmas.pop(0)
                    f()
                    while dmas and dmas[0] in (finW, finT):
                        dmas.pop(0)()
        assert not dmas
    assert lg.q == q0[len(q0) - len(lg.q):], (lg.q, q0)
    a(f"s_sub_u32 {sr(c.s_cnt)}, {sr(c.s_cnt)}, 1")
    a(f"s_cmp_lg_u32 {sr(c.s_cnt)}, 0")
    a(f"s_cbranch_scc1 L_{tag}_loop")
    a("s_waitcnt lgkmcnt(0)")
    a("s_nop 7")
    a("s_nop 7")
    stamp(a, 2)


def gen_k1(a):
    name = "k1_kv_kernel"
    kernel_header(a, name)
    a("s_cmp_ge_u32 s2, 256")
    a("s_cbranch_scc1 L_k1_end")
    a(f"s_load_dwordx4 s[4:7], s[0:1], {KA_X}")
    a(f"s_load_dwordx4 s[8:11], s[0:1], {KA_WUK}")
    a(f"s_load_dwordx2 s[12:13], s[0:1], {KA_WS}")
    a(f"s_load_dwordx2 s[14:15], s[0:1], {KA_WQ}")
    a("v_lshrrev_b32 v1, 6, v0")
    a("v_and_b32 v2, 63, v0")
    a("s_nop 0")
    a("v_readfirstlane_b32 s32, v1")
    a("s_and_b32 s34, s2, 7")
    a("s_lshl_b32 s34, s34, 2")
    a("s_lshr_b32 s48, s2, 3")
    a("s_and_b32 s48, s48, 3")
    a("s_add_u32 s34, s34, s48")
    a("s_lshr_b32 s33, s2, 5")
    a("s_lshr_b32 s35, s32, 1")
    a("s_and_b32 s36, s32, 1")
    a("s_lshl_b32 s40, s32, 11")
    a("s_waitcnt lgkmcnt(0)")
    stamp(a, 0)
    a("s_lshl_b32 s48, s33, 18")
    a("s_add_u32 s6, s6, s48")
    a("s_addc_u32 s7, s7, 0")
    make_srd(a, 16, "s6", "s7", 256 * 1024)
    a(f"s_mov_b32 s46, {256 * 1024}")
    a("s_cmp_ge_u32 s34, 16")
    a("s_cselect_b32 s8, s10, s8")
    a("s_cselect_b32 s9, s11, s9")
    a("s_and_b32 s48, s34, 15")
    a("s_lshl_b32 s48, s48, 9")
    a("s_add_u32 s8, s8, s48")
    a("s_addc_u32 s9, s9, 0")
    a(f"s_sub_u32 s47, {512 * 8192}, s48")
    make_srd(a, 20, "s8", "s9", "s47")
    make_srd(a, 24, "s4", "s5", 2048 * 1152)
    make_srd(a, 28, "s12", "s13", WS_BYTES)
    a("s_lshl_b32 s49, s2, 3")
    a("s_add_u32 s49, s49, s32")
    a("s_mul_i32 s50, s49, 1152")
    a("v_lshlrev_b32 v3, 4, v2")
    for i in range(8, 12):
        a(f"v_mov_b32 v{i}, 0")
    a("buffer_load_dwordx4 v[4:7], v3, s[24:27], s50 offen")
    a("s_mov_b64 exec, 0xff")
    a("buffer_load_dwordx4 v[8:11], v3, s[24:27], s50 offen offset:1024")
    a("s_mov_b64 exec, -1")
    vA = 56
    vW0, vW1 = 66, 67
    vT0, vT1 = 70, 71
    vWa = 72
    WBASE = 3 * 32768
    a("v_lshrrev_b32 v20, 3, v2")
    a("s_lshl_b32 s48, s32, 5")
    a("v_add_u32 v20, s48, v20")
    a("v_lshlrev_b32 v20, 10, v20")
    a("v_lshrrev_b32 v21, 5, v2")
    a("v_and_b32 v22, 7, v2")
    a("v_bfe_u32 v24, v2, 4, 1")
    a("v_lshlrev_b32 v24, 2, v24")
    a("v_xor_b32 v22, v22, v24")
    for j in range(4):
        a(f"v_sub_u32 v23, {(-2 * (j >> 1)) & 3}, v21")
        a("v_and_b32 v23, 3, v23")
        a("v_xor_b32 v23, v23, v22")
        a("v_lshl_add_u32 v23, v23, 4, v20")
        a(f"v_add_u32 {vr(vA + j)}, {j * 8 * 1024}, v23")
    a("v_lshrrev_b32 v20, 5, v2")
    a("v_bfe_u32 v21, v2, 1, 4")
    a("v_and_b32 v22, 1, v2")
    a("s_and_b32 s48, s35, 1")
    a("s_lshl_b32 s48, s48, 2")
    a("s_lshl_b32 s51, s32, 2")
    for j, vd in ((0, vW0), (1, vW1)):
        a(f"v_add_u32 v23, {2 * j}, v20")
        a("v_or_b32 v24, s48, v23")
        a("v_xor_b32 v24, v24, v21")
        a("v_lshrrev_b32 v25, 1, v24")
        a("v_lshlrev_b32 v25, 2, v25")
        a("v_and_b32 v24, 1, v24")
        a("v_add_u32 v25, v25, v24")
        a("v_lshl_add_u32 v25, v22, 1, v25")
        a("v_add_u32 v23, s51, v23")
        a("v_lshlrev_b32 v23, 13, v23")
        a(f"v_lshl_add_u32 {vr(vd)}, v25, 4, v23")
    a("v_and_b32 v62, 15, v2")
    a("v_lshrrev_b32 v61, 4, v2")
    a("v_bfe_u32 v20, v2, 3, 1")
    a("v_lshlrev_b32 v20, 4, v20")
    a("v_and_b32 v21, 7, v2")
    a("v_add_u32 v60, v20, v21")
    a("v_lshrrev_b32 v20, 2, v62")
    a("v_sub_u32 v20, 0, v20")
    a("v_and_b32 v20, 3, v20")
    a("v_xor_b32 v20, v20, v61")
    a("v_bfe_u32 v21, v2, 1, 1")
    a("v_lshl_or_b32 v20, v21, 2, v20")
    a("s_lshl_b32 s48, s35, 6")
    a("v_add_u32 v21, s48, v60")
    a("v_lshlrev_b32 v21, 7, v21")
    a(f"v_lshl_add_u32 {vr(vT0)}, v20, 4, v21")
    a(f"v_xor_b32 {vr(vT1)}, 64, {vr(vT0)}")
    a("v_bfe_u32 v20, v2, 2, 2")
    a("v_and_b32 v21, 1, v61")
    a("v_lshl_or_b32 v21, v21, 2, v20")
    a("v_lshl_add_u32 v22, v61, 3, v20")
    a("v_lshlrev_b32 v22, 9, v22")
    a("v_and_b32 v23, 3, v2")
    a("v_lshl_add_u32 v22, v23, 3, v22")
    a("s_lshl_b32 s48, s36, 8")
    a(f"s_add_u32 s48, s48, {WBASE}")
    a("v_add_u32 v22, s48, v22")
    for nt in range(8):
        a(f"v_xor_b32 v23, {nt}, v21")
        a(f"v_lshl_add_u32 {vr(vWa + nt)}, v23, 5, v22")
    a("s_mov_b32 s37, 0")
    a("s_mov_b32 s38, 0")

    a("s_mov_b32 s44, 0")
    a("s_mov_b32 s53, 0")
    a("s_lshl_b32 s54, s32, 12")
    a(f"s_add_u32 s40, s40, {WBASE}")
    c = GemmCfg()
    c.TN, c.TM, c.R, c.AHEAD, c.NSTEPS = 8, 4, 4, 3, 16
    c.NSW, c.WSLOT, c.NST, c.TSLOT, c.TPER = 4, 16384, 3, 32768, 2
    c.TPOS = 0
    c.DMA_EVERY = 4
    c.acc = lambda nt, tt: 128 + (nt * 4 + tt) * 4
    c.tfrag = lambda buf, tt: 96 + buf * 16 + tt * 4
    c.wfrag = lambda r_: 80 + r_ * 4
    c.wread = lambda nt: [(vWa + nt, 0), (vWa + nt, 2048)]
    c.wadv = lambda nt: [vWa + nt]
    c.tread = lambda q, tt: ((vT0, vT1)[q], (32 * (tt >> 1) + 8 * (tt & 1)) * 128)
    c.tadv = lambda q: [(vT0, vT1)[q]]
    c.s_dA, c.s_dB, c.s_sl, c.s_dmaW, c.s_cnt, c.s_slotW = 41, 42, 43, 39, 45, 52
    c.s_dT, c.s_slT, c.s_dmaT, c.s_slotT = 55, 56, 57, 58

    def dmaW():
        def d2():
            a("s_add_u32 m0, s39, s40")
            a("s_nop 0")
            a(f"buffer_load_dwordx4 {vr(vW0)}, s[20:23], s38 offen lds")

        def d3():
            a("s_add_u32 m0, m0, 1024")
            a("s_nop 0")
            a(f"buffer_load_dwordx4 {vr(vW1)}, s[20:23], s38 offen lds")
        return [d2, d3]
    c.dmaW = dmaW

    def dmaT(h):
        def d0():
            a("s_add_u32 m0, s57, s54")
            if h:
                a("s_add_u32 m0, m0, 2048")
            a("s_nop 0")
            a(f"buffer_load_dwordx4 {vr(vA + 2 * h)}, s[16:19], s37 offen lds")

        def d1():
            a("s_add_u32 m0, m0, 1024")
            a("s_nop 0")
            a(f"buffer_load_dwordx4 {vr(vA + 2 * h + 1)}, s[16:19], s37 offen lds")
        return [d0, d1]
    c.dmaT = dmaT

    def advW():
        a(f"s_add_u32 s38, s38, {32 * 8192}")
        a("s_add_u32 s44, s44, 1")
        a(f"s_cmp_lt_u32 s44, {c.NSTEPS}")
        a("s_cselect_b32 s22, s47, 0")
    c.advW = advW

    def advT():
        a("s_add_u32 s37, s37, 128")
        a("s_add_u32 s53, s53, 1")
        a(f"s_cmp_lt_u32 s53, {c.NSTEPS // 2}")
        a("s_cselect_b32 s18, s46, 0")
    c.advT = advT

    def mid(nis):
        stamp(a, 4)
        a(f"s_waitcnt vmcnt({nis})")
        stamp(a, 5)
        for i in range(8):
            a(f"v_lshlrev_b32 v{20 + 2 * i}, 16, v{4 + i}")
            a(f"v_and_b32 v{21 + 2 * i}, 0xffff0000, v{4 + i}")
        a("v_add_f32 v36, v20, v21")
        for i in range(22, 36):
            a(f"v_add_f32 v36, v36, v{i}")
        wave_sum(a, 36, 37, 38)
        a(f"v_mul_f32 v36, {1.0 / 576.0!r}, v36")
        a("v_mov_b32 v39, 0")
        for i in range(20, 28):
            a(f"v_sub_f32 v37, v{i}, v36")
            a("v_fmac_f32 v39, v37, v37")
        a("s_mov_b64 exec, 0xff")
        for i in range(28, 36):
            a(f"v_sub_f32 v37, v{i}, v36")
            a("v_fmac_f32 v39, v37, v37")
        a("s_mov_b64 exec, -1")
        wave_sum(a, 39, 37, 38)
        a(f"v_mul_f32 v39, {1.0 / 576.0!r}, v39")
        round_bf16(a, 39, 37)
        a("v_add_f32 v39, 0x3727c5ac, v39")
        round_bf16(a, 39, 37)
        a("v_sqrt_f32 v39, v39")
        a("s_nop 0")
        round_bf16(a, 39, 37)
        a("v_rcp_f32 v39, v39")
        round_bf16(a, 36, 37)
        for i in range(8):
            a(f"v_sub_f32 v{20 + 2 * i}, v{20 + 2 * i}, v36")
            a(f"v_sub_f32 v{21 + 2 * i}, v{21 + 2 * i}, v36")
            a(f"v_cvt_pk_bf16_f32 v37, v{20 + 2 * i}, v{21 + 2 * i}")
            a(f"v_lshlrev_b32 v{20 + 2 * i}, 16, v37")
            a(f"v_and_b32 v{21 + 2 * i}, 0xffff0000, v37")
            a(f"v_mul_f32 v{20 + 2 * i}, v{20 + 2 * i}, v39")
            a(f"v_mul_f32 v{21 + 2 * i}, v{21 + 2 * i}, v39")
            a(f"v_cvt_pk_bf16_f32 v{4 + i}, v{20 + 2 * i}, v{21 + 2 * i}")
        a("s_lshr_b32 s50, s49, 5")
        a("s_mul_i32 s50, s50, 36864")
        a("s_and_b32 s51, s49, 31")
        a("s_lshl_b32 s51, s51, 4")
        a("s_add_u32 s50, s50, s51")
        a(f"s_add_u32 s50, s50, {XN_OFF}")
        a("v_lshrrev_b32 v37, 1, v2")
        a("v_lshlrev_b32 v37, 10, v37")
        a("v_and_b32 v38, 1, v2")
        a("v_lshl_add_u32 v37, v38, 9, v37")
        a("buffer_store_dwordx4 v[4:7], v37, s[28:31], s50 offen")
        a(f"s_add_u32 s50, s50, {32 * 1024}")
        a("s_mov_b64 exec, 0xff")
        a("buffer_store_dwordx4 v[8:11], v37, s[28:31], s50 offen")
        a("s_mov_b64 exec, -1")
    c.mid = mid

    a("s_cmp_ge_u32 s34, 16")
    a("s_cbranch_scc1 L_k1_vpath")
    c.swap = False
    gemm_prologue_and_loop(a, c, "k1k")
    prefetch(a, [("s14", "s15", 576 * 8192)], 32, 16, 50, 51, 18, 48)
    a("s_lshl_b32 s48, s34, 1")
    a("s_add_u32 s48, s48, s36")
    a("s_lshl_b32 s48, s48, 11")
    a("s_lshl_b32 s49, s33, 8")
    a("s_add_u32 s48, s48, s49")
    a("s_lshl_b32 s49, s35, 6")
    a("s_add_u32 s48, s48, s49")
    a("s_lshl_b32 s48, s48, 8")
    a(f"s_add_u32 s48, s48, {KP_OFF}")
    a("v_and_b32 v20, 7, v60")
    a("v_xor_b32 v20, v20, v61")
    a("v_lshlrev_b32 v21, 8, v60")
    a("v_lshl_add_u32 v21, v20, 4, v21")
    for x in range(4):
        a(f"v_xor_b32 v{24 + x}, {x << 6}, v21")
    k = 0
    for tt in range(4):
        a(f"s_add_u32 s49, s48, {(32 * (tt >> 1) + 8 * (tt & 1)) * 256}")
        for P in range(4):
            t = 32 + (k % 4) * 4
            k += 1
            a0, a1 = c.acc(2 * P, tt), c.acc(2 * P + 1, tt)
            a(f"v_cvt_pk_bf16_f32 v{t}, v{a0}, v{a0 + 1}")
            a(f"v_cvt_pk_bf16_f32 v{t + 1}, v{a0 + 2}, v{a0 + 3}")
            a(f"v_cvt_pk_bf16_f32 v{t + 2}, v{a1}, v{a1 + 1}")
            a(f"v_cvt_pk_bf16_f32 v{t + 3}, v{a1 + 2}, v{a1 + 3}")
            a(f"buffer_store_dwordx4 v[{t}:{t + 3}], v{24 + (P ^ (2 * (tt & 1)))}, s[28:31], s49 offen{STF}")
    if STAMPS:
        a("s_waitcnt vmcnt(0)")
        stamp(a, 3)
        stamp_flush(a, 8, 1, 2, 32, s_t=70)
    a("s_endpgm")
    a.label("L_k1_vpath")
    c.swap = True
    gemm_prologue_and_loop(a, c, "k1v")
    prefetch(a, [("s14", "s15", 576 * 8192)], 32, 16, 50, 51, 18, 48)
    a("s_and_b32 s48, s34, 15")
    a("s_lshl_b32 s48, s48, 1")
    a("s_add_u32 s48, s48, s36")
    a("s_lshl_b32 s48, s48, 5")
    a("s_lshl_b32 s49, s33, 2")
    a("s_add_u32 s48, s48, s49")
    a("s_add_u32 s48, s48, s35")
    a("s_lshl_b32 s48, s48, 14")
    a(f"s_add_u32 s48, s48, {VP_OFF}")
    a("v_bfe_u32 v20, v62, 1, 2")
    a("v_xor_b32 v20, v20, v61")
    a("v_lshlrev_b32 v21, 7, v60")
    a("v_lshl_add_u32 v24, v20, 4, v21")
    a("v_xor_b32 v25, 64, v24")
    k = 0
    for nt in range(8):
        P, T = nt >> 1, nt & 1
        a(f"s_add_u32 s49, s48, {(32 * P + 8 * T) * 128}")
        for Q in range(2):
            t = 32 + (k % 4) * 4
            k += 1
            a0, a1 = c.acc(nt, 2 * Q), c.acc(nt, 2 * Q + 1)
            a(f"v_cvt_pk_bf16_f32 v{t}, v{a0}, v{a0 + 1}")
            a(f"v_cvt_pk_bf16_f32 v{t + 1}, v{a0 + 2}, v{a0 + 3}")
            a(f"v_cvt_pk_bf16_f32 v{t + 2}, v{a1}, v{a1 + 1}")
            a(f"v_cvt_pk_bf16_f32 v{t + 3}, v{a1 + 2}, v{a1 + 3}")
            a(f"buffer_store_dwordx4 v[{t}:{t + 3}], v{24 + (Q ^ T)}, s[28:31], s49 offen{STF}")
    if STAMPS:
        a("s_waitcnt vmcnt(0)")
        stamp(a, 3)
        stamp_flush(a, 8, 1, 2, 32, s_t=70)
    a.label("L_k1_end")
    a("s_endpgm")
    return name, "grid=(256,1,1) block=(512,1,1) lds=163840", 256


def gen_empty(a):
    name = "k0_empty_kernel"
    kernel_header(a, name)
    a("s_endpgm")
    return name, "grid=(256,1,1) block=(512,1,1) lds=163840", 256
```

```python
import math
from gen_common import *
from gen_gemm import *


def div18(a, vq, vr_, vin, vtmp):
    a(f"v_mul_u32_u24 {vr(vq)}, 3641, {vr(vin)}")
    a(f"v_lshrrev_b32 {vr(vq)}, 16, {vr(vq)}")
    a(f"v_mul_u32_u24 {vr(vtmp)}, 18, {vr(vq)}")
    a(f"v_sub_u32 {vr(vr_)}, {vr(vin)}, {vr(vtmp)}")


def gen_splitk(name, KA_W, A_OFF, NSTAGE, kid):
    def g(a):
        kernel_header(a, name)
        a("s_cmp_ge_u32 s2, 256")
        a(f"s_cbranch_scc1 L_{name}_end")
        a(f"s_load_dwordx2 s[8:9], s[0:1], {KA_W}")
        a(f"s_load_dwordx2 s[12:13], s[0:1], {KA_WS}")
        a("v_lshrrev_b32 v1, 6, v0")
        a("v_and_b32 v2, 63, v0")
        a("s_nop 0")
        a("v_readfirstlane_b32 s32, v1")
        a("s_and_b32 s48, s2, 7")
        a("s_lshr_b32 s49, s2, 3")
        a("s_lshr_b32 s33, s48, 1")
        a("s_and_b32 s34, s48, 1")
        a("s_lshl_b32 s34, s34, 3")
        a("s_lshr_b32 s50, s49, 2")
        a("s_add_u32 s34, s34, s50")
        a("s_and_b32 s35, s49, 3")
        a("s_and_b32 s36, s32, 3")
        a("s_lshr_b32 s37, s32, 2")
        a("s_waitcnt lgkmcnt(0)")
        stamp(a, 0)
        KTOT = NSTAGE * 64 * 4
        make_srd(a, 20, "s8", "s9", KTOT * 1152)
        a(f"s_mov_b32 s47, {KTOT * 1152}")
        make_srd(a, 16, "s12", "s13", WS_BYTES)
        a(f"s_mov_b32 s46, {WS_BYTES}")
        make_srd(a, 28, "s12", "s13", WS_BYTES)
        TS, WS_ = 16384, 18432
        WBASE = 4 * TS
        vA0, vA1, vW0, vW1, vW2, vT, vWa = 64, 65, 66, 67, 68, 70, 71
        a("v_lshrrev_b32 v20, 3, v2")
        a("s_lshl_b32 s48, s32, 4")
        a("v_add_u32 v20, s48, v20")
        a("v_lshlrev_b32 v20, 7, v20")
        a("v_lshrrev_b32 v21, 4, v2")
        a("v_and_b32 v22, 7, v2")
        a("v_xor_b32 v21, v21, v22")
        a(f"v_lshl_add_u32 {vr(vA0)}, v21, 4, v20")
        a("v_xor_b32 v21, 4, v21")
        a("v_lshl_add_u32 v21, v21, 4, v20")
        a(f"v_add_u32 {vr(vA1)}, 1024, v21")
        a(f"s_mul_i32 s38, s33, {NSTAGE * 262144}")
        a("s_lshl_b32 s48, s34, 14")
        a("s_add_u32 s38, s38, s48")
        a(f"s_add_u32 s38, s38, {A_OFF}")
        for j, vd in ((0, vW0), (1, vW1), (2, vW2)):
            a(f"v_add_u32 v20, {64 * j}, v2")
            div18(a, 21, 22, 20, 23)
            a("s_lshl_b32 s48, s32, 3")
            a("v_add_u32 v21, s48, v21")
            a("v_mul_u32_u24 v21, 1152, v21")
            a(f"v_lshl_add_u32 {vr(vd)}, v22, 4, v21")
        a(f"s_mul_i32 s39, s33, {NSTAGE * 64 * 1152}")
        a("s_mul_i32 s48, s35, 288")
        a("s_add_u32 s39, s39, s48")
        a("s_lshl_b32 s40, s32, 11")
        a("s_mul_i32 s41, s32, 2304")
        a(f"s_add_u32 s41, s41, {WBASE}")
        a("v_and_b32 v62, 15, v2")
        a("v_lshrrev_b32 v61, 4, v2")
        a("s_lshl_b32 s48, s37, 2")
        a("v_add_u32 v20, s48, v61")
        a("v_lshrrev_b32 v21, 1, v62")
        a("v_xor_b32 v20, v20, v21")
        a("s_lshl_b32 s48, s36, 5")
        a("v_add_u32 v21, s48, v62")
        a("v_lshlrev_b32 v21, 7, v21")
        a(f"v_lshl_add_u32 {vr(vT)}, v20, 4, v21")
        a("v_lshrrev_b32 v20, 5, v2")
        a("v_lshlrev_b32 v20, 4, v20")
        a("v_bfe_u32 v21, v2, 2, 3")
        a("v_add_u32 v20, v20, v21")
        a("s_lshl_b32 s48, s37, 5")
        a("v_add_u32 v20, s48, v20")
        a("v_mul_u32_u24 v20, 288, v20")
        a("v_and_b32 v21, 3, v2")
        a("v_lshl_add_u32 v20, v21, 3, v20")
        a(f"v_add_u32 {vr(vWa)}, {WBASE}, v20")
        a("s_mov_b32 s44, 0")
        c = GemmCfg()
        c.TN, c.TM, c.R, c.AHEAD, c.NSTEPS = 9, 2, 6, 5, NSTAGE
        c.NSW, c.WSLOT, c.NST, c.TSLOT, c.TPER = 4, WS_, 4, TS, 1
        c.TPOS = 0
        c.DMA_EVERY = 2
        c.swap = False
        c.acc = lambda nt, tt: 128 + (nt * 2 + tt) * 4
        c.tfrag = lambda buf, tt: 112 + buf * 8 + tt * 4
        c.wfrag = lambda r_: 80 + r_ * 4
        c.wread = lambda nt: [(vWa, nt * 32), (vWa, nt * 32 + 8 * 288)]
        c.wadv = lambda nt: [vWa] if nt == 8 else []
        c.tread = lambda q, tt: (vT, tt * 2048)
        c.tadv = lambda q: [vT]
        c.s_dA, c.s_dB, c.s_sl, c.s_dmaW, c.s_cnt, c.s_slotW = 50, 51, 52, 53, 45, 54
        c.s_dT, c.s_slT, c.s_dmaT, c.s_slotT = 55, 56, 57, 58

        def dmaW():
            def d0():
                a("s_add_u32 m0, s53, s41")
                a("s_nop 0")
                a(f"buffer_load_dwordx4 {vr(vW0)}, s[20:23], s39 offen lds")

            def d1():
                a("s_add_u32 m0, m0, 1024")
                a("s_nop 0")
                a(f"buffer_load_dwordx4 {vr(vW1)}, s[20:23], s39 offen lds")

            def d2():
                a("s_add_u32 m0, m0, 1024")
                a("s_mov_b64 exec, 0xffff")
                a(f"buffer_load_dwordx4 {vr(vW2)}, s[20:23], s39 offen lds")
                a("s_mov_b64 exec, -1")
            return [d0, d1, d2]
        c.dmaW = dmaW

        def dmaT(h):
            def d0():
                a("s_add_u32 m0, s57, s40")
                a("s_nop 0")
                a(f"buffer_load_dwordx4 {vr(vA0)}, s[16:19], s38 offen lds")

            def d1():
                a("s_add_u32 m0, m0, 1024")
                a("s_nop 0")
                a(f"buffer_load_dwordx4 {vr(vA1)}, s[16:19], s38 offen lds")
            return [d0, d1]
        c.dmaT = dmaT

        def advW():
            a(f"s_add_u32 s39, s39, {64 * 1152}")
        c.advW = advW

        def advT():
            a("s_add_u32 s38, s38, 262144")
            a("s_add_u32 s44, s44, 1")
            a(f"s_cmp_lt_u32 s44, {NSTAGE}")
            a("s_cselect_b32 s18, s46, 0")
            a("s_cselect_b32 s22, s47, 0")
        c.advT = advT
        gemm_prologue_and_loop(a, c, name)
        a("s_waitcnt vmcnt(0)")
        a("s_barrier")
        a("s_mul_i32 s48, s32, 9216")
        a("s_xor_b32 s49, s32, 4")
        a("s_mul_i32 s49, s49, 9216")
        a("v_lshlrev_b32 v3, 4, v2")
        a("v_add_u32 v4, s49, v3")
        a("v_add_u32 v3, s48, v3")
        a("s_cmp_eq_u32 s37, 1")
        a(f"s_cbranch_scc1 L_{name}_e1")
        for nt in range(9):
            a(f"ds_write_b128 v3, {vr(c.acc(nt, 1), 4)} offset:{nt * 1024}")
        a(f"s_branch L_{name}_e2")
        a.label(f"L_{name}_e1")
        for nt in range(9):
            a(f"ds_write_b128 v3, {vr(c.acc(nt, 0), 4)} offset:{nt * 1024}")
        for nt in range(9):
            for r_ in range(4):
                a(f"v_mov_b32 {vr(c.acc(nt, 0) + r_)}, {vr(c.acc(nt, 1) + r_)}")
        a.label(f"L_{name}_e2")
        a("s_waitcnt lgkmcnt(0)")
        a("s_barrier")
        for nt in range(9):
            a(f"ds_read_b128 {vr(c.acc(nt, 1), 4)}, v4 offset:{nt * 1024}")
        a(f"s_mul_i32 s48, s33, {2048 * 576 * 4}")
        a("s_lshl_b32 s49, s34, 7")
        a("s_lshl_b32 s50, s36, 5")
        a("s_add_u32 s49, s49, s50")
        a("s_lshl_b32 s50, s37, 4")
        a("s_add_u32 s49, s49, s50")
        a("s_mul_i32 s49, s49, 2304")
        a("s_add_u32 s48, s48, s49")
        a("s_mul_i32 s49, s35, 576")
        a("s_add_u32 s48, s48, s49")
        a(f"s_add_u32 s48, s48, {PART_OFF}")
        a("v_mul_u32_u24 v5, 2304, v62")
        a("v_lshl_add_u32 v5, v61, 4, v5")
        for nt in range(9):
            a(f"s_waitcnt lgkmcnt({8 - nt})")
            for r_ in range(4):
                a(f"v_add_f32 {vr(c.acc(nt, 0) + r_)}, {vr(c.acc(nt, 0) + r_)}, {vr(c.acc(nt, 1) + r_)}")
            a(f"buffer_store_dwordx4 {vr(c.acc(nt, 0), 4)}, v5, s[28:31], s48 offen offset:{nt * 64} sc1")
        if STAMPS:
            a("s_waitcnt vmcnt(0)")
            stamp(a, 3)
            stamp(a, 4); stamp(a, 5)
            stamp_flush(a, 8, 1, 2, 32, s_t=70, kid=kid)
        a.label(f"L_{name}_end")
        a("s_endpgm")
        return name, "grid=(256,1,1) block=(512,1,1) lds=139264", 208
    return g


gen_k3 = gen_splitk("k3_oproj_kernel", KA_WO, CTX_OFF, 16, 2)
gen_k6 = gen_splitk("k6_down_kernel", KA_WD, ACT_OFF, 18, 5)


def gen_reduce(name, do_ln):
    def g(a):
        kernel_header(a, name)
        a("s_cmp_ge_u32 s2, 256")
        a(f"s_cbranch_scc1 L_{name}_end")
        a(f"s_load_dwordx2 s[4:5], s[0:1], {KA_X if do_ln else KA_OUT}")
        a(f"s_load_dwordx2 s[12:13], s[0:1], {KA_WS}")
        a("v_lshrrev_b32 v1, 6, v0")
        a("v_and_b32 v2, 63, v0")
        a("s_nop 0")
        a("v_readfirstlane_b32 s32, v1")
        a("s_lshl_b32 s49, s2, 3")
        a("s_add_u32 s49, s49, s32")
        a("v_lshrrev_b32 v3, 1, v2")
        a("v_lshlrev_b32 v3, 4, v3")
        a("v_and_b32 v4, 1, v2")
        a("v_lshl_add_u32 v3, v4, 2, v3")
        a("v_lshlrev_b32 v4, 2, v3")
        a("v_lshlrev_b32 v5, 1, v3")
        a("s_mul_i32 s50, s49, 2304")
        a(f"s_add_u32 s50, s50, {PART_OFF}")
        a("s_mul_i32 s51, s49, 1152")
        a("s_waitcnt lgkmcnt(0)")
        stamp(a, 0)
        make_srd(a, 24, "s4", "s5", 2048 * 1152)
        make_srd(a, 28, "s12", "s13", WS_BYTES)
        for i in range(16, 88):
            a(f"v_mov_b32 v{i}, 0")
        for ks in range(4):
            b = 16 + 16 * ks
            a(f"buffer_load_dwordx4 v[{b}:{b + 3}], v4, s[28:31], s50 offen")
            a(f"buffer_load_dwordx4 v[{b + 4}:{b + 7}], v4, s[28:31], s50 offen offset:32")
            a("s_mov_b64 exec, 0xff")
            a(f"buffer_load_dwordx4 v[{b + 8}:{b + 11}], v4, s[28:31], s50 offen offset:2048")
            a(f"buffer_load_dwordx4 v[{b + 12}:{b + 15}], v4, s[28:31], s50 offen offset:2080")
            a("s_mov_b64 exec, -1")
            if ks < 3:
                a(f"s_add_u32 s50, s50, {2048 * 576 * 4}")
        if do_ln:
            rs, so = "s[24:27]", "s51"
        else:
            a(f"s_add_u32 s52, s51, {H_OFF}")
            rs, so = "s[28:31]", "s52"
        a(f"buffer_load_dwordx2 v[80:81], v5, {rs}, {so} offen")
        a(f"buffer_load_dwordx2 v[82:83], v5, {rs}, {so} offen offset:16")
        a("s_mov_b64 exec, 0xff")
        a(f"buffer_load_dwordx2 v[84:85], v5, {rs}, {so} offen offset:1024")
        a(f"buffer_load_dwordx2 v[86:87], v5, {rs}, {so} offen offset:1040")
        a("s_mov_b64 exec, -1")
        a("s_waitcnt vmcnt(0)")
        for i in range(16):
            a(f"v_add_f32 v{16 + i}, v{16 + i}, v{32 + i}")
            a(f"v_add_f32 v{48 + i}, v{48 + i}, v{64 + i}")
        for i in range(16):
            a(f"v_add_f32 v{16 + i}, v{16 + i}, v{48 + i}")
        for i in range(8):
            a(f"v_cvt_pk_bf16_f32 v6, v{16 + 2 * i}, v{17 + 2 * i}")
            a(f"v_lshlrev_b32 v{16 + 2 * i}, 16, v6")
            a(f"v_and_b32 v{17 + 2 * i}, 0xffff0000, v6")
            a(f"v_lshlrev_b32 v6, 16, v{80 + i}")
            a(f"v_and_b32 v7, 0xffff0000, v{80 + i}")
            a(f"v_add_f32 v{16 + 2 * i}, v{16 + 2 * i}, v6")
            a(f"v_add_f32 v{17 + 2 * i}, v{17 + 2 * i}, v7")
            a(f"v_cvt_pk_bf16_f32 v{80 + i}, v{16 + 2 * i}, v{17 + 2 * i}")
        if do_ln:
            a(f"s_add_u32 s52, s51, {H_OFF}")
            rs, so = "s[28:31]", "s52"
        else:
            rs, so = "s[24:27]", "s51"
        a(f"buffer_store_dwordx2 v[80:81], v5, {rs}, {so} offen")
        a(f"buffer_store_dwordx2 v[82:83], v5, {rs}, {so} offen offset:16")
        a("s_mov_b64 exec, 0xff")
        a(f"buffer_store_dwordx2 v[84:85], v5, {rs}, {so} offen offset:1024")
        a(f"buffer_store_dwordx2 v[86:87], v5, {rs}, {so} offen offset:1040")
        a("s_mov_b64 exec, -1")
        if do_ln:
            for i in range(8):
                a(f"v_lshlrev_b32 v{20 + 2 * i}, 16, v{80 + i}")
                a(f"v_and_b32 v{21 + 2 * i}, 0xffff0000, v{80 + i}")
            a("v_add_f32 v36, v20, v21")
            for i in range(22, 36):
                a(f"v_add_f32 v36, v36, v{i}")
            wave_sum(a, 36, 37, 38)
            a(f"v_mul_f32 v36, {1.0 / 576.0!r}, v36")
            a("v_mov_b32 v39, 0")
            for i in range(20, 28):
                a(f"v_sub_f32 v37, v{i}, v36")
                a("v_fmac_f32 v39, v37, v37")
            a("s_mov_b64 exec, 0xff")
            for i in range(28, 36):
                a(f"v_sub_f32 v37, v{i}, v36")
                a("v_fmac_f32 v39, v37, v37")
            a("s_mov_b64 exec, -1")
            wave_sum(a, 39, 37, 38)
            a(f"v_mul_f32 v39, {1.0 / 576.0!r}, v39")
            round_bf16(a, 39, 37)
            a("v_add_f32 v39, 0x3727c5ac, v39")
            round_bf16(a, 39, 37)
            a("v_sqrt_f32 v39, v39")
            a("s_nop 0")
            round_bf16(a, 39, 37)
            a("v_rcp_f32 v39, v39")
            round_bf16(a, 36, 37)
            for i in range(8):
                a(f"v_sub_f32 v{20 + 2 * i}, v{20 + 2 * i}, v36")
                a(f"v_sub_f32 v{21 + 2 * i}, v{21 + 2 * i}, v36")
                a(f"v_cvt_pk_bf16_f32 v37, v{20 + 2 * i}, v{21 + 2 * i}")
                a(f"v_lshlrev_b32 v{20 + 2 * i}, 16, v37")
                a(f"v_and_b32 v{21 + 2 * i}, 0xffff0000, v37")
                a(f"v_mul_f32 v{20 + 2 * i}, v{20 + 2 * i}, v39")
                a(f"v_mul_f32 v{21 + 2 * i}, v{21 + 2 * i}, v39")
                a(f"v_cvt_pk_bf16_f32 v{8 + i}, v{20 + 2 * i}, v{21 + 2 * i}")
            a("v_lshrrev_b32 v37, 2, v2")
            a("v_lshlrev_b32 v37, 17, v37")
            a("v_and_b32 v38, 3, v2")
            a("v_lshl_add_u32 v37, v38, 4, v37")
            a("s_lshl_b32 s50, s49, 6")
            a(f"s_add_u32 s50, s50, {HN_OFF}")
            a("buffer_store_dwordx4 v[8:11], v37, s[28:31], s50 offen")
            a(f"s_add_u32 s50, s50, {16 * 131072}")
            a("s_mov_b64 exec, 0xff")
            a("buffer_store_dwordx4 v[12:15], v37, s[28:31], s50 offen")
            a("s_mov_b64 exec, -1")
        if STAMPS:
            a("s_waitcnt vmcnt(0)")
            stamp(a, 1)
            stamp_flush(a, 2, 1, 2, 32, s_t=70, kid=(3 if do_ln else 6))
        a.label(f"L_{name}_end")
        a("s_endpgm")
        return name, "grid=(256,1,1) block=(512,1,1) lds=0", 88
    return g


gen_k4 = gen_reduce("k4_ln2_kernel", True)
gen_k7 = gen_reduce("k7_out_kernel", False)


def gen_k5(a):
    name = "k5_ffn1_kernel"
    kernel_header(a, name)
    a("s_cmp_ge_u32 s2, 256")
    a(f"s_cbranch_scc1 L_{name}_end")
    a(f"s_load_dwordx4 s[8:11], s[0:1], {KA_WG}")
    a(f"s_load_dwordx2 s[12:13], s[0:1], {KA_WS}")
    a("v_lshrrev_b32 v1, 6, v0")
    a("v_and_b32 v2, 63, v0")
    a("s_nop 0")
    a("v_readfirstlane_b32 s32, v1")
    a("s_and_b32 s35, s2, 7")
    a("s_lshl_b32 s35, s35, 2")
    a("s_lshr_b32 s48, s2, 3")
    a("s_and_b32 s48, s48, 3")
    a("s_add_u32 s35, s35, s48")
    a("s_lshr_b32 s34, s2, 5")
    a("s_and_b32 s36, s32, 3")
    a("s_lshr_b32 s37, s32, 2")
    a("s_waitcnt lgkmcnt(0)")
    stamp(a, 0)
    a("s_cmp_eq_u32 s37, 1")
    a("s_cselect_b32 s8, s10, s8")
    a("s_cselect_b32 s9, s11, s9")
    make_srd(a, 20, "s8", "s9", 576 * 9216)
    a(f"s_mov_b32 s47, {576 * 9216}")
    make_srd(a, 16, "s12", "s13", WS_BYTES)
    a(f"s_mov_b32 s46, {WS_BYTES}")
    make_srd(a, 28, "s12", "s13", WS_BYTES)
    TS, WS_ = 16384, 18432
    WBASE = 4 * TS
    vA0, vW0, vW1, vW2, vT, vWa, vWb = 64, 66, 67, 68, 69, 70, 71
    a("v_lshrrev_b32 v20, 2, v2")
    a("s_lshl_b32 s48, s32, 5")
    a("v_add_u32 v20, s48, v20")
    a("v_lshlrev_b32 v20, 6, v20")
    a("v_lshrrev_b32 v21, 4, v2")
    a("v_sub_u32 v21, 0, v21")
    a("v_and_b32 v21, 3, v21")
    a("v_and_b32 v22, 3, v2")
    a("v_xor_b32 v21, v21, v22")
    a(f"v_lshl_add_u32 {vr(vA0)}, v21, 4, v20")
    a("s_lshl_b32 s38, s34, 14")
    a(f"s_add_u32 s38, s38, {HN_OFF}")
    for j, vd in ((0, vW0), (1, vW1), (2, vW2)):
        a(f"v_add_u32 v20, {64 * j}, v2")
        div18(a, 21, 22, 20, 23)
        a("v_and_b32 v23, 1, v22")
        a("v_bfe_u32 v24, v22, 1, 1")
        a("v_lshl_or_b32 v23, v23, 1, v24")
        a("v_and_b32 v24, 28, v22")
        a("v_or_b32 v23, v23, v24")
        a("v_cmp_gt_u32 vcc, 16, v22")
        a("s_nop 1")
        a("v_cndmask_b32 v22, v22, v23, vcc")
        a("s_lshl_b32 s48, s36, 3")
        a("v_add_u32 v21, s48, v21")
        a("v_mul_u32_u24 v21, 9216, v21")
        a(f"v_lshl_add_u32 {vr(vd)}, v22, 4, v21")
    a("s_mul_i32 s39, s35, 288")
    a("s_lshl_b32 s40, s32, 11")
    a("s_mul_i32 s41, s32, 2304")
    a(f"s_add_u32 s41, s41, {WBASE}")
    a("v_and_b32 v62, 15, v2")
    a("v_lshrrev_b32 v61, 4, v2")
    a("v_lshrrev_b32 v20, 2, v62")
    a("v_sub_u32 v20, 0, v20")
    a("v_and_b32 v20, 3, v20")
    a("v_xor_b32 v20, v20, v61")
    a("s_lshl_b32 s48, s32, 5")
    a("v_add_u32 v21, s48, v62")
    a("v_lshlrev_b32 v21, 6, v21")
    a(f"v_lshl_add_u32 {vr(vT)}, v20, 4, v21")
    a("v_lshrrev_b32 v20, 5, v2")
    a("v_lshlrev_b32 v20, 4, v20")
    a("v_bfe_u32 v21, v2, 2, 3")
    a("v_add_u32 v20, v20, v21")
    a("v_mul_u32_u24 v20, 288, v20")
    a(f"v_add_u32 v20, {WBASE}, v20")
    a("v_and_b32 v21, 3, v2")
    a(f"v_lshl_add_u32 {vr(vWa)}, v21, 3, v20")
    a("v_and_b32 v22, 1, v2")
    a("v_lshl_add_u32 v20, v22, 4, v20")
    a("v_bfe_u32 v22, v2, 1, 1")
    a(f"v_lshl_add_u32 {vr(vWb)}, v22, 3, v20")
    a("s_mov_b32 s44, 0")
    c = GemmCfg()
    c.TN, c.TM, c.R, c.AHEAD, c.NSTEPS = 18, 2, 6, 5, 18
    c.NSW, c.WSLOT, c.NST, c.TSLOT, c.TPER = 4, WS_, 4, TS, 1
    c.TPOS = 0
    c.DMA_EVERY = 2
    c.swap = False
    c.acc = lambda nt, tt: 112 + (nt * 2 + tt) * 4
    c.tfrag = lambda buf, tt: 96 + buf * 8 + tt * 4
    c.wfrag = lambda r_: 72 + r_ * 4

    def wread(nt):
        pl, u = nt // 9, nt % 9
        r_ = vWb if u == 8 else vWa
        return [(r_, pl * 9216 + u * 32), (r_, pl * 9216 + u * 32 + 8 * 288)]
    c.wread = wread
    c.wadv = lambda nt: [vWa] if nt == 16 else ([vWb] if nt == 17 else [])
    c.tread = lambda q, tt: (vT, tt * 1024)
    c.tadv = lambda q: [vT]
    c.s_dA, c.s_dB, c.s_sl, c.s_dmaW, c.s_cnt, c.s_slotW = 50, 51, 52, 53, 45, 54
    c.s_dT, c.s_slT, c.s_dmaT, c.s_slotT = 55, 56, 57, 58

    def dmaW():
        def d0():
            a("s_add_u32 m0, s53, s41")
            a("s_nop 0")
            a(f"buffer_load_dwordx4 {vr(vW0)}, s[20:23], s39 offen lds")

        def d1():
            a("s_add_u32 m0, m0, 1024")
            a("s_nop 0")
            a(f"buffer_load_dwordx4 {vr(vW1)}, s[20:23], s39 offen lds")

        def d2():
            a("s_add_u32 m0, m0, 1024")
            a("s_mov_b64 exec, 0xffff")
            a(f"buffer_load_dwordx4 {vr(vW2)}, s[20:23], s39 offen lds")
            a("s_mov_b64 exec, -1")
        return [d0, d1, d2]
    c.dmaW = dmaW

    def dmaT(h):
        def d0():
            a("s_add_u32 m0, s57, s40")
            a("s_nop 0")
            a(f"buffer_load_dwordx4 {vr(vA0)}, s[16:19], s38 offen lds")

        def d1():
            a(f"buffer_load_dwordx4 {vr(vA0)}, s[16:19], s38 offen offset:1024 lds")
        return [d0, d1]
    c.dmaT = dmaT

    def advW():
        a(f"s_add_u32 s39, s39, {32 * 9216}")
    c.advW = advW

    def advT():
        a("s_add_u32 s38, s38, 131072")
        a("s_add_u32 s44, s44, 1")
        a(f"s_cmp_lt_u32 s44, {c.NSTEPS}")
        a("s_cselect_b32 s18, s46, 0")
        a("s_cselect_b32 s22, s47, 0")
    c.advT = advT
    gemm_prologue_and_loop(a, c, name)
    a(f"s_mov_b32 s48, {-math.log2(math.e)!r}")

    def act4(g0, u0):
        for r_ in range(4):
            a(f"v_mul_f32 v{20 + r_}, s48, v{g0 + r_}")
        for r_ in range(4):
            a(f"v_exp_f32 v{20 + r_}, v{20 + r_}")
        for r_ in range(4):
            a(f"v_add_f32 v{20 + r_}, 1.0, v{20 + r_}")
        for r_ in range(4):
            a(f"v_rcp_f32 v{20 + r_}, v{20 + r_}")
        for r_ in range(4):
            a(f"v_mul_f32 v{g0 + r_}, v{g0 + r_}, v{u0 + r_}")
        for r_ in range(4):
            a(f"v_mul_f32 v{g0 + r_}, v{g0 + r_}, v{20 + r_}")
    a("s_lshl_b32 s49, s34, 8")
    a("s_lshl_b32 s50, s32, 5")
    a("s_add_u32 s49, s49, s50")
    a("s_lshl_b32 s49, s49, 7")
    a(f"s_add_u32 s49, s49, {ACT_OFF}")
    a("s_mul_i32 s50, s35, 144")
    a("v_lshlrev_b32 v3, 7, v62")
    a("v_lshrrev_b32 v4, 1, v61")
    a("v_and_b32 v5, 1, v61")
    a("v_lshl_add_u32 v6, v5, 4, v3")
    a("v_lshl_add_u32 v7, v61, 3, v3")
    k = 0
    for P_ in range(4):
        a(f"s_add_u32 s51, s50, {32 * P_}")
        a("v_lshl_add_u32 v8, v4, 4, s51")
        a("v_lshrrev_b32 v9, 6, v8")
        a("v_lshlrev_b32 v9, 18, v9")
        a("v_and_b32 v8, 63, v8")
        a("v_lshl_add_u32 v9, v8, 1, v9")
        a(f"v_add_u32 v{10 + P_}, v9, v6")
        for tt in range(2):
            t = 32 + (k % 4) * 4
            k += 1
            for T_ in range(2):
                g0, u0 = c.acc(2 * P_ + T_, tt), c.acc(9 + 2 * P_ + T_, tt)
                act4(g0, u0)
                a(f"v_cvt_pk_bf16_f32 v{t + 2 * T_}, v{g0}, v{g0 + 1}")
                a(f"v_cvt_pk_bf16_f32 v{t + 2 * T_ + 1}, v{g0 + 2}, v{g0 + 3}")
            a(f"buffer_store_dwordx4 v[{t}:{t + 3}], v{10 + P_}, s[28:31], s49 offen offset:{tt * 2048}{STF}")
    a("s_add_u32 s51, s50, 128")
    a("s_lshr_b32 s52, s51, 6")
    a("s_lshl_b32 s52, s52, 18")
    a("s_and_b32 s51, s51, 63")
    a("s_lshl_b32 s51, s51, 1")
    a("s_add_u32 s52, s52, s51")
    a("s_add_u32 s49, s49, s52")
    for tt in range(2):
        t = 32 + (k % 4) * 4
        k += 1
        g0, u0 = c.acc(8, tt), c.acc(17, tt)
        act4(g0, u0)
        a(f"v_cvt_pk_bf16_f32 v{t}, v{g0}, v{g0 + 1}")
        a(f"v_cvt_pk_bf16_f32 v{t + 1}, v{g0 + 2}, v{g0 + 3}")
        a(f"buffer_store_dwordx2 v[{t}:{t + 1}], v7, s[28:31], s49 offen offset:{tt * 2048}")
    if STAMPS:
        a("s_waitcnt vmcnt(0)")
        stamp(a, 3)
        stamp(a, 4); stamp(a, 5)
        stamp_flush(a, 8, 1, 2, 32, s_t=70, kid=4)
    a.label(f"L_{name}_end")
    a("s_endpgm")
    return name, "grid=(256,1,1) block=(512,1,1) lds=139264", 256
```

```python
from gen_common import *
import math

QS_OFF = 100 * MB
SCALE_C = (128 ** -0.5) * math.log2(math.e)
NEGBIG = 0xf149f2ca
THR = 65536.0
FLOOR0 = 0xe0ad78ec


class Vm:
    def __init__(self):
        self.q = []

    def issue(self, tag):
        self.q.append(tag)

    def need(self, a, tags):
        idx = -1
        for i, t in enumerate(self.q):
            if t in tags:
                idx = i
        if idx < 0:
            return
        n = len(self.q) - 1 - idx
        assert n <= 63
        a(f"s_waitcnt vmcnt({n})")
        self.q = self.q[idx + 1:]


def gen_k12(a):
    from gen_gemm import gen_k1
    stores = gen_k1(a, fused=True)
    return gen_k2(a, k1_stores=stores)


def gen_k2(a, k1_stores=None, chain=False):
    fused = k1_stores is not None
    name = "k12_kernel" if fused else ("k27_kernel" if chain else "k2_attn_kernel")
    STF = " sc1" if (fused or chain) else globals()["STF"]
    if not fused:
        kernel_header(a, name)
    O = 192
    S = 160
    Q = 128
    NEGM = 112
    P = 96
    FR = 64
    PT = 48
    vK = 32
    vV = 40
    vL = 44
    vFloor = 45
    vLim = 46
    vLane16 = 27
    if not fused:
        a("s_cmp_ge_u32 s2, 256")
        a("s_cbranch_scc1 L_k67c_end" if chain else "s_cbranch_scc1 L_k2_end")
    else:
        a("s_waitcnt vmcnt(0)")
        a("s_barrier")
        flag_set(a, 32, 1, "xn")
    a(f"s_load_dwordx2 s[4:5], s[0:1], {KA_WQ}")
    a(f"s_load_dwordx2 s[6:7], s[0:1], {KA_WS}")
    a(f"s_load_dwordx2 s[8:9], s[0:1], {KA_WO}")
    a(f"s_load_dwordx4 s[12:15], s[0:1], {KA_WG}")
    a(f"s_load_dwordx2 s[10:11], s[0:1], {KA_WD}")
    a("v_lshrrev_b32 v1, 6, v0")
    a("v_and_b32 v2, 63, v0")
    a("s_nop 0")
    a("v_readfirstlane_b32 s32, v1")
    a("s_and_b32 s33, s2, 7")
    a("s_lshl_b32 s33, s33, 2")
    a("s_lshr_b32 s48, s2, 3")
    a("s_and_b32 s48, s48, 3")
    a("s_add_u32 s33, s33, s48")
    a("s_lshr_b32 s34, s2, 5")
    a("s_and_b32 s35, s32, 3")
    a("s_lshr_b32 s36, s32, 2")
    a(f"v_lshlrev_b32 {vr(vLane16)}, 4, v2")
    a("s_waitcnt lgkmcnt(0)")
    stamp(a, 3 if fused else 0)
    a("s_lshl_b32 s48, s33, 8")
    a("s_add_u32 s4, s4, s48")
    a("s_addc_u32 s5, s5, 0")
    a(f"s_sub_u32 s49, {576 * 8192}, s48")
    make_srd(a, 16, "s4", "s5", "s49")
    make_srd(a, 20, "s6", "s7", WS_BYTES)
    make_srd(a, 24, "s6", "s7", WS_BYTES)
    make_srd(a, 28, "s6", "s7", WS_BYTES)
    a("s_sub_u32 s48, 15, s34")
    a("s_cmp_eq_u32 s36, 1")
    a("s_cselect_b32 s48, s48, s34")
    a("s_lshl_b32 s48, s48, 2")
    a("s_add_u32 s48, s48, s35")
    a("s_mul_i32 s50, s48, 36864")
    a(f"s_add_u32 s50, s50, {XN_OFF}")
    vWq0, vWq1 = 24, 25
    a("v_lshrrev_b32 v3, 4, v2")
    a("v_bfe_u32 v4, v2, 2, 2")
    a("v_xor_b32 v4, v4, v3")
    a("v_lshlrev_b32 v4, 6, v4")
    a("v_and_b32 v5, 3, v2")
    a("v_lshl_add_u32 v4, v5, 4, v4")
    a("s_lshl_b32 s48, s32, 3")
    a("v_add_u32 v3, s48, v3")
    a(f"v_lshl_add_u32 {vr(vWq0)}, v3, 13, v4")
    a(f"v_add_u32 {vr(vWq1)}, {4 * 8192}, {vr(vWq0)}")
    a("s_lshl_b32 s51, s32, 11")
    a("s_add_u32 s51, s51, 65536")
    vm = Vm()
    XR = 20 if fused else 36
    XF = 48
    WR = 32
    vWa = 28

    def dma_wq(st):
        a(f"s_add_u32 m0, s51, {(st % 6) * 16384}")
        a(f"s_mov_b32 s52, {st * 64 * 8192}")
        a(f"buffer_load_dwordx4 {vr(vWq0)}, s[16:19], s52 offen lds")
        vm.issue(("W", st))
        a("s_add_u32 m0, m0, 1024")
        a("s_nop 0")
        a(f"buffer_load_dwordx4 {vr(vWq1)}, s[16:19], s52 offen lds")
        vm.issue(("W", st))

    def ld_x(s):
        if s % 4 == 0 and s > 0:
            a("s_add_u32 s50, s50, 4096")
        a(f"buffer_load_dwordx4 {vr(XF + 4 * (s % XR), 4)}, {vr(vLane16)}, s[20:23], s50 offen offset:{(s % 4) * 1024}")
        vm.issue(("X", s))

    LEAD = 4
    XR = 20 if fused else 36
    QO = (lambda dt: 144 + 32 * dt) if fused else (lambda dt: O + 16 * dt)
    if not fused:
        for st in range(LEAD):
            dma_wq(st)
            for s_ in range(4 * st, 4 * st + 4):
                ld_x(s_)
    else:
        for st in range(LEAD):
            dma_wq(st)

        def xn_mask(vl, vm_):
            a(f"v_lshrrev_b32 v19, 2, v{vl}")
            a("s_sub_u32 s48, 15, s34")
            a("v_cmp_eq_u32 vcc, s34, v19")
            a("v_cmp_eq_u32 s[60:61], s48, v19")
            a("s_or_b64 vcc, vcc, s[60:61]")
            a("v_mov_b32 v19, 0x80808080")
            a("s_nop 1")
            a(f"v_cndmask_b32 v{vm_}, 0, v19, vcc")
        k1_stores[0]()
        flag_wait(a, 32, 1, "xn", xn_mask)
        for s_ in range(4 * LEAD):
            ld_x(s_)
    a("s_lshl_b32 s48, s33, 19")
    a("s_bfe_u32 s59, s32, 0x10001")
    a("s_and_b32 s49, s32, 1")
    a("s_lshl_b32 s49, s49, 12")
    a("s_add_u32 s40, s48, s49")
    a(f"s_add_u32 s58, s40, {KP_OFF}")
    a("s_xor_b32 s49, s59, 1")
    a("s_lshl_b32 s49, s49, 13")
    a("s_add_u32 s40, s58, s49")
    a("s_lshl_b32 s49, s35, 12")
    a("s_add_u32 s41, s48, s49")
    a(f"s_add_u32 s41, s41, {VP_OFF}")
    a("s_lshl_b32 s42, s32, 12")
    a("s_add_u32 s45, s42, 32768")
    a("s_lshl_b32 s37, s34, 1")
    a("s_add_u32 s37, s37, 2")

    def dma_k(sK, track=None):
        a("s_mov_b32 m0, s42")
        a("s_xor_b32 s42, s42, 65536")
        for j in range(4):
            a(f"buffer_load_dwordx4 {vr(vLane16)}, s[24:27], {sK} offen offset:{j * 1024} lds")
            if track: track.issue(("KV", 0))

    def dma_v(sV, track=None):
        a("s_mov_b32 m0, s45")
        a("s_xor_b32 s45, s45, 65536")
        for j in range(4):
            a(f"buffer_load_dwordx4 {vr(vLane16)}, s[24:27], {sV} offen offset:{j * 1024} lds")
            if track: track.issue(("KV", 0))

    a("v_lshrrev_b32 v3, 5, v2")
    a("v_bfe_u32 v4, v2, 2, 2")
    a("v_lshl_add_u32 v3, v3, 3, v4")
    a("v_lshlrev_b32 v3, 8, v3")
    a("v_bfe_u32 v5, v2, 4, 1")
    a("v_lshl_add_u32 v3, v5, 5, v3")
    a("v_and_b32 v5, 3, v2")
    a("v_lshl_add_u32 v3, v5, 3, v3")
    a("v_add_u32 v3, 65536, v3")
    for dt in range(4):
        a(f"v_xor_b32 v5, {dt}, v4")
        a(f"v_lshl_add_u32 {vr(vWa + dt)}, v5, 6, v3")
    for dt in range(4):
        for i in range(16):
            a(f"v_mov_b32 {vr(QO(dt) + i)}, 0")
    lg = Lgkm()
    seq = [(st, s, dt) for st in range(9) for s in range(4) for dt in range(4)]
    AH = 3
    STQ = int(os.environ.get('STQ', '6'))

    def rd_wq(idx):
        st, s, dt = seq[idx]
        ring = idx % 4
        for i2 in range(2):
            a(f"ds_read_b64_tr_b16 {vr(WR + 4 * ring + 2 * i2, 2)}, {vr(vWa + dt)} offset:{(16 * s + 4 * i2) * 256}")
            lg.issue(("W", ring))
        if s == 3:
            d = 16384 if (st % 6) != 5 else -5 * 16384
            a(f"v_add_u32 {vr(vWa + dt)}, {d & 0xffffffff}, {vr(vWa + dt)}")

    vm.need(a, [("W", 0)])
    a("s_barrier")
    for i in range(AH):
        rd_wq(i)
    for idx, (st, s, dt) in enumerate(seq):
        if s == 0 and dt == 0:
            if st + 1 < 9:
                vm.need(a, [("W", st + 1)])
            if fused and st == 8:
                a("s_waitcnt vmcnt(0)")
                vm.q = []
            a("s_barrier")
            if fused and st == 8:
                flag_set(a, 32, 2, "kv")
            if st + LEAD < 9:
                dma_wq(st + LEAD)
                for s2_ in range(4 * (st + LEAD), 4 * (st + LEAD) + 4):
                    ld_x(s2_)
            if st + LEAD == 9 and not fused:
                dma_k("s58", vm)
                dma_v("s41", vm)
        if dt == 0:
            vm.need(a, [("X", 4 * st + s)])
        if idx + AH < len(seq):
            rd_wq(idx + AH)
        lg.need(a, [("W", idx % 4)])
        a(f"v_mfma_f32_32x32x16_bf16 {vr(QO(dt), 16)}, {vr(WR + 4 * (idx % 4), 4)}, {vr(XF + 4 * ((4 * st + s) % XR), 4)}, {vr(QO(dt), 16)}")
        if fused and idx % STQ == 2 and idx // STQ < 16:
            k1_stores[1](idx // STQ)
            vm.issue(("ST", 0))
    a("s_nop 7")
    a("s_nop 7")
    stamp(a, 4 if fused else 1)
    if fused:
        def kv_mask(vl, vm_):
            a(f"v_bfe_u32 v19, v{vl}, 1, 2")
            a("s_bfe_u32 s48, s33, 0x20001")
            a("v_cmp_eq_u32 vcc, s48, v19")
            a("s_lshr_b32 s48, s33, 3")
            a("s_lshl_b32 s48, s48, 3")
            a("s_lshl_b32 s48, 0x80, s48")
            a("v_mov_b32 v19, s48")
            a("s_nop 1")
            a(f"v_cndmask_b32 v{vm_}, 0, v19, vcc")
        flag_wait(a, 32, 2, "kv", kv_mask)
        dma_k("s58")
        dma_v("s41")
    a(f"s_mov_b32 s48, {SCALE_C!r}")
    for dt in range(4):
        for i in range(16):
            a(f"v_mul_f32 {vr(QO(dt) + i)}, s48, {vr(QO(dt) + i)}")
    for dt in range(4):
        for i in range(8):
            a(f"v_cvt_pk_bf16_f32 {vr(Q + 8 * dt + i)}, {vr(QO(dt) + 2 * i)}, {vr(QO(dt) + 2 * i + 1)}")
    a("s_barrier")
    a("s_lshl_b32 s48, s35, 13")
    a("s_add_u32 s48, s48, 131072")
    a(f"v_add_u32 v22, s48, {vr(vLane16)}")
    a("s_cmp_eq_u32 s36, 0")
    a("s_cbranch_scc1 L_k2_qw2")
    for i in range(8):
        a(f"ds_write_b128 v22, {vr(Q + 4 * i, 4)} offset:{i * 1024}")
    a.label("L_k2_qw2")
    a("v_and_b32 v3, 31, v2")
    a("v_lshrrev_b32 v4, 5, v2")
    a("s_lshl_b32 s48, s36, 14")
    a("v_bfe_u32 v5, v2, 2, 2")
    a("v_xor_b32 v5, v5, v4")
    a("v_lshlrev_b32 v6, 6, v3")
    a("v_add_u32 v6, s48, v6")
    a(f"v_lshl_add_u32 {vr(vK)}, v5, 4, v6")
    a(f"v_xor_b32 {vr(vK + 1)}, 32, {vr(vK)}")
    a(f"v_add_u32 {vr(vV)}, 32768, {vr(vK)}")
    a(f"v_add_u32 {vr(vV + 1)}, 32768, {vr(vK + 1)}")
    a("v_lshlrev_b32 v6, 2, v4")
    a(f"v_sub_u32 {vr(vLim)}, v3, v6")
    a("s_sub_u32 s56, 15, s34")
    a("s_lshl_b32 s56, s56, 7")
    a("s_lshl_b32 s48, s35, 5")
    a("s_add_u32 s56, s56, s48")
    a("s_lshl_b32 s39, s34, 7")
    a("s_add_u32 s39, s39, s48")
    a("s_sub_u32 s53, s37, 1")
    a("s_cmp_eq_u32 s36, 1")
    a("s_cselect_b32 s39, s56, s39")
    a("s_cselect_b32 s53, 100, s53")
    make_srd(a, 16, "s8", "s9", 4096 * 576 * 2)
    a("s_lshl_b32 s46, s2, 3")
    a("s_add_u32 s46, s46, s32")
    a(f"s_mul_i32 s46, s46, {11 * 128}")
    a("s_mov_b32 s47, 8")
    a("v_lshlrev_b32 v20, 7, v2")

    def dstamp(k):
        if not STAMPS:
            return
        a("s_waitcnt lgkmcnt(0)")
        a("s_memtime s[70:71]")
        a("s_waitcnt lgkmcnt(0)")
        a(f"s_mov_b32 s{72 + (8 if fused else 3) + k}, s70")
    SA, SB = S, S + 16
    PA, PB = P, P + 8
    PSA, PSB = 8, 9

    def sm_part(Sx, Px, ps, part):
        out = []
        b = 8 * part
        for k in range(4):
            t0, t1 = PT + (2 * k) % 8, PT + (2 * k + 1) % 8
            out.append(f"v_exp_f32 {vr(t0)}, {vr(Sx + b + 2 * k)}")
            out.append(f"v_exp_f32 {vr(t1)}, {vr(Sx + b + 2 * k + 1)}")
        for k in range(4):
            t0, t1 = PT + (2 * k) % 8, PT + (2 * k + 1) % 8
            if part == 0 and k == 0:
                out.append(f"v_add_f32 {vr(ps)}, {vr(t0)}, {vr(t1)}")
            else:
                out.append(f"v_add_f32 {vr(ps)}, {vr(ps)}, {vr(t0)}")
                out.append(f"v_add_f32 {vr(ps)}, {vr(ps)}, {vr(t1)}")
            out.append(f"v_cvt_pk_bf16_f32 {vr(Px + 4 * part + k)}, {vr(t0)}, {vr(t1)}")
        ex = [o for o in out if o.startswith("v_exp")]
        co = [o for o in out if not o.startswith("v_exp")]
        res = ex[:3]
        ex = ex[3:]
        while ex or co:
            if ex:
                res.append(ex.pop(0))
            take = 2 if len(co) > 2 * len(ex) else 1
            for _ in range(take):
                if co:
                    res.append(co.pop(0))
        return res

    ool = Asm()

    def mask(Sx, sT, t, tag):
        a(f"s_lshl_b32 s48, {sT}, 6")
        a("s_sub_i32 s48, s39, s48")
        a(f"s_cmp_lt_i32 s48, {31 + 32 * t}")
        a(f"s_cbranch_scc1 L_k2_{tag}_mask")
        a.label(f"L_k2_{tag}_nomask")
        o = ool
        o.label(f"L_k2_{tag}_mask")
        o(f"s_sub_i32 s48, s48, {32 * t}")
        o(f"v_add_u32 v11, s48, {vr(vLim)}")
        o(f"v_mov_b32 v10, {NEGBIG}")
        o("s_nop 7")
        for i in range(18):
            if i < 16:
                cst = 8 * (i // 4) + (i % 4)
                o(f"v_cmp_le_i32 s[{60 + 2 * (i % 3)}:{61 + 2 * (i % 3)}], {cst}, v11")
            else:
                o("s_nop 0")
            if i >= 2:
                j = (i - 2) % 3
                o(f"v_cndmask_b32 {vr(Sx + i - 2)}, v10, {vr(Sx + i - 2)}, s[{60 + 2 * j}:{61 + 2 * j}]")
        o(f"s_branch L_k2_{tag}_nomask")

    def tile_of(dst, src, add):
        a(f"s_add_u32 {dst}, {src}, {add}")
        a(f"s_lshl_b32 s49, {dst}, 1")
        a("s_sub_u32 s49, s49, s37")
        a("s_add_u32 s49, s49, s36")
        a(f"s_cmp_lt_u32 {dst}, s37")
        a(f"s_cselect_b32 {dst}, {dst}, s49")

    def chk(Sx, Sy, Px, ps, tag):
        a(f"v_cmp_nge_f32 vcc, s57, {vr(ps)}")
        a(f"s_cbranch_vccnz L_k2_{tag}_rare")
        a.label(f"L_k2_{tag}_go")
        a(f"v_add_f32 {vr(vL)}, {vr(vL)}, {vr(ps)}")
        o = ool
        o.label(f"L_k2_{tag}_rare")
        o(f"s_mov_b32 s57, {THR!r}")
        o("s_nop 7")
        o("s_nop 3")
        o(f"v_max3_f32 v10, {vr(Sx)}, {vr(Sx + 1)}, {vr(vFloor)}")
        for i in range(2, 16, 2):
            o(f"v_max3_f32 v10, v10, {vr(Sx + i)}, {vr(Sx + i + 1)}")
        o("v_mov_b32 v11, v10")
        o("s_nop 1")
        o("v_permlane32_swap_b32 v10, v11")
        o("s_nop 1")
        o("v_max_f32 v10, v10, v11")
        o(f"v_mov_b32 {vr(vFloor)}, 0")
        o("v_max_f32 v11, 0, v10")
        o("v_exp_f32 v11, -v11")
        for i in range(16):
            o(f"v_sub_f32 {vr(Sx + i)}, {vr(Sx + i)}, v10")
        for i in range(16):
            o(f"v_sub_f32 {vr(Sy + i)}, {vr(Sy + i)}, v10")
        for i in range(16):
            o(f"v_sub_f32 {vr(NEGM + i)}, {vr(NEGM + i)}, v10")
        for i in range(64):
            o(f"v_mul_f32 {vr(O + i)}, {vr(O + i)}, v11")
        o(f"v_mul_f32 {vr(vL)}, {vr(vL)}, v11")
        for part in range(2):
            for x in sm_part(Sx, Px, ps, part):
                o(x)
            o("s_nop 0")
        o(f"s_branch L_k2_{tag}_go")

    def togK_l():
        return [f"v_xor_b32 {vr(vK + i)}, 0x10000, {vr(vK + i)}" for i in range(2)]

    def togV_l():
        return [f"v_xor_b32 {vr(vV + i)}, 0x10000, {vr(vV + i)}" for i in range(2)]

    def rd(n, lg):
        seg, i = (n % 32) // 8, n % 8
        dst = vr(FR + 4 * (n % 8), 4)
        if os.environ.get("A_NOLDS"):
            return
        if seg in (0, 2):
            a(f"ds_read_b128 {dst}, {vr(vK + (i & 1))} offset:{(seg // 2) * 8192 + (i >> 1) * 2048}")
        else:
            dt = i % 4
            a(f"ds_read_b128 {dst}, {vr(vV + i // 4)} offset:{(seg // 2) * 8192 + dt * 2048}")
        lg.issue(("F", n % 8))

    def mfma(n):
        seg, i = n // 8, n % 8
        fr = vr(FR + 4 * (n % 8), 4)
        if seg in (0, 2):
            Sx = SB if seg == 0 else SA
            c_ = vr(NEGM, 16) if i == 0 else vr(Sx, 16)
            a(f"v_mfma_f32_32x32x16_bf16 {vr(Sx, 16)}, {fr}, {vr(Q + 4 * i, 4)}, {c_}")
        else:
            dt = i % 4
            Px = PA if seg == 1 else PB
            a(f"v_mfma_f32_32x32x16_bf16 {vr(O + 16 * dt, 16)}, {fr}, {vr(Px + 4 * (i // 4), 4)}, {vr(O + 16 * dt, 16)}")

    def spread(lst, positions):
        d = {p: [] for p in positions}
        k = len(lst)
        m = len(positions)
        idx = 0
        for j, p in enumerate(positions):
            cnt = k // m + (1 if j < k % m else 0)
            d[p] = lst[idx:idx + cnt]
            idx += cnt
        return d

    def dma_list(kind, sreg):
        m0s = "s42" if kind == "K" else "s45"

        def first():
            a(f"s_mov_b32 m0, {m0s}")
            a(f"s_xor_b32 {m0s}, {m0s}, 65536")
            a(f"buffer_load_dwordx4 {vr(vLane16)}, s[24:27], {sreg} offen lds")
        fs = [first]
        for j in range(1, 4):
            fs.append(lambda j=j: a(f"buffer_load_dwordx4 {vr(vLane16)}, s[24:27], {sreg} offen offset:{j * 1024} lds"))
        return fs

    def pf():
        a("s_mov_b64 exec, 0x7ff")
        a("buffer_load_dword v21, v20, s[16:19], s46 offen")
        a("s_mov_b64 exec, -1")
        a("s_sub_u32 s47, s47, 1")
        a(f"s_add_u32 s46, s46, {2048 * 11 * 128}")
        a("s_bitcmp1_b32 s47, 0")
        a(f"s_cbranch_scc0 L_k2_pfrot")
        a.label("L_k2_pfdone")
        o = ool
        o.label("L_k2_pfrot")
        o(f"s_sub_u32 s46, s46, {2 * 2048 * 11 * 128}")
        o("s_mov_b32 s16, s12")
        o("s_and_b32 s17, s13, 0xffff")
        o("s_cmp_gt_i32 s47, 0")
        o(f"s_cselect_b32 s18, {576 * 4608 * 2}, 0")
        o("s_mov_b64 s[12:13], s[14:15]")
        o("s_mov_b64 s[14:15], s[10:11]")
        o("s_branch L_k2_pfdone")

    def ctx_addr(a, sq):
        a("s_lshl_b32 s48, s33, 14")
        a(f"s_add_u32 s48, s48, {sq}")
        a("s_lshl_b32 s48, s48, 5")
        a(f"s_add_u32 s48, s48, {CTX_OFF}")
        a("v_and_b32 v3, 31, v2")
        a("v_lshrrev_b32 v4, 5, v2")
        a("v_lshlrev_b32 v3, 5, v3")
        a("v_lshl_add_u32 v3, v4, 4, v3")

    def dma_offsets():
        a("s_add_u32 s50, s38, s59")
        tile_of("s50", "s50", 2)
        a("s_lshl_b32 s50, s50, 14")
        a("s_add_u32 s50, s50, s40")
        tile_of("s51", "s38", 2)
        a("s_mov_b32 s43, s51")
        a("s_lshl_b32 s51, s51, 14")
        a("s_add_u32 s51, s51, s41")
        a("s_cmp_lt_i32 s38, 15")
        a(f"s_cselect_b32 s26, {WS_BYTES}, 0")

    DQ = int(os.environ.get("DQ", "2"))
    R0 = int(os.environ.get('R0', '26'))
    AHD = 8
    for i in range(64):
        a(f"v_mov_b32 {vr(O + i)}, 0")
    for i in range(16):
        a(f"v_mov_b32 {vr(NEGM + i)}, 0")
    for i in range(8):
        a(f"v_mov_b32 {vr(PB + i)}, 0")
    a(f"v_mov_b32 {vr(vL)}, 0")
    a(f"v_mov_b32 {vr(vFloor)}, {FLOOR0}")
    a("s_mov_b32 s57, -1.0")
    a("s_mov_b32 s38, -1")
    a("s_mov_b32 s55, 0")
    a("s_waitcnt vmcnt(0) lgkmcnt(0)")
    a("s_barrier")
    a("s_lshl_b32 s50, s59, 14")
    a("s_add_u32 s50, s50, s40")
    dma_k("s50")
    a("s_mov_b64 exec, 1")
    a("buffer_load_dword v21, v20, s[20:23], s40 offen")
    a("s_mov_b64 exec, -1")
    lg = Lgkm()
    for n in range(16, 24):
        rd(n, lg)
    dma_offsets()
    for n in range(16, 24):
        lg.need(a, [("F", n % 8)])
        mfma(n)
    for x in togK_l():
        a(x)
    a("s_nop 7")
    mask(SA, "s55", 0, "p0")
    dstamp(0)

    def post4(a_):
        pass

    if os.environ.get("PRIO"):
        a(f"s_cmp_eq_u32 s36, {os.environ['PRIO']}")
        a("s_cbranch_scc0 L_k2_loop")
        a("s_setprio 1")
    a.label("L_k2_loop")
    lg = Lgkm()
    a("s_waitcnt vmcnt(1)")
    a("s_barrier")
    dl = dma_list("K", "s50") + dma_list("V", "s51")
    if os.environ.get("A_NODMA"):
        dl = []
    novalu = os.environ.get("A_NOVALU")
    valu = {}
    valu.update(spread(sm_part(SA, PA, PSA, 0), list(range(R0, 32))))
    valu.update(spread(sm_part(SA, PA, PSA, 1), list(range(0, 8))))
    valu.update(spread(["s_nop 1", "s_nop 1"] + sm_part(SB, PB, PSB, 0), list(range(8, 16))))
    valu[15] = valu[15] + togK_l()
    valu.update(spread(sm_part(SB, PB, PSB, 1), list(range(16, 24))))
    valu[23] = valu[23] + togV_l()
    valu.update({p: [] for p in range(24, R0)})
    if novalu:
        for k in valu:
            valu[k] = [x for x in valu[k] if x.startswith("v_xor")]
    order = list(range(R0, 32)) + list(range(0, R0))
    for n in range(32, R0 + AHD):
        rd(n, lg)
    for k, n in enumerate(order):
        nn = n + AHD if n >= R0 else n + AHD
        lg.need(a, [("F", n % 8)]) if n < R0 else None
        mfma(n)
        if n >= R0:
            rd(n + AHD, lg)
        elif n + AHD < 32:
            rd(n + AHD, lg)
        for x in valu[n]:
            a(x)
        if dl and k % DQ == 0:
            dl.pop(0)()
            if not dl:
                pf()
        if n == 31:
            a("s_cmp_eq_u32 s38, s53")
            a("s_cbranch_scc1 L_k2_fin_small")
            a.label("L_k2_fin_small_done")
            a("s_mov_b32 s54, s55")
            a("s_mov_b32 s55, s43")
            a("s_add_u32 s38, s38, 1")
            o = ool
            o.label("L_k2_fin_small")
            o(f"v_mov_b32 v10, {vr(vL)}")
            o(f"v_mov_b32 v11, {vr(vL)}")
            ctx_addr(o, "s52")
            o("v_permlane32_swap_b32 v10, v11")
            o("s_nop 1")
            o("v_add_f32 v10, v10, v11")
            o("v_rcp_f32 v10, v10")
            o("s_nop 0")
            for c4 in range(8):
                for i in range(8):
                    o(f"v_mul_f32 {vr(O + 8 * c4 + i)}, {vr(O + 8 * c4 + i)}, v10")
                for i in range(4):
                    o(f"v_cvt_pk_bf16_f32 {vr(O + 8 * c4 + i)}, {vr(O + 8 * c4 + 2 * i)}, {vr(O + 8 * c4 + 2 * i + 1)}")
                o(f"buffer_store_dwordx4 {vr(O + 8 * c4, 4)}, v3, s[20:23], s48 offen{STF}")
                o("s_add_u32 s48, s48, 65536")
            o("s_nop 1")
            for i in range(64):
                o(f"v_mov_b32 {vr(O + i)}, 0")
            o(f"v_mov_b32 {vr(vL)}, 0")
            o(f"v_mov_b32 {vr(vFloor)}, {FLOOR0}")
            o("s_mov_b32 s57, -1.0")
            o("s_branch L_k2_fin_small_done")
        if n == 7:
            mask(SB, "s54", 1, "m1")
            chk(SA, SB, PA, PSA, "a")
            a("s_cmp_eq_u32 s38, s53")
            a("s_cbranch_scc1 L_k2_sw1")
            a.label("L_k2_sw1_done")
            o = ool
            o.label("L_k2_sw1")
            for i in range(8):
                o(f"ds_read_b128 {vr(Q + 4 * i, 4)}, v22 offset:{i * 1024}")
            o("s_mov_b32 s52, s39")
            o("s_mov_b32 s39, s56")
            o("s_branch L_k2_sw1_done")
        if n == 23:
            mask(SA, "s55", 0, "m0")
            chk(SB, SA, PB, PSB, "b")
        if n == 24:
            dma_offsets()
    a("s_waitcnt lgkmcnt(0)")
    a("s_cmp_lt_i32 s38, 16")
    a("s_cbranch_scc1 L_k2_loop")
    for n in range(R0, 32):
        mfma(n)
    dstamp(1)
    a(f"v_mov_b32 v12, {vr(NEGM)}")
    a(f"v_mov_b32 v10, {vr(vL)}")
    a(f"v_mov_b32 v11, {vr(vL)}")
    a("s_nop 1")
    a("v_permlane32_swap_b32 v10, v11")
    a("s_nop 1")
    a("v_add_f32 v13, v10, v11")
    a("s_barrier")
    a("s_and_b32 s48, s42, 0x10000")
    a("s_and_b32 s49, s45, 0x18000")
    a("s_lshl_b32 s50, s35, 13")
    a("s_add_u32 s48, s48, s50")
    a("s_add_u32 s49, s49, s50")
    a("s_cmp_eq_u32 s36, 1")
    a("s_cselect_b32 s50, s48, s49")
    a("s_cselect_b32 s49, s49, s48")
    a(f"v_add_u32 v3, s49, {vr(vLane16)}")
    a(f"v_add_u32 v4, s50, {vr(vLane16)}")
    a("s_lshl_b32 s49, s32, 9")
    a("s_add_u32 s49, s49, 131072")
    a("s_xor_b32 s50, s49, 2048")
    a("v_lshlrev_b32 v5, 3, v2")
    a("v_add_u32 v6, s50, v5")
    a("v_add_u32 v5, s49, v5")
    a("ds_write_b64 v5, v[12:13]")
    a("s_cmp_eq_u32 s36, 1")
    a("s_cbranch_scc1 L_k2_m1")
    for i in range(8):
        a(f"ds_write_b128 v3, {vr(O + 32 + 4 * i, 4)} offset:{i * 1024}")
    a("s_branch L_k2_m2")
    a.label("L_k2_m1")
    for i in range(8):
        a(f"ds_write_b128 v3, {vr(O + 4 * i, 4)} offset:{i * 1024}")
    for i in range(32):
        a(f"v_mov_b32 {vr(O + i)}, {vr(O + 32 + i)}")
    a.label("L_k2_m2")
    a("s_waitcnt lgkmcnt(0)")
    a("s_barrier")
    a("ds_read_b64 v[14:15], v6")
    for i in range(8):
        a(f"ds_read_b128 {vr(O + 32 + 4 * i, 4)}, v4 offset:{i * 1024}")
    a("s_waitcnt lgkmcnt(8)")
    a("v_min_f32 v16, v12, v14")
    a("v_sub_f32 v17, v16, v12")
    a("v_sub_f32 v18, v16, v14")
    a("v_exp_f32 v17, v17")
    a("v_exp_f32 v18, v18")
    a("s_nop 0")
    a("v_mul_f32 v19, v13, v17")
    a("v_fmac_f32 v19, v15, v18")
    a("v_rcp_f32 v19, v19")
    a("s_nop 0")
    a("v_mul_f32 v17, v17, v19")
    a("v_mul_f32 v18, v18, v19")
    a("s_waitcnt lgkmcnt(0)")
    for i in range(32):
        a(f"v_mul_f32 {vr(O + i)}, {vr(O + i)}, v17")
        a(f"v_fmac_f32 {vr(O + i)}, {vr(O + 32 + i)}, v18")
    for i in range(16):
        a(f"v_cvt_pk_bf16_f32 {vr(S + i)}, {vr(O + 2 * i)}, {vr(O + 2 * i + 1)}")
    ctx_addr(a, "s56")
    a("s_lshl_b32 s49, s36, 18")
    a("s_add_u32 s48, s48, s49")
    for i in range(4):
        a(f"buffer_store_dwordx4 {vr(S + 4 * i, 4)}, v3, s[20:23], s48 offen{STF}")
        a("s_add_u32 s48, s48, 65536")
    a.label("L_k2_fin")
    if STAMPS:
        a("s_waitcnt vmcnt(0)")
        stamp(a, 10 if fused else 2)
        stamp_flush(a, 11 if fused else 5, 1, 2, 32, s_t=70, kid=(0 if fused else 1))
    if chain:
        a("s_waitcnt vmcnt(0)")
        a("s_barrier")
        wflag_set(a, 32, 4, 28, "k2out")
        return ool
    a.label("L_k2_end")
    a("s_endpgm")
    a.L += ool.L
    return name, "grid=(256,1,1) block=(512,1,1) lds=163840", 256
```

```python
MB = 1 << 20
XN_OFF = 0
KP_OFF = 4 * MB
VP_OFF = 20 * MB
CTX_OFF = 36 * MB
PART_OFF = 52 * MB
H_OFF = 72 * MB
HN_OFF = 76 * MB
ACT_OFF = 80 * MB
PART2_OFF = 128 * MB
WS_BYTES = 268435456

KA_X, KA_CKV, KA_WQ, KA_WUK, KA_WUV, KA_WO, KA_BX, KA_WG, KA_WU, KA_WD, KA_OUT, KA_DBG, KA_WS = [8 * i for i in range(13)]


class Asm:
    def __init__(self):
        self.L = []

    def __call__(self, s):
        for line in s.split("\n"):
            line = line.strip()
            if line:
                self.L.append("    " + line)

    def label(self, l):
        self.L.append(l + ":")

    def comment(self, s):
        self.L.append("    ; " + s)

    def text(self):
        return "\n".join(self.L) + "\n"


class Lgkm:
    def __init__(self):
        self.q = []

    def issue(self, tag):
        self.q.append(tag)

    def need(self, a, tags):
        idx = -1
        for i, t in enumerate(self.q):
            if t in tags:
                idx = i
        if idx < 0:
            return
        n = len(self.q) - 1 - idx
        assert n <= 15, n
        a(f"s_waitcnt lgkmcnt({n})")
        self.q = self.q[idx + 1:]


def vr(b, n=1):
    return f"v{b}" if n == 1 else f"v[{b}:{b + n - 1}]"


def sr(b, n=1):
    return f"s{b}" if n == 1 else f"s[{b}:{b + n - 1}]"


def kernel_header(a, name):
    a.L.append(f".globl {name}")
    a.L.append(".p2align 8")
    a.L.append(f".type {name},@function")
    a.label(name)


def kernel_desc(name, vgpr=256, sgpr=102):
    acc = (vgpr + 3) // 4 * 4
    return f""".amdhsa_kernel {name}
  .amdhsa_next_free_vgpr {vgpr}
  .amdhsa_next_free_sgpr {sgpr}
  .amdhsa_accum_offset {acc}
  .amdhsa_group_segment_fixed_size 0
  .amdhsa_kernarg_size 104
  .amdhsa_user_sgpr_count 2
  .amdhsa_user_sgpr_kernarg_segment_ptr 1
  .amdhsa_system_sgpr_workgroup_id_x 1
.end_amdhsa_kernel
"""


def wave_sum(a, v, t0, t1):
    a("s_nop 1")
    a(f"v_add_f32_dpp {vr(v)}, {vr(v)}, {vr(v)} quad_perm:[1,0,3,2] row_mask:0xf bank_mask:0xf")
    a("s_nop 1")
    a(f"v_add_f32_dpp {vr(v)}, {vr(v)}, {vr(v)} quad_perm:[2,3,0,1] row_mask:0xf bank_mask:0xf")
    a("s_nop 1")
    a(f"v_add_f32_dpp {vr(v)}, {vr(v)}, {vr(v)} row_half_mirror row_mask:0xf bank_mask:0xf")
    a("s_nop 1")
    a(f"v_add_f32_dpp {vr(v)}, {vr(v)}, {vr(v)} row_mirror row_mask:0xf bank_mask:0xf")
    a(f"v_mov_b32 {vr(t0)}, {vr(v)}")
    a("s_nop 1")
    a(f"v_permlane16_swap_b32 {vr(v)}, {vr(t0)}")
    a("s_nop 1")
    a(f"v_add_f32 {vr(v)}, {vr(v)}, {vr(t0)}")
    a(f"v_mov_b32 {vr(t0)}, {vr(v)}")
    a("s_nop 1")
    a(f"v_permlane32_swap_b32 {vr(v)}, {vr(t0)}")
    a("s_nop 1")
    a(f"v_add_f32 {vr(v)}, {vr(v)}, {vr(t0)}")


def round_bf16(a, v, t):
    a(f"v_cvt_pk_bf16_f32 {vr(t)}, {vr(v)}, {vr(v)}")
    a(f"v_lshlrev_b32 {vr(v)}, 16, {vr(t)}")


def make_srd(a, s, base_lo, base_hi, nrec):
    a(f"s_mov_b32 {sr(s)}, {base_lo}")
    a(f"s_and_b32 {sr(s + 1)}, {base_hi}, 0xffff")
    a(f"s_mov_b32 {sr(s + 2)}, {nrec}")
    a(f"s_mov_b32 {sr(s + 3)}, 0x00020000")


STAMP_OFF = 200 * MB
import os
STAMPS = bool(os.environ.get("STAMPS"))


def stamp(a, idx, s_t=70, srd=28):
    if not STAMPS:
        return
    a("s_waitcnt lgkmcnt(0)")
    a(f"s_memtime s[{s_t}:{s_t + 1}]")
    a("s_waitcnt lgkmcnt(0)")
    a(f"v_mov_b32 v254, s{s_t}") if False else None
    a(f"s_mov_b32 s{s_t + 2 + idx}, s{s_t}")
    if idx == 0:
        a(f"s_memrealtime s[{s_t}:{s_t + 1}]")
        a("s_waitcnt lgkmcnt(0)")
        a(f"s_mov_b32 s{s_t + 2 + 14}, s{s_t}")


def stamp_flush(a, n, vtmp0, vtmp1, s_w, s_t=90, srd=28, kid=0):
    if not STAMPS:
        return
    if s_t == 70:
        a(f"s_memrealtime s[{s_t}:{s_t + 1}]")
        a("s_waitcnt lgkmcnt(0)")
        a(f"s_mov_b32 s{s_t + 2 + 15}, s{s_t}")
    a(f"s_lshl_b32 s{s_t}, s2, 3")
    a(f"s_add_u32 s{s_t}, s{s_t}, s{s_w}")
    a(f"s_lshl_b32 s{s_t}, s{s_t}, 6")
    a(f"s_add_u32 s{s_t}, s{s_t}, {STAMP_OFF + kid * MB}")
    a(f"v_mov_b32 v{vtmp0}, 0")
    for i in list(range(n)) + ([14, 15] if s_t == 70 else []):
        a(f"v_mov_b32 v{vtmp1}, s{s_t + 2 + i}")
        a(f"buffer_store_dword v{vtmp1}, v{vtmp0}, s[{srd}:{srd + 3}], s{s_t} offen offset:{4 * i}")


def prefetch(a, ptrs, s_w, srd, vtmp, vdst, lanes, s_tmp):
    if os.environ.get("NOPF"):
        return
    a(f"s_lshl_b32 s{s_tmp}, s2, 3")
    a(f"s_add_u32 s{s_tmp}, s{s_tmp}, s{s_w}")
    a(f"s_mul_i32 s{s_tmp}, s{s_tmp}, {lanes * 128}")
    a(f"v_and_b32 v{vtmp}, 63, v0")
    a(f"v_lshlrev_b32 v{vtmp}, 7, v{vtmp}")
    a(f"s_mov_b64 exec, {(1 << lanes) - 1}")
    for i, (lo, hi, nb) in enumerate(ptrs):
        make_srd(a, srd, lo, hi, nb)
        a(f"buffer_load_dword v{vdst + i}, v{vtmp}, s[{srd}:{srd + 3}], s{s_tmp} offen")
    a("s_mov_b64 exec, -1")

STF = os.environ.get("STF", "")


DBG_SRD = 92


def dbg_setup(a):
    a(f"s_load_dwordx2 s[90:91], s[0:1], {KA_DBG}")


def dbg_srd(a):
    make_srd(a, DBG_SRD, "s90", "s91", 256)


def flag_set(a, s_w, val, tag, vt=(16, 17)):
    a(f"s_cmp_lg_u32 s{s_w}, 0")
    a(f"s_cbranch_scc1 L_fs_{tag}")
    a(f"v_mov_b32 v{vt[0]}, {val}")
    a(f"v_mov_b32 v{vt[1]}, s2")
    a("s_mov_b64 exec, 1")
    a(f"buffer_store_byte v{vt[0]}, v{vt[1]}, s[{DBG_SRD}:{DBG_SRD + 3}], 0 offen sc1")
    a("s_mov_b64 exec, -1")
    a.label(f"L_fs_{tag}")


def flag_wait(a, s_w, val, tag, mask_code, vt=(16, 17, 18)):
    a(f"s_cmp_lg_u32 s{s_w}, 0")
    a(f"s_cbranch_scc1 L_fw_{tag}_done")
    a(f"v_and_b32 v{vt[0]}, 63, v0")
    mask_code(vt[0], vt[1])
    a(f"v_lshlrev_b32 v{vt[0]}, 2, v{vt[0]}")
    a("s_mov_b32 s96, 0x100000")
    a.label(f"L_fw_{tag}_loop")
    a(f"buffer_load_dword v{vt[2]}, v{vt[0]}, s[{DBG_SRD}:{DBG_SRD + 3}], 0 offen sc1")
    a("s_waitcnt vmcnt(0)")
    a(f"v_or_b32 v{vt[2]}, 0x80808080, v{vt[2]}")
    a(f"v_subrev_u32 v{vt[2]}, {val * 0x01010101}, v{vt[2]}")
    a(f"v_and_b32 v{vt[2]}, v{vt[2]}, v{vt[1]}")
    a(f"v_cmp_ne_u32 vcc, v{vt[2]}, v{vt[1]}")
    a("s_nop 1")
    a(f"s_cbranch_vccz L_fw_{tag}_done")
    a(f"s_sleep {os.environ.get('SLP', '8')}")
    a("s_sub_u32 s96, s96, 1")
    a("s_cmp_lg_u32 s96, 0")
    a(f"s_cbranch_scc1 L_fw_{tag}_loop")
    a.label(f"L_fw_{tag}_done")
    a("s_barrier")


FLG_OFF = 120 * MB
NPHASE = 8


def wflag_zero(a, s_w, srd, vt=(16, 17)):
    a(f"s_lshl_b32 s96, s{s_w}, 8")
    a("s_add_u32 s96, s96, s2")
    a("s_lshl_b32 s96, s96, 7")
    a(f"s_add_u32 s96, s96, {FLG_OFF}")
    a(f"v_mov_b32 v{vt[0]}, 0")
    a("s_mov_b64 exec, 1")
    a(f"buffer_store_dword v{vt[0]}, v{vt[0]}, s[{srd}:{srd + 3}], s96 offen sc1")
    a("s_mov_b64 exec, -1")


def wflag_set(a, s_w, ph, srd, tag, vt=(16, 17)):
    a(f"s_cmp_lg_u32 s{s_w}, 0")
    a(f"s_cbranch_scc1 L_ws_{tag}")
    a("s_lshl_b32 s96, s2, 7")
    a(f"s_add_u32 s96, s96, {FLG_OFF + ph * 256 * 128}")
    a(f"v_mov_b32 v{vt[0]}, 1")
    a(f"v_mov_b32 v{vt[1]}, 0")
    a("s_mov_b64 exec, 1")
    a(f"buffer_store_dword v{vt[0]}, v{vt[1]}, s[{srd}:{srd + 3}], s96 offen sc1")
    a("s_mov_b64 exec, -1")
    a.label(f"L_ws_{tag}")


def wflag_wait(a, s_w, ph, srd, tag, npeers, peer_code, vt=(16, 17, 18)):
    a(f"s_cmp_lg_u32 s{s_w}, 0")
    a(f"s_cbranch_scc1 L_ww_{tag}_done")
    a(f"v_and_b32 v{vt[0]}, 63, v0")
    peer_code(vt[0], vt[1])
    a(f"v_lshlrev_b32 v{vt[1]}, 7, v{vt[1]}")
    a(f"s_mov_b32 s97, {FLG_OFF + ph * 256 * 128}")
    a("s_mov_b32 s96, 0x100000")
    a(f"s_mov_b64 exec, {(1 << npeers) - 1}")
    a.label(f"L_ww_{tag}_loop")
    a(f"buffer_load_dword v{vt[2]}, v{vt[1]}, s[{srd}:{srd + 3}], s97 offen sc1")
    a("s_waitcnt vmcnt(0)")
    a(f"v_cmp_ne_u32 vcc, 1, v{vt[2]}")
    a("s_nop 1")
    a(f"s_cbranch_vccz L_ww_{tag}_ok")
    a(f"s_sleep {os.environ.get('SLP', '2')}")
    a("s_sub_u32 s96, s96, 1")
    a("s_cmp_lg_u32 s96, 0")
    a(f"s_cbranch_scc1 L_ww_{tag}_loop")
    a.label(f"L_ww_{tag}_ok")
    a("s_mov_b64 exec, -1")
    a.label(f"L_ww_{tag}_done")
    a("s_barrier")
```

```python
from gen_common import *


class GemmCfg:
    pass


ENV = os.environ.get


def gemm_prologue_and_loop(a, c, tag):
    TN, TM, R, AH = c.TN, c.TM, c.R, c.AHEAD
    NSW, WSLOT, NST, TSLOT, TPER = c.NSW, c.WSLOT, c.NST, c.TSLOT, c.TPER
    lg = Lgkm()

    def ring_adv(sreg, slot, ns):
        a(f"s_add_u32 {sr(sreg)}, {sr(sreg)}, {slot}")
        a(f"s_cmp_eq_u32 {sr(sreg)}, {ns * slot}")
        a(f"s_cselect_b32 {sr(sreg)}, 0, {sr(sreg)}")

    def finW():
        c.advW()
        ring_adv(c.s_dmaW, WSLOT, NSW)

    def finT():
        c.advT()
        ring_adv(c.s_dmaT, TSLOT, NST)

    def rd_w(nt, ring, dreg):
        for j, (ar, imm) in enumerate(c.wread(nt)):
            if ENV("NOLDS"):
                continue
            a(f"ds_read_b64_tr_b16 {vr(c.wfrag(ring) + 2 * j, 2)}, {vr(ar)} offset:{imm}")
            lg.issue(("W", ring))
        for r_ in c.wadv(nt):
            a(f"v_add_u32 {vr(r_)}, {sr(dreg)}, {vr(r_)}")

    def rd_t(buf, tt, dreg):
        ar, imm = c.tread(buf, tt)
        if not ENV("NOLDS"):
            a(f"ds_read_b128 {vr(c.tfrag(buf, tt), 4)}, {vr(ar)} offset:{imm}")
            lg.issue(("T", buf))
        if tt == TM - 1:
            for r_ in c.tadv(buf):
                a(f"v_add_u32 {vr(r_)}, {sr(dreg)}, {vr(r_)}")

    a(f"s_mov_b32 {sr(c.s_dmaW)}, 0")
    a(f"s_mov_b32 {sr(c.s_dmaT)}, 0")
    stamp(a, 7)
    DW = len(c.dmaW())
    DT = len(c.dmaT(0))
    issued = []
    mid_done = False
    if TPER == 1:
        assert NST == NSW
        if getattr(c, "pre_T", None):
            for s in range(NSW - 1):
                for f in c.dmaW():
                    f(); issued.append(("W", s))
                finW()
            c.pre_T()
            for s in range(NSW - 1):
                for f in c.dmaT(0):
                    f(); issued.append(("T", 0 if s < 2 else s))
                finT()
        else:
            for s in range(NSW - 1):
                for f in c.dmaW():
                    f(); issued.append(("W", s))
                finW()
                for f in c.dmaT(0):
                    f(); issued.append(("T", s))
                finT()
        VM_LOOP = (NSW - 3) * (DW + DT)
    else:
        tq = [(t, h) for t in range(NST - 1) for h in range(2)] + [(NST - 1, 0)]
        for s in range(NSW - 1):
            for f in c.dmaW():
                f(); issued.append(("W", s))
            finW()
            n_t = 2 if len(tq) > (NSW - 1 - s) else 1
            for _ in range(n_t):
                if tq:
                    t, h = tq.pop(0)
                    for f in c.dmaT(h):
                        f(); issued.append(("T", t))
                    if h == 1:
                        finT()
            if s == int(ENV("MIDAT", "99")) and getattr(c, "mid", None):
                c.mid(len(issued))
                mid_done = True
        assert not tq
        VM_LOOP = (NSW - 3) * (DW + DT) + DT
    if getattr(c, "mid", None) and not mid_done:
        c.mid(len(issued))
    for nt in range(TN):
        for tt in range(TM):
            for r_ in range(4):
                a(f"v_mov_b32 {vr(c.acc(nt, tt) + r_)}, 0")
    a(f"s_mov_b32 {sr(c.s_dB)}, {WSLOT}")
    a(f"s_mov_b32 {sr(c.s_slotW)}, {WSLOT}")
    a(f"s_mov_b32 {sr(c.s_sl)}, 0")
    a(f"s_mov_b32 {sr(c.s_dT)}, {TSLOT}")
    a(f"s_mov_b32 {sr(c.s_slotT)}, {TSLOT}")
    a(f"s_mov_b32 {sr(c.s_slT)}, 0")
    stamp(a, 6)
    last0 = max(i for i, x in enumerate(issued) if x[1] == 0)
    a(f"s_waitcnt vmcnt({len(issued) - 1 - last0})")
    a("s_barrier")
    stamp(a, 1)
    TPOS = c.TPOS
    order = []
    for n in range(TN):
        if n + AH >= TN:
            order.append(("W", n + AH - TN))
        if 0 <= n - TPOS < TM:
            order.append(("T", n - TPOS))
    for kind, i in order:
        if kind == "W":
            rd_w(i, i % R, c.s_dB)
        else:
            rd_t(0, i, c.s_dT)
    q0 = list(lg.q)
    a(f"s_mov_b32 {sr(c.s_cnt)}, {c.NSTEPS // 2}")
    a.label(f"L_{tag}_loop")
    for p in range(2):
        a(f"s_waitcnt vmcnt({VM_LOOP})")
        if not ENV("NOBAR"):
            a("s_barrier")
        if p == 0 and getattr(c, "inloop", None):
            c.inloop(tag)
        a(f"s_mov_b32 {sr(c.s_dA)}, {sr(c.s_dB)}")
        a(f"s_add_u32 {sr(c.s_sl)}, {sr(c.s_sl)}, 1")
        a(f"s_cmp_eq_u32 {sr(c.s_sl)}, {NSW}")
        a(f"s_cselect_b32 {sr(c.s_sl)}, 0, {sr(c.s_sl)}")
        a(f"s_cmp_eq_u32 {sr(c.s_sl)}, {NSW - 1}")
        a(f"s_cselect_b32 {sr(c.s_dB)}, {(-(NSW - 1) * WSLOT) & 0xffffffff}, {sr(c.s_slotW)}")
        if TPER == 1 or p == 1:
            a(f"s_add_u32 {sr(c.s_slT)}, {sr(c.s_slT)}, 1")
            a(f"s_cmp_eq_u32 {sr(c.s_slT)}, {NST}")
            a(f"s_cselect_b32 {sr(c.s_slT)}, 0, {sr(c.s_slT)}")
            a(f"s_cmp_eq_u32 {sr(c.s_slT)}, {NST - 1}")
            a(f"s_cselect_b32 {sr(c.s_dT)}, {(-(NST - 1) * TSLOT) & 0xffffffff}, {sr(c.s_slotT)}")
        h = 0 if TPER == 1 else (1 - p)
        dmas = c.dmaW() + [finW] + c.dmaT(h) + ([finT] if (TPER == 1 or h == 1) else [])
        if ENV("NODMA"):
            dmas = []
        allp = [(n, tt) for n in range(TN) for tt in range(TM)]
        nd = DW + DT
        frac = float(ENV("DFRAC", "0.8"))
        slots = [allp[int(j * len(allp) * frac / nd)] for j in range(nd)]
        k = 0
        for n in range(TN):
            gi = p * TN + n
            nt2 = n + AH
            if nt2 < TN:
                rd_w(nt2, (gi + AH) % R, c.s_dA)
            else:
                rd_w(nt2 - TN, (gi + AH) % R, c.s_dB)
            if 0 <= n - TPOS < TM:
                rd_t(p ^ 1, n - TPOS, c.s_dT)
            need = [("W", gi % R)]
            if n == 0:
                need.append(("T", p))
            lg.need(a, need)
            for tt in range(TM):
                w_, t_ = vr(c.wfrag(gi % R), 4), vr(c.tfrag(p, tt), 4)
                ac = vr(c.acc(n, tt), 4)
                if c.swap:
                    a(f"v_mfma_f32_16x16x32_bf16 {ac}, {t_}, {w_}, {ac}")
                else:
                    a(f"v_mfma_f32_16x16x32_bf16 {ac}, {w_}, {t_}, {ac}")
                if (n, tt) in slots and dmas:
                    f = dmas.pop(0)
                    f()
                    while dmas and dmas[0] in (finW, finT):
                        dmas.pop(0)()
        assert not dmas
    assert lg.q == q0[len(q0) - len(lg.q):], (lg.q, q0)
    a(f"s_sub_u32 {sr(c.s_cnt)}, {sr(c.s_cnt)}, 1")
    a(f"s_cmp_lg_u32 {sr(c.s_cnt)}, 0")
    a(f"s_cbranch_scc1 L_{tag}_loop")
    a("s_waitcnt lgkmcnt(0)")
    a("s_nop 7")
    a("s_nop 7")
    stamp(a, 2)


def gen_k1(a, fused=False):
    name = "k12_kernel" if fused else "k1_kv_kernel"
    STF = " sc1" if fused else globals()["STF"]
    PFMODE = ENV("PFMODE", "loop")
    kernel_header(a, name)
    a("s_cmp_ge_u32 s2, 256")
    a("s_cbranch_scc1 L_k2_end" if fused else "s_cbranch_scc1 L_k1_end")
    if fused:
        dbg_setup(a)
    a(f"s_load_dwordx4 s[4:7], s[0:1], {KA_X}")
    a(f"s_load_dwordx4 s[8:11], s[0:1], {KA_WUK}")
    a(f"s_load_dwordx2 s[12:13], s[0:1], {KA_WS}")
    a(f"s_load_dwordx2 s[14:15], s[0:1], {KA_WQ}")
    a("v_lshrrev_b32 v1, 6, v0")
    a("v_and_b32 v2, 63, v0")
    a("s_nop 0")
    a("v_readfirstlane_b32 s32, v1")
    a("s_and_b32 s34, s2, 7")
    a("s_lshl_b32 s34, s34, 2")
    a("s_lshr_b32 s48, s2, 3")
    a("s_and_b32 s48, s48, 3")
    a("s_add_u32 s34, s34, s48")
    a("s_lshr_b32 s33, s2, 5")
    a("s_lshr_b32 s35, s32, 1")
    a("s_and_b32 s36, s32, 1")
    a("s_lshl_b32 s40, s32, 11")
    a("s_waitcnt lgkmcnt(0)")
    stamp(a, 0)
    a("s_lshl_b32 s48, s33, 18")
    a("s_add_u32 s6, s6, s48")
    a("s_addc_u32 s7, s7, 0")
    make_srd(a, 16, "s6", "s7", 256 * 1024)
    a(f"s_mov_b32 s46, {256 * 1024}")
    a("s_cmp_ge_u32 s34, 16")
    a("s_cselect_b32 s8, s10, s8")
    a("s_cselect_b32 s9, s11, s9")
    a("s_and_b32 s48, s34, 15")
    a("s_lshl_b32 s48, s48, 9")
    a("s_add_u32 s8, s8, s48")
    a("s_addc_u32 s9, s9, 0")
    a(f"s_sub_u32 s47, {512 * 8192}, s48")
    make_srd(a, 20, "s8", "s9", "s47")
    make_srd(a, 24, "s4", "s5", 2048 * 1152)
    make_srd(a, 28, "s12", "s13", WS_BYTES)
    if fused:
        dbg_srd(a)
    wflag_zero(a, 32, 28)
    a("s_lshl_b32 s49, s2, 3")
    a("s_add_u32 s49, s49, s32")
    a("s_mul_i32 s50, s49, 1152")
    a("v_lshlrev_b32 v3, 4, v2")
    for i in range(8, 12):
        a(f"v_mov_b32 v{i}, 0")
    a("buffer_load_dwordx4 v[4:7], v3, s[24:27], s50 offen")
    a("s_mov_b64 exec, 0xff")
    a("buffer_load_dwordx4 v[8:11], v3, s[24:27], s50 offen offset:1024")
    a("s_mov_b64 exec, -1")
    vA = 56
    vW0, vW1 = 66, 67
    vT0, vT1 = 70, 71
    vWa = 72
    WBASE = 3 * 32768
    a("v_lshrrev_b32 v20, 3, v2")
    a("s_lshl_b32 s48, s32, 5")
    a("v_add_u32 v20, s48, v20")
    a("v_lshlrev_b32 v20, 10, v20")
    a("v_lshrrev_b32 v21, 5, v2")
    a("v_and_b32 v22, 7, v2")
    a("v_bfe_u32 v24, v2, 4, 1")
    a("v_lshlrev_b32 v24, 2, v24")
    a("v_xor_b32 v22, v22, v24")
    for j in range(4):
        a(f"v_sub_u32 v23, {(-2 * (j >> 1)) & 3}, v21")
        a("v_and_b32 v23, 3, v23")
        a("v_xor_b32 v23, v23, v22")
        a("v_lshl_add_u32 v23, v23, 4, v20")
        a(f"v_add_u32 {vr(vA + j)}, {j * 8 * 1024}, v23")
    a("v_lshrrev_b32 v20, 5, v2")
    a("v_bfe_u32 v21, v2, 1, 4")
    a("v_and_b32 v22, 1, v2")
    a("s_and_b32 s48, s35, 1")
    a("s_lshl_b32 s48, s48, 2")
    a("s_lshl_b32 s51, s32, 2")
    for j, vd in ((0, vW0), (1, vW1)):
        a(f"v_add_u32 v23, {2 * j}, v20")
        a("v_or_b32 v24, s48, v23")
        a("v_xor_b32 v24, v24, v21")
        a("v_lshrrev_b32 v25, 1, v24")
        a("v_lshlrev_b32 v25, 2, v25")
        a("v_and_b32 v24, 1, v24")
        a("v_add_u32 v25, v25, v24")
        a("v_lshl_add_u32 v25, v22, 1, v25")
        a("v_add_u32 v23, s51, v23")
        a("v_lshlrev_b32 v23, 13, v23")
        a(f"v_lshl_add_u32 {vr(vd)}, v25, 4, v23")
    a("v_and_b32 v62, 15, v2")
    a("v_lshrrev_b32 v61, 4, v2")
    a("v_bfe_u32 v20, v2, 3, 1")
    a("v_lshlrev_b32 v20, 4, v20")
    a("v_and_b32 v21, 7, v2")
    a("v_add_u32 v60, v20, v21")
    a("v_lshrrev_b32 v20, 2, v62")
    a("v_sub_u32 v20, 0, v20")
    a("v_and_b32 v20, 3, v20")
    a("v_xor_b32 v20, v20, v61")
    a("v_bfe_u32 v21, v2, 1, 1")
    a("v_lshl_or_b32 v20, v21, 2, v20")
    a("s_lshl_b32 s48, s35, 6")
    a("v_add_u32 v21, s48, v60")
    a("v_lshlrev_b32 v21, 7, v21")
    a(f"v_lshl_add_u32 {vr(vT0)}, v20, 4, v21")
    a(f"v_xor_b32 {vr(vT1)}, 64, {vr(vT0)}")
    a("v_bfe_u32 v20, v2, 2, 2")
    a("v_and_b32 v21, 1, v61")
    a("v_lshl_or_b32 v21, v21, 2, v20")
    a("v_lshl_add_u32 v22, v61, 3, v20")
    a("v_lshlrev_b32 v22, 9, v22")
    a("v_and_b32 v23, 3, v2")
    a("v_lshl_add_u32 v22, v23, 3, v22")
    a("s_lshl_b32 s48, s36, 8")
    a(f"s_add_u32 s48, s48, {WBASE}")
    a("v_add_u32 v22, s48, v22")
    for nt in range(8):
        a(f"v_xor_b32 v23, {nt}, v21")
        a(f"v_lshl_add_u32 {vr(vWa + nt)}, v23, 5, v22")
    a("s_mov_b32 s37, 0")
    a("s_mov_b32 s38, 0")

    a("s_mov_b32 s44, 0")
    a("s_mov_b32 s53, 0")
    a("s_lshl_b32 s54, s32, 12")
    a(f"s_add_u32 s40, s40, {WBASE}")
    c = GemmCfg()
    c.TN, c.TM, c.R, c.AHEAD, c.NSTEPS = 8, 4, 4, 3, 16
    c.NSW, c.WSLOT, c.NST, c.TSLOT, c.TPER = 4, 16384, 3, 32768, 2
    c.TPOS = 0
    c.DMA_EVERY = 4
    c.acc = lambda nt, tt: 128 + (nt * 4 + tt) * 4
    c.tfrag = lambda buf, tt: 96 + buf * 16 + tt * 4
    c.wfrag = lambda r_: 80 + r_ * 4
    c.wread = lambda nt: [(vWa + nt, 0), (vWa + nt, 2048)]
    c.wadv = lambda nt: [vWa + nt]
    c.tread = lambda q, tt: ((vT0, vT1)[q], (32 * (tt >> 1) + 8 * (tt & 1)) * 128)
    c.tadv = lambda q: [(vT0, vT1)[q]]
    c.s_dA, c.s_dB, c.s_sl, c.s_dmaW, c.s_cnt, c.s_slotW = 41, 42, 43, 39, 45, 52
    c.s_dT, c.s_slT, c.s_dmaT, c.s_slotT = 55, 56, 57, 58

    def dmaW():
        def d2():
            a("s_add_u32 m0, s39, s40")
            a("s_nop 0")
            a(f"buffer_load_dwordx4 {vr(vW0)}, s[20:23], s38 offen lds")

        def d3():
            a("s_add_u32 m0, m0, 1024")
            a("s_nop 0")
            a(f"buffer_load_dwordx4 {vr(vW1)}, s[20:23], s38 offen lds")
        return [d2, d3]
    c.dmaW = dmaW

    def dmaT(h):
        def d0():
            a("s_add_u32 m0, s57, s54")
            if h:
                a("s_add_u32 m0, m0, 2048")
            a("s_nop 0")
            a(f"buffer_load_dwordx4 {vr(vA + 2 * h)}, s[16:19], s37 offen lds")

        def d1():
            a("s_add_u32 m0, m0, 1024")
            a("s_nop 0")
            a(f"buffer_load_dwordx4 {vr(vA + 2 * h + 1)}, s[16:19], s37 offen lds")
        return [d0, d1]
    c.dmaT = dmaT

    def advW():
        a(f"s_add_u32 s38, s38, {32 * 8192}")
        a("s_add_u32 s44, s44, 1")
        a(f"s_cmp_lt_u32 s44, {c.NSTEPS}")
        a("s_cselect_b32 s22, s47, 0")
    c.advW = advW

    def advT():
        a("s_add_u32 s37, s37, 128")
        a("s_add_u32 s53, s53, 1")
        a(f"s_cmp_lt_u32 s53, {c.NSTEPS // 2}")
        a("s_cselect_b32 s18, s46, 0")
    c.advT = advT

    def mid(nis):
        stamp(a, 4)
        a(f"s_waitcnt vmcnt({nis})")
        stamp(a, 5)
        for i in range(8):
            a(f"v_lshlrev_b32 v{20 + 2 * i}, 16, v{4 + i}")
            a(f"v_and_b32 v{21 + 2 * i}, 0xffff0000, v{4 + i}")
        a("v_add_f32 v36, v20, v21")
        for i in range(22, 36):
            a(f"v_add_f32 v36, v36, v{i}")
        wave_sum(a, 36, 37, 38)
        a(f"v_mul_f32 v36, {1.0 / 576.0!r}, v36")
        a("v_mov_b32 v39, 0")
        for i in range(20, 28):
            a(f"v_sub_f32 v37, v{i}, v36")
            a("v_fmac_f32 v39, v37, v37")
        a("s_mov_b64 exec, 0xff")
        for i in range(28, 36):
            a(f"v_sub_f32 v37, v{i}, v36")
            a("v_fmac_f32 v39, v37, v37")
        a("s_mov_b64 exec, -1")
        wave_sum(a, 39, 37, 38)
        a(f"v_mul_f32 v39, {1.0 / 576.0!r}, v39")
        round_bf16(a, 39, 37)
        a("v_add_f32 v39, 0x3727c5ac, v39")
        round_bf16(a, 39, 37)
        a("v_sqrt_f32 v39, v39")
        a("s_nop 0")
        round_bf16(a, 39, 37)
        a("v_rcp_f32 v39, v39")
        round_bf16(a, 36, 37)
        for i in range(8):
            a(f"v_sub_f32 v{20 + 2 * i}, v{20 + 2 * i}, v36")
            a(f"v_sub_f32 v{21 + 2 * i}, v{21 + 2 * i}, v36")
            a(f"v_cvt_pk_bf16_f32 v37, v{20 + 2 * i}, v{21 + 2 * i}")
            a(f"v_lshlrev_b32 v{20 + 2 * i}, 16, v37")
            a(f"v_and_b32 v{21 + 2 * i}, 0xffff0000, v37")
            a(f"v_mul_f32 v{20 + 2 * i}, v{20 + 2 * i}, v39")
            a(f"v_mul_f32 v{21 + 2 * i}, v{21 + 2 * i}, v39")
            a(f"v_cvt_pk_bf16_f32 v{4 + i}, v{20 + 2 * i}, v{21 + 2 * i}")
        a("s_lshr_b32 s50, s49, 5")
        a("s_mul_i32 s50, s50, 36864")
        a("s_and_b32 s51, s49, 31")
        a("s_lshl_b32 s51, s51, 4")
        a("s_add_u32 s50, s50, s51")
        a(f"s_add_u32 s50, s50, {XN_OFF}")
        a("v_lshrrev_b32 v37, 1, v2")
        a("v_lshlrev_b32 v37, 10, v37")
        a("v_and_b32 v38, 1, v2")
        a("v_lshl_add_u32 v37, v38, 9, v37")
        a(f"buffer_store_dwordx4 v[4:7], v37, s[28:31], s50 offen{STF}")
        a(f"s_add_u32 s50, s50, {32 * 1024}")
        a("s_mov_b64 exec, 0xff")
        a(f"buffer_store_dwordx4 v[8:11], v37, s[28:31], s50 offen{STF}")
        a("s_mov_b64 exec, -1")
        if PFMODE == "mid":
            prefetch(a, [("s14", "s15", 576 * 8192)], 32, 24, 50, 51, 18, 48)
    c.mid = mid

    def inloop(tag):
        a(f"s_cmp_lg_u32 s45, {ENV('PFIT', '6')}")
        a(f"s_cbranch_scc1 L_{tag}_nopf")
        prefetch(a, [("s14", "s15", 576 * 8192)], 32, 24, 50, 51, 18, 48)
        a.label(f"L_{tag}_nopf")
    if PFMODE == "loop":
        c.inloop = inloop

    a("s_cmp_ge_u32 s34, 16")
    a("s_cbranch_scc1 L_k1_vpath")
    c.swap = False
    gemm_prologue_and_loop(a, c, "k1k")
    VA = 12 if fused else 24
    SB = "s66" if fused else "s48"
    ST = "s68" if fused else "s49"

    def kv_addr(off):
        a("s_and_b32 s48, s34, 15")
        a("s_lshl_b32 s48, s48, 1")
        a("s_add_u32 s48, s48, s36")
        a("s_lshl_b32 s48, s48, 6")
        a("s_lshl_b32 s49, s33, 3")
        a("s_add_u32 s48, s48, s49")
        a("s_lshl_b32 s49, s35, 1")
        a("s_add_u32 s48, s48, s49")
        a("s_lshl_b32 s48, s48, 13")
        a(f"s_add_u32 {SB}, s48, {off}")
        a("v_bfe_u32 v20, v62, 2, 1")
        a("v_xor_b32 v20, v20, v61")
        a("v_lshlrev_b32 v21, 6, v60")
        a(f"v_lshl_add_u32 v{VA}, v20, 4, v21")
        a(f"v_xor_b32 v{VA + 1}, 32, v{VA}")

    def k_addr():
        kv_addr(KP_OFF)

    def v_addr():
        kv_addr(VP_OFF)

    def k_store():
        k = 0
        for tt in range(4):
            for P in range(4):
                t = 32 + (k % 4) * 4
                k += 1
                a0, a1 = c.acc(2 * P, tt), c.acc(2 * P + 1, tt)
                a(f"s_add_u32 {ST}, {SB}, {(tt >> 1) * 8192 + P * 2048}")
                a(f"v_cvt_pk_bf16_f32 v{t}, v{a0}, v{a0 + 1}")
                a(f"v_cvt_pk_bf16_f32 v{t + 1}, v{a0 + 2}, v{a0 + 3}")
                a(f"v_cvt_pk_bf16_f32 v{t + 2}, v{a1}, v{a1 + 1}")
                a(f"v_cvt_pk_bf16_f32 v{t + 3}, v{a1 + 2}, v{a1 + 3}")
                a(f"buffer_store_dwordx4 v[{t}:{t + 3}], v{VA + (tt & 1)}, s[28:31], {ST} offen offset:{(tt & 1) * 512}{STF}")

    def v_store():
        k = 0
        for nt in range(8):
            P, T = nt >> 1, nt & 1
            for Q in range(2):
                t = 32 + (k % 4) * 4
                k += 1
                a0, a1 = c.acc(nt, 2 * Q), c.acc(nt, 2 * Q + 1)
                a(f"s_add_u32 {ST}, {SB}, {Q * 8192 + P * 2048}")
                a(f"v_cvt_pk_bf16_f32 v{t}, v{a0}, v{a0 + 1}")
                a(f"v_cvt_pk_bf16_f32 v{t + 1}, v{a0 + 2}, v{a0 + 3}")
                a(f"v_cvt_pk_bf16_f32 v{t + 2}, v{a1}, v{a1 + 1}")
                a(f"v_cvt_pk_bf16_f32 v{t + 3}, v{a1 + 2}, v{a1 + 3}")
                a(f"buffer_store_dwordx4 v[{t}:{t + 3}], v{VA + T}, s[28:31], {ST} offen offset:{T * 512}{STF}")

    def fin():
        if STAMPS:
            a("s_waitcnt vmcnt(0)")
            stamp(a, 3)
            stamp_flush(a, 8, 1, 2, 32, s_t=70)
    if fused:
        k_addr()
        a("s_mov_b32 s67, 0")
        a("s_branch L_k12_mid")
    else:
        if PFMODE == "end":
            prefetch(a, [("s14", "s15", 576 * 8192)], 32, 16, 50, 51, 18, 48)
        k_addr()
        k_store()
        fin()
        a("s_endpgm")
    a.label("L_k1_vpath")
    c.swap = True
    gemm_prologue_and_loop(a, c, "k1v")
    if fused:
        v_addr()
        a("s_mov_b32 s67, 1")
        a.label("L_k12_mid")

        def pack():
            a("s_cmp_eq_u32 s67, 1")
            a("s_cbranch_scc1 L_k12_vpk")
            for P in range(4):
                for tt in range(4):
                    a0, a1 = c.acc(2 * P, tt), c.acc(2 * P + 1, tt)
                    a(f"v_cvt_pk_bf16_f32 v{a0}, v{a0}, v{a0 + 1}")
                    a(f"v_cvt_pk_bf16_f32 v{a0 + 1}, v{a0 + 2}, v{a0 + 3}")
                    a(f"v_cvt_pk_bf16_f32 v{a0 + 2}, v{a1}, v{a1 + 1}")
                    a(f"v_cvt_pk_bf16_f32 v{a0 + 3}, v{a1 + 2}, v{a1 + 3}")
            a("s_branch L_k12_pkdone")
            a.label("L_k12_vpk")
            for P in range(4):
                for cc in range(4):
                    src = 128 + 32 * P + 8 * cc
                    d = 128 + 32 * P + 4 * cc
                    for j in range(4):
                        a(f"v_cvt_pk_bf16_f32 v{d + j}, v{src + 2 * j}, v{src + 2 * j + 1}")
            a.label("L_k12_pkdone")

        def store(k):
            P, cc = k // 4, k % 4
            d = 128 + 32 * P + 4 * cc
            offK = (cc >> 1) * 8192 + P * 2048 + (cc & 1) * 512
            offV = (cc & 1) * 8192 + P * 2048 + (cc >> 1) * 512
            a("s_cmp_eq_u32 s67, 1")
            a(f"s_cbranch_scc1 L_k12_sv{k}")
            a(f"s_add_u32 s68, s66, {offK}")
            a(f"buffer_store_dwordx4 v[{d}:{d + 3}], v{VA + (cc & 1)}, s[28:31], s68 offen sc1")
            a(f"s_branch L_k12_sd{k}")
            a.label(f"L_k12_sv{k}")
            a(f"s_add_u32 s68, s66, {offV}")
            a(f"buffer_store_dwordx4 v[{d}:{d + 3}], v{VA + (cc >> 1)}, s[28:31], s68 offen sc1")
            a.label(f"L_k12_sd{k}")
        return pack, store
    if PFMODE == "end":
        prefetch(a, [("s14", "s15", 576 * 8192)], 32, 16, 50, 51, 18, 48)
    v_addr()
    v_store()
    fin()
    a.label("L_k1_end")
    a("s_endpgm")
    return name, "grid=(256,1,1) block=(512,1,1) lds=163840", 256


def gen_empty(a):
    name = "k0_empty_kernel"
    kernel_header(a, name)
    a("s_endpgm")
    return name, "grid=(256,1,1) block=(512,1,1) lds=163840", 256
```

```python
import math
from gen_common import *
from gen_gemm import *


def div18(a, vq, vr_, vin, vtmp):
    a(f"v_mul_u32_u24 {vr(vq)}, 3641, {vr(vin)}")
    a(f"v_lshrrev_b32 {vr(vq)}, 16, {vr(vq)}")
    a(f"v_mul_u32_u24 {vr(vtmp)}, 18, {vr(vq)}")
    a(f"v_sub_u32 {vr(vr_)}, {vr(vin)}, {vr(vtmp)}")


def gen_splitk(name, KA_W, A_OFF, NSTAGE, kid, fuse_ln=None, chain_in=False, chain_out=False, endlabel=None):
    PART = PART2_OFF if fuse_ln is False else PART_OFF

    def g(a):
        if not chain_in:
            kernel_header(a, name)
            a("s_cmp_ge_u32 s2, 256")
            a(f"s_cbranch_scc1 {endlabel or ('L_' + name + '_end')}")
        a(f"s_load_dwordx2 s[8:9], s[0:1], {KA_W}")
        a(f"s_load_dwordx2 s[12:13], s[0:1], {KA_WS}")
        if fuse_ln is not None:
            dbg_setup(a)
            a(f"s_load_dwordx2 s[4:5], s[0:1], {KA_X if fuse_ln else KA_OUT}")
        a("v_lshrrev_b32 v1, 6, v0")
        a("v_and_b32 v2, 63, v0")
        a("s_nop 0")
        a("v_readfirstlane_b32 s32, v1")
        a("s_and_b32 s48, s2, 7")
        a("s_lshr_b32 s49, s2, 3")
        a("s_lshr_b32 s33, s48, 1")
        a("s_and_b32 s34, s48, 1")
        a("s_lshl_b32 s34, s34, 3")
        a("s_lshr_b32 s50, s49, 2")
        a("s_add_u32 s34, s34, s50")
        a("s_and_b32 s35, s49, 3")
        a("s_and_b32 s36, s32, 3")
        a("s_lshr_b32 s37, s32, 2")
        a("s_waitcnt lgkmcnt(0)")
        stamp(a, 0)
        KTOT = NSTAGE * 64 * 4
        make_srd(a, 20, "s8", "s9", KTOT * 1152)
        a(f"s_mov_b32 s47, {KTOT * 1152}")
        make_srd(a, 16, "s12", "s13", WS_BYTES)
        a(f"s_mov_b32 s46, {WS_BYTES}")
        make_srd(a, 28, "s12", "s13", WS_BYTES)
        if fuse_ln is not None:
            dbg_srd(a)
        TS, WS_ = 16384, 18432
        WBASE = 4 * TS
        vA0, vA1, vW0, vW1, vW2, vT, vWa = 64, 65, 66, 67, 68, 70, 71
        a("v_lshrrev_b32 v20, 3, v2")
        a("s_lshl_b32 s48, s32, 4")
        a("v_add_u32 v20, s48, v20")
        a("v_lshlrev_b32 v20, 5, v20")
        a("v_lshrrev_b32 v21, 4, v2")
        a("v_and_b32 v22, 7, v2")
        a("v_xor_b32 v21, v21, v22")
        a("v_and_b32 v22, 1, v21")
        a("v_lshl_add_u32 v20, v22, 4, v20")
        a("v_lshrrev_b32 v21, 1, v21")
        a(f"v_lshl_add_u32 {vr(vA0)}, v21, 16, v20")
        a("v_xor_b32 v21, 2, v21")
        a("v_lshl_add_u32 v21, v21, 16, v20")
        a(f"v_add_u32 {vr(vA1)}, 256, v21")
        a(f"s_mul_i32 s38, s33, {NSTAGE * 262144}")
        a("s_lshl_b32 s48, s34, 12")
        a("s_add_u32 s38, s38, s48")
        a(f"s_add_u32 s38, s38, {A_OFF}")
        for j, vd in ((0, vW0), (1, vW1), (2, vW2)):
            a(f"v_add_u32 v20, {64 * j}, v2")
            div18(a, 21, 22, 20, 23)
            a("s_lshl_b32 s48, s32, 3")
            a("v_add_u32 v21, s48, v21")
            a("v_mul_u32_u24 v21, 1152, v21")
            a(f"v_lshl_add_u32 {vr(vd)}, v22, 4, v21")
        a(f"s_mul_i32 s39, s33, {NSTAGE * 64 * 1152}")
        a("s_mul_i32 s48, s35, 288")
        a("s_add_u32 s39, s39, s48")
        a("s_lshl_b32 s40, s32, 11")
        a("s_mul_i32 s41, s32, 2304")
        a(f"s_add_u32 s41, s41, {WBASE}")
        a("v_and_b32 v62, 15, v2")
        a("v_lshrrev_b32 v61, 4, v2")
        a("s_lshl_b32 s48, s37, 2")
        a("v_add_u32 v20, s48, v61")
        a("v_lshrrev_b32 v21, 1, v62")
        a("v_xor_b32 v20, v20, v21")
        a("s_lshl_b32 s48, s36, 5")
        a("v_add_u32 v21, s48, v62")
        a("v_lshlrev_b32 v21, 7, v21")
        a(f"v_lshl_add_u32 {vr(vT)}, v20, 4, v21")
        a("v_lshrrev_b32 v20, 5, v2")
        a("v_lshlrev_b32 v20, 4, v20")
        a("v_bfe_u32 v21, v2, 2, 3")
        a("v_add_u32 v20, v20, v21")
        a("s_lshl_b32 s48, s37, 5")
        a("v_add_u32 v20, s48, v20")
        a("v_mul_u32_u24 v20, 288, v20")
        a("v_and_b32 v21, 3, v2")
        a("v_lshl_add_u32 v20, v21, 3, v20")
        a(f"v_add_u32 {vr(vWa)}, {WBASE}, v20")
        a("s_mov_b32 s44, 0")
        c = GemmCfg()
        c.TN, c.TM, c.R, c.AHEAD, c.NSTEPS = 9, 2, 6, 5, NSTAGE
        c.NSW, c.WSLOT, c.NST, c.TSLOT, c.TPER = 4, WS_, 4, TS, 1
        c.TPOS = 0
        c.DMA_EVERY = 2
        c.swap = False
        c.acc = lambda nt, tt: 128 + (nt * 2 + tt) * 4
        c.tfrag = lambda buf, tt: 112 + buf * 8 + tt * 4
        c.wfrag = lambda r_: 80 + r_ * 4
        c.wread = lambda nt: [(vWa, nt * 32), (vWa, nt * 32 + 8 * 288)]
        c.wadv = lambda nt: [vWa] if nt == 8 else []
        c.tread = lambda q, tt: (vT, tt * 2048)
        c.tadv = lambda q: [vT]
        c.s_dA, c.s_dB, c.s_sl, c.s_dmaW, c.s_cnt, c.s_slotW = 50, 51, 52, 53, 45, 54
        c.s_dT, c.s_slT, c.s_dmaT, c.s_slotT = 55, 56, 57, 58

        def dmaW():
            def d0():
                a("s_add_u32 m0, s53, s41")
                a("s_nop 0")
                a(f"buffer_load_dwordx4 {vr(vW0)}, s[20:23], s39 offen lds")

            def d1():
                a("s_add_u32 m0, m0, 1024")
                a("s_nop 0")
                a(f"buffer_load_dwordx4 {vr(vW1)}, s[20:23], s39 offen lds")

            def d2():
                a("s_add_u32 m0, m0, 1024")
                a("s_mov_b64 exec, 0xffff")
                a(f"buffer_load_dwordx4 {vr(vW2)}, s[20:23], s39 offen lds")
                a("s_mov_b64 exec, -1")
            return [d0, d1, d2]
        c.dmaW = dmaW

        def dmaT(h):
            def d0():
                a("s_add_u32 m0, s57, s40")
                a("s_nop 0")
                a(f"buffer_load_dwordx4 {vr(vA0)}, s[16:19], s38 offen lds")

            def d1():
                a("s_add_u32 m0, m0, 1024")
                a("s_nop 0")
                a(f"buffer_load_dwordx4 {vr(vA1)}, s[16:19], s38 offen lds")
            return [d0, d1]
        c.dmaT = dmaT

        def advW():
            a(f"s_add_u32 s39, s39, {64 * 1152}")
        c.advW = advW

        def advT():
            a("s_add_u32 s38, s38, 262144")
            a("s_add_u32 s44, s44, 1")
            a(f"s_cmp_lt_u32 s44, {NSTAGE}")
            a("s_cselect_b32 s18, s46, 0")
            a("s_cselect_b32 s22, s47, 0")
        c.advT = advT
        if chain_in:
            def peers_in(vl, vd):
                a(f"v_and_b32 v19, 3, v{vl}")
                a(f"v_lshrrev_b32 v{vd}, 2, v{vl}")
                a(f"v_lshl_add_u32 v{vd}, v19, 3, v{vd}")
                if fuse_ln:
                    a("s_sub_u32 s48, 15, s34")
                    a("s_min_u32 s48, s48, s34")
                else:
                    a("s_lshr_b32 s48, s34, 1")
                a("s_lshl_b32 s48, s48, 5")
                a("s_lshl_b32 s49, s33, 1")
                a("s_add_u32 s48, s48, s49")
                a(f"v_add_u32 v{vd}, s48, v{vd}")
            c.pre_T = lambda: wflag_wait(a, 32, 4 if fuse_ln else 3, 28, name + "_in", 8, peers_in)
        gemm_prologue_and_loop(a, c, name)
        a("s_waitcnt vmcnt(0)")
        a("s_barrier")
        a("s_mul_i32 s48, s32, 9216")
        a("s_xor_b32 s49, s32, 4")
        a("s_mul_i32 s49, s49, 9216")
        a("v_lshlrev_b32 v3, 4, v2")
        a("v_add_u32 v4, s49, v3")
        a("v_add_u32 v3, s48, v3")
        a("s_cmp_eq_u32 s37, 1")
        a(f"s_cbranch_scc1 L_{name}_e1")
        for nt in range(9):
            a(f"ds_write_b128 v3, {vr(c.acc(nt, 1), 4)} offset:{nt * 1024}")
        a(f"s_branch L_{name}_e2")
        a.label(f"L_{name}_e1")
        for nt in range(9):
            a(f"ds_write_b128 v3, {vr(c.acc(nt, 0), 4)} offset:{nt * 1024}")
        for nt in range(9):
            for r_ in range(4):
                a(f"v_mov_b32 {vr(c.acc(nt, 0) + r_)}, {vr(c.acc(nt, 1) + r_)}")
        a.label(f"L_{name}_e2")
        a("s_waitcnt lgkmcnt(0)")
        a("s_barrier")
        for nt in range(9):
            a(f"ds_read_b128 {vr(c.acc(nt, 1), 4)}, v4 offset:{nt * 1024}")
        a(f"s_mul_i32 s48, s33, {2048 * 576 * 4}")
        a("s_lshl_b32 s49, s34, 7")
        a("s_lshl_b32 s50, s36, 5")
        a("s_add_u32 s49, s49, s50")
        a("s_lshl_b32 s50, s37, 4")
        a("s_add_u32 s49, s49, s50")
        a("s_mul_i32 s49, s49, 2304")
        a("s_add_u32 s48, s48, s49")
        a("s_mul_i32 s49, s35, 576")
        a("s_add_u32 s48, s48, s49")
        a(f"s_add_u32 s48, s48, {PART}")
        a("v_mul_u32_u24 v5, 2304, v62")
        a("v_lshl_add_u32 v5, v61, 4, v5")
        for nt in range(9):
            a(f"s_waitcnt lgkmcnt({8 - nt})")
            for r_ in range(4):
                a(f"v_add_f32 {vr(c.acc(nt, 0) + r_)}, {vr(c.acc(nt, 0) + r_)}, {vr(c.acc(nt, 1) + r_)}")
            a(f"buffer_store_dwordx4 {vr(c.acc(nt, 0), 4)}, v5, s[28:31], s48 offen offset:{nt * 64} sc1")
        if fuse_ln is not None:
            a("s_waitcnt vmcnt(0)")
            stamp(a, 3)
            a("s_barrier")
            ph = 0 if fuse_ln else 1
            wflag_set(a, 32, ph, 28, name)

            def peers(vl, vd):
                a(f"v_lshrrev_b32 v19, 2, v{vl}")
                a(f"v_and_b32 v{vd}, 3, v{vl}")
                a(f"v_lshlrev_b32 v{vd}, 1, v{vd}")
                a(f"v_lshl_add_u32 v{vd}, v19, 3, v{vd}")
                a("s_and_b32 s48, s34, 7")
                a("s_lshl_b32 s48, s48, 5")
                a("s_lshr_b32 s49, s34, 3")
                a("s_add_u32 s48, s48, s49")
                a(f"v_add_u32 v{vd}, s48, v{vd}")
            wflag_wait(a, 32, ph, 28, name, 16, peers)
            stamp(a, 4)
            a("s_lshl_b32 s49, s35, 2")
            a("s_add_u32 s49, s49, s33")
            a("s_lshl_b32 s49, s49, 3")
            a("s_add_u32 s49, s49, s32")
            a("s_lshl_b32 s48, s34, 7")
            a("s_add_u32 s49, s49, s48")
            reduce_body(a, fuse_ln, " sc1", PART, " sc1" if chain_out else "")
            if chain_out:
                a("s_waitcnt vmcnt(0)")
                if STAMPS:
                    stamp(a, 5)
                    stamp_flush(a, 8, 1, 2, 32, s_t=70, kid=kid)
                a("s_barrier")
                wflag_set(a, 32, 2, 28, name + "_out")
                return
            if STAMPS:
                a("s_waitcnt vmcnt(0)")
                stamp(a, 5)
                stamp_flush(a, 8, 1, 2, 32, s_t=70, kid=kid)
        elif STAMPS:
            a("s_waitcnt vmcnt(0)")
            stamp(a, 3)
            stamp(a, 4); stamp(a, 5)
            stamp_flush(a, 8, 1, 2, 32, s_t=70, kid=kid)
        a.label(f"L_{name}_end")
        a("s_endpgm")
        return name, "grid=(256,1,1) block=(512,1,1) lds=139264", 208
    return g


gen_k3 = gen_splitk("k3_oproj_kernel", KA_WO, CTX_OFF, 16, 2)
gen_k6 = gen_splitk("k6_down_kernel", KA_WD, ACT_OFF, 18, 5)
gen_k34 = gen_splitk("k34_kernel", KA_WO, CTX_OFF, 16, 2, fuse_ln=True)
gen_k67 = gen_splitk("k67_kernel", KA_WD, ACT_OFF, 18, 5, fuse_ln=False)


def reduce_body(a, do_ln, LF='', PART=PART_OFF, SF=''):
    if True:
        a("v_lshrrev_b32 v3, 1, v2")
        a("v_lshlrev_b32 v3, 4, v3")
        a("v_and_b32 v4, 1, v2")
        a("v_lshl_add_u32 v3, v4, 2, v3")
        a("v_lshlrev_b32 v4, 2, v3")
        a("v_lshlrev_b32 v5, 1, v3")
        a("s_mul_i32 s50, s49, 2304")
        a(f"s_add_u32 s50, s50, {PART}")
        a("s_mul_i32 s51, s49, 1152")
        a("s_waitcnt lgkmcnt(0)")
        if not LF:
            stamp(a, 0)
        make_srd(a, 24, "s4", "s5", 2048 * 1152)
        make_srd(a, 28, "s12", "s13", WS_BYTES)
        for i in range(16, 88):
            a(f"v_mov_b32 v{i}, 0")
        for ks in range(4):
            b = 16 + 16 * ks
            a(f"buffer_load_dwordx4 v[{b}:{b + 3}], v4, s[28:31], s50 offen{LF}")
            a(f"buffer_load_dwordx4 v[{b + 4}:{b + 7}], v4, s[28:31], s50 offen offset:32{LF}")
            a("s_mov_b64 exec, 0xff")
            a(f"buffer_load_dwordx4 v[{b + 8}:{b + 11}], v4, s[28:31], s50 offen offset:2048{LF}")
            a(f"buffer_load_dwordx4 v[{b + 12}:{b + 15}], v4, s[28:31], s50 offen offset:2080{LF}")
            a("s_mov_b64 exec, -1")
            if ks < 3:
                a(f"s_add_u32 s50, s50, {2048 * 576 * 4}")
        if do_ln:
            rs, so = "s[24:27]", "s51"
        else:
            a(f"s_add_u32 s52, s51, {H_OFF}")
            rs, so = "s[28:31]", "s52"
        a(f"buffer_load_dwordx2 v[80:81], v5, {rs}, {so} offen")
        a(f"buffer_load_dwordx2 v[82:83], v5, {rs}, {so} offen offset:16")
        a("s_mov_b64 exec, 0xff")
        a(f"buffer_load_dwordx2 v[84:85], v5, {rs}, {so} offen offset:1024")
        a(f"buffer_load_dwordx2 v[86:87], v5, {rs}, {so} offen offset:1040")
        a("s_mov_b64 exec, -1")
        a("s_waitcnt vmcnt(0)")
        for i in range(16):
            a(f"v_add_f32 v{16 + i}, v{16 + i}, v{32 + i}")
            a(f"v_add_f32 v{48 + i}, v{48 + i}, v{64 + i}")
        for i in range(16):
            a(f"v_add_f32 v{16 + i}, v{16 + i}, v{48 + i}")
        for i in range(8):
            a(f"v_cvt_pk_bf16_f32 v6, v{16 + 2 * i}, v{17 + 2 * i}")
            a(f"v_lshlrev_b32 v{16 + 2 * i}, 16, v6")
            a(f"v_and_b32 v{17 + 2 * i}, 0xffff0000, v6")
            a(f"v_lshlrev_b32 v6, 16, v{80 + i}")
            a(f"v_and_b32 v7, 0xffff0000, v{80 + i}")
            a(f"v_add_f32 v{16 + 2 * i}, v{16 + 2 * i}, v6")
            a(f"v_add_f32 v{17 + 2 * i}, v{17 + 2 * i}, v7")
            a(f"v_cvt_pk_bf16_f32 v{80 + i}, v{16 + 2 * i}, v{17 + 2 * i}")
        if do_ln:
            a(f"s_add_u32 s52, s51, {H_OFF}")
            rs, so = "s[28:31]", "s52"
        else:
            rs, so = "s[24:27]", "s51"
        a(f"buffer_store_dwordx2 v[80:81], v5, {rs}, {so} offen")
        a(f"buffer_store_dwordx2 v[82:83], v5, {rs}, {so} offen offset:16")
        a("s_mov_b64 exec, 0xff")
        a(f"buffer_store_dwordx2 v[84:85], v5, {rs}, {so} offen offset:1024")
        a(f"buffer_store_dwordx2 v[86:87], v5, {rs}, {so} offen offset:1040")
        a("s_mov_b64 exec, -1")
        if do_ln:
            for i in range(8):
                a(f"v_lshlrev_b32 v{20 + 2 * i}, 16, v{80 + i}")
                a(f"v_and_b32 v{21 + 2 * i}, 0xffff0000, v{80 + i}")
            a("v_add_f32 v36, v20, v21")
            for i in range(22, 36):
                a(f"v_add_f32 v36, v36, v{i}")
            wave_sum(a, 36, 37, 38)
            a(f"v_mul_f32 v36, {1.0 / 576.0!r}, v36")
            a("v_mov_b32 v39, 0")
            for i in range(20, 28):
                a(f"v_sub_f32 v37, v{i}, v36")
                a("v_fmac_f32 v39, v37, v37")
            a("s_mov_b64 exec, 0xff")
            for i in range(28, 36):
                a(f"v_sub_f32 v37, v{i}, v36")
                a("v_fmac_f32 v39, v37, v37")
            a("s_mov_b64 exec, -1")
            wave_sum(a, 39, 37, 38)
            a(f"v_mul_f32 v39, {1.0 / 576.0!r}, v39")
            round_bf16(a, 39, 37)
            a("v_add_f32 v39, 0x3727c5ac, v39")
            round_bf16(a, 39, 37)
            a("v_sqrt_f32 v39, v39")
            a("s_nop 0")
            round_bf16(a, 39, 37)
            a("v_rcp_f32 v39, v39")
            round_bf16(a, 36, 37)
            for i in range(8):
                a(f"v_sub_f32 v{20 + 2 * i}, v{20 + 2 * i}, v36")
                a(f"v_sub_f32 v{21 + 2 * i}, v{21 + 2 * i}, v36")
                a(f"v_cvt_pk_bf16_f32 v37, v{20 + 2 * i}, v{21 + 2 * i}")
                a(f"v_lshlrev_b32 v{20 + 2 * i}, 16, v37")
                a(f"v_and_b32 v{21 + 2 * i}, 0xffff0000, v37")
                a(f"v_mul_f32 v{20 + 2 * i}, v{20 + 2 * i}, v39")
                a(f"v_mul_f32 v{21 + 2 * i}, v{21 + 2 * i}, v39")
                a(f"v_cvt_pk_bf16_f32 v{8 + i}, v{20 + 2 * i}, v{21 + 2 * i}")
            a("v_lshrrev_b32 v37, 2, v2")
            a("v_lshlrev_b32 v37, 17, v37")
            a("v_and_b32 v38, 3, v2")
            a("v_lshl_add_u32 v37, v38, 4, v37")
            a("s_lshl_b32 s50, s49, 6")
            a(f"s_add_u32 s50, s50, {HN_OFF}")
            a(f"buffer_store_dwordx4 v[8:11], v37, s[28:31], s50 offen{SF}")
            a(f"s_add_u32 s50, s50, {16 * 131072}")
            a("s_mov_b64 exec, 0xff")
            a(f"buffer_store_dwordx4 v[12:15], v37, s[28:31], s50 offen{SF}")
            a("s_mov_b64 exec, -1")


def gen_reduce(name, do_ln):
    def g(a):
        kernel_header(a, name)
        a("s_cmp_ge_u32 s2, 256")
        a(f"s_cbranch_scc1 L_{name}_end")
        a(f"s_load_dwordx2 s[4:5], s[0:1], {KA_X if do_ln else KA_OUT}")
        a(f"s_load_dwordx2 s[12:13], s[0:1], {KA_WS}")
        a("v_lshrrev_b32 v1, 6, v0")
        a("v_and_b32 v2, 63, v0")
        a("s_nop 0")
        a("v_readfirstlane_b32 s32, v1")
        a("s_lshl_b32 s49, s2, 3")
        a("s_add_u32 s49, s49, s32")
        reduce_body(a, do_ln)
        if STAMPS:
            a("s_waitcnt vmcnt(0)")
            stamp(a, 1)
            stamp_flush(a, 2, 1, 2, 32, s_t=70, kid=(3 if do_ln else 6))
        a.label(f"L_{name}_end")
        a("s_endpgm")
        return name, "grid=(256,1,1) block=(512,1,1) lds=0", 88
    return g


gen_k4 = gen_reduce("k4_ln2_kernel", True)
gen_k7 = gen_reduce("k7_out_kernel", False)


def gen_k5(a, chain=False):
    name = "k5_ffn1_kernel"
    STF = " sc1" if chain else globals()["STF"]
    if not chain:
        kernel_header(a, name)
        a("s_cmp_ge_u32 s2, 256")
        a(f"s_cbranch_scc1 L_{name}_end")
    a(f"s_load_dwordx4 s[8:11], s[0:1], {KA_WG}")
    a(f"s_load_dwordx2 s[12:13], s[0:1], {KA_WS}")
    a("v_lshrrev_b32 v1, 6, v0")
    a("v_and_b32 v2, 63, v0")
    a("s_nop 0")
    a("v_readfirstlane_b32 s32, v1")
    a("s_and_b32 s35, s2, 7")
    a("s_lshl_b32 s35, s35, 2")
    a("s_lshr_b32 s48, s2, 3")
    a("s_and_b32 s48, s48, 3")
    a("s_add_u32 s35, s35, s48")
    a("s_lshr_b32 s34, s2, 5")
    a("s_and_b32 s36, s32, 3")
    a("s_lshr_b32 s37, s32, 2")
    a("s_waitcnt lgkmcnt(0)")
    stamp(a, 0)
    a("s_cmp_eq_u32 s37, 1")
    a("s_cselect_b32 s8, s10, s8")
    a("s_cselect_b32 s9, s11, s9")
    make_srd(a, 20, "s8", "s9", 576 * 9216)
    a(f"s_mov_b32 s47, {576 * 9216}")
    make_srd(a, 16, "s12", "s13", WS_BYTES)
    a(f"s_mov_b32 s46, {WS_BYTES}")
    make_srd(a, 28, "s12", "s13", WS_BYTES)
    TS, WS_ = 16384, 18432
    WBASE = 4 * TS
    vA0, vW0, vW1, vW2, vT, vWa, vWb = 64, 66, 67, 68, 69, 70, 71
    a("v_lshrrev_b32 v20, 2, v2")
    a("s_lshl_b32 s48, s32, 5")
    a("v_add_u32 v20, s48, v20")
    a("v_lshlrev_b32 v20, 6, v20")
    a("v_lshrrev_b32 v21, 4, v2")
    a("v_sub_u32 v21, 0, v21")
    a("v_and_b32 v21, 3, v21")
    a("v_and_b32 v22, 3, v2")
    a("v_xor_b32 v21, v21, v22")
    a(f"v_lshl_add_u32 {vr(vA0)}, v21, 4, v20")
    a("s_lshl_b32 s38, s34, 14")
    a(f"s_add_u32 s38, s38, {HN_OFF}")
    for j, vd in ((0, vW0), (1, vW1), (2, vW2)):
        a(f"v_add_u32 v20, {64 * j}, v2")
        div18(a, 21, 22, 20, 23)
        a("v_and_b32 v23, 1, v22")
        a("v_bfe_u32 v24, v22, 1, 1")
        a("v_lshl_or_b32 v23, v23, 1, v24")
        a("v_and_b32 v24, 28, v22")
        a("v_or_b32 v23, v23, v24")
        a("v_cmp_gt_u32 vcc, 16, v22")
        a("s_nop 1")
        a("v_cndmask_b32 v22, v22, v23, vcc")
        a("s_lshl_b32 s48, s36, 3")
        a("v_add_u32 v21, s48, v21")
        a("v_mul_u32_u24 v21, 9216, v21")
        a(f"v_lshl_add_u32 {vr(vd)}, v22, 4, v21")
    a("s_mul_i32 s39, s35, 288")
    a("s_lshl_b32 s40, s32, 11")
    a("s_mul_i32 s41, s32, 2304")
    a(f"s_add_u32 s41, s41, {WBASE}")
    a("v_and_b32 v62, 15, v2")
    a("v_lshrrev_b32 v61, 4, v2")
    a("v_lshrrev_b32 v20, 2, v62")
    a("v_sub_u32 v20, 0, v20")
    a("v_and_b32 v20, 3, v20")
    a("v_xor_b32 v20, v20, v61")
    a("s_lshl_b32 s48, s32, 5")
    a("v_add_u32 v21, s48, v62")
    a("v_lshlrev_b32 v21, 6, v21")
    a(f"v_lshl_add_u32 {vr(vT)}, v20, 4, v21")
    a("v_lshrrev_b32 v20, 5, v2")
    a("v_lshlrev_b32 v20, 4, v20")
    a("v_bfe_u32 v21, v2, 2, 3")
    a("v_add_u32 v20, v20, v21")
    a("v_mul_u32_u24 v20, 288, v20")
    a(f"v_add_u32 v20, {WBASE}, v20")
    a("v_and_b32 v21, 3, v2")
    a(f"v_lshl_add_u32 {vr(vWa)}, v21, 3, v20")
    a("v_and_b32 v22, 1, v2")
    a("v_lshl_add_u32 v20, v22, 4, v20")
    a("v_bfe_u32 v22, v2, 1, 1")
    a(f"v_lshl_add_u32 {vr(vWb)}, v22, 3, v20")
    a("s_mov_b32 s44, 0")
    c = GemmCfg()
    c.TN, c.TM, c.R, c.AHEAD, c.NSTEPS = 18, 2, 6, 5, 18
    c.NSW, c.WSLOT, c.NST, c.TSLOT, c.TPER = 4, WS_, 4, TS, 1
    c.TPOS = 0
    c.DMA_EVERY = 2
    c.swap = False
    c.acc = lambda nt, tt: 112 + (nt * 2 + tt) * 4
    c.tfrag = lambda buf, tt: 96 + buf * 8 + tt * 4
    c.wfrag = lambda r_: 72 + r_ * 4

    def wread(nt):
        pl, u = nt // 9, nt % 9
        r_ = vWb if u == 8 else vWa
        return [(r_, pl * 9216 + u * 32), (r_, pl * 9216 + u * 32 + 8 * 288)]
    c.wread = wread
    c.wadv = lambda nt: [vWa] if nt == 16 else ([vWb] if nt == 17 else [])
    c.tread = lambda q, tt: (vT, tt * 1024)
    c.tadv = lambda q: [vT]
    c.s_dA, c.s_dB, c.s_sl, c.s_dmaW, c.s_cnt, c.s_slotW = 50, 51, 52, 53, 45, 54
    c.s_dT, c.s_slT, c.s_dmaT, c.s_slotT = 55, 56, 57, 58

    def dmaW():
        def d0():
            a("s_add_u32 m0, s53, s41")
            a("s_nop 0")
            a(f"buffer_load_dwordx4 {vr(vW0)}, s[20:23], s39 offen lds")

        def d1():
            a("s_add_u32 m0, m0, 1024")
            a("s_nop 0")
            a(f"buffer_load_dwordx4 {vr(vW1)}, s[20:23], s39 offen lds")

        def d2():
            a("s_add_u32 m0, m0, 1024")
            a("s_mov_b64 exec, 0xffff")
            a(f"buffer_load_dwordx4 {vr(vW2)}, s[20:23], s39 offen lds")
            a("s_mov_b64 exec, -1")
        return [d0, d1, d2]
    c.dmaW = dmaW

    def dmaT(h):
        def d0():
            a("s_add_u32 m0, s57, s40")
            a("s_nop 0")
            a(f"buffer_load_dwordx4 {vr(vA0)}, s[16:19], s38 offen lds")

        def d1():
            a(f"buffer_load_dwordx4 {vr(vA0)}, s[16:19], s38 offen offset:1024 lds")
        return [d0, d1]
    c.dmaT = dmaT

    def advW():
        a(f"s_add_u32 s39, s39, {32 * 9216}")
    c.advW = advW

    def advT():
        a("s_add_u32 s38, s38, 131072")
        a("s_add_u32 s44, s44, 1")
        a(f"s_cmp_lt_u32 s44, {c.NSTEPS}")
        a("s_cselect_b32 s18, s46, 0")
        a("s_cselect_b32 s22, s47, 0")
    c.advT = advT
    if chain:
        def peers_in(vl, vd):
            a(f"v_and_b32 v19, 3, v{vl}")
            a(f"v_lshrrev_b32 v{vd}, 2, v{vl}")
            a(f"v_lshlrev_b32 v{vd}, 3, v{vd}")
            a(f"v_lshl_add_u32 v{vd}, v19, 1, v{vd}")
            a("s_and_b32 s48, s34, 3")
            a("s_lshl_b32 s48, s48, 6")
            a("s_lshr_b32 s49, s34, 2")
            a("s_add_u32 s48, s48, s49")
            a(f"v_add_u32 v{vd}, s48, v{vd}")
        c.pre_T = lambda: wflag_wait(a, 32, 2, 28, name + "_in", 32, peers_in)
    gemm_prologue_and_loop(a, c, name)
    a(f"s_mov_b32 s48, {-math.log2(math.e)!r}")

    def act4(g0, u0):
        for r_ in range(4):
            a(f"v_mul_f32 v{20 + r_}, s48, v{g0 + r_}")
        for r_ in range(4):
            a(f"v_exp_f32 v{20 + r_}, v{20 + r_}")
        for r_ in range(4):
            a(f"v_add_f32 v{20 + r_}, 1.0, v{20 + r_}")
        for r_ in range(4):
            a(f"v_rcp_f32 v{20 + r_}, v{20 + r_}")
        for r_ in range(4):
            a(f"v_mul_f32 v{g0 + r_}, v{g0 + r_}, v{u0 + r_}")
        for r_ in range(4):
            a(f"v_mul_f32 v{g0 + r_}, v{g0 + r_}, v{20 + r_}")
    a("s_lshl_b32 s49, s34, 8")
    a("s_lshl_b32 s50, s32, 5")
    a("s_add_u32 s49, s49, s50")
    a("s_lshl_b32 s49, s49, 5")
    a("s_mul_i32 s50, s35, 9")
    a("s_lshl_b32 s50, s50, 16")
    a("s_add_u32 s49, s49, s50")
    a(f"s_add_u32 s49, s49, {ACT_OFF}")
    a("v_lshlrev_b32 v3, 5, v62")
    a("v_lshrrev_b32 v4, 1, v61")
    a("v_and_b32 v5, 1, v61")
    a("v_lshl_add_u32 v6, v5, 4, v3")
    a("v_lshl_add_u32 v6, v4, 16, v6")
    a("v_lshl_add_u32 v7, v61, 3, v3")
    k = 0
    for P_ in range(4):
        for tt in range(2):
            t = 32 + (k % 4) * 4
            k += 1
            for T_ in range(2):
                g0, u0 = c.acc(2 * P_ + T_, tt), c.acc(9 + 2 * P_ + T_, tt)
                act4(g0, u0)
                a(f"v_cvt_pk_bf16_f32 v{t + 2 * T_}, v{g0}, v{g0 + 1}")
                a(f"v_cvt_pk_bf16_f32 v{t + 2 * T_ + 1}, v{g0 + 2}, v{g0 + 3}")
            a(f"buffer_store_dwordx4 v[{t}:{t + 3}], v6, s[28:31], s49 offen offset:{tt * 512}{STF}")
        a("s_add_u32 s49, s49, 131072")
    for tt in range(2):
        t = 32 + (k % 4) * 4
        k += 1
        g0, u0 = c.acc(8, tt), c.acc(17, tt)
        act4(g0, u0)
        a(f"v_cvt_pk_bf16_f32 v{t}, v{g0}, v{g0 + 1}")
        a(f"v_cvt_pk_bf16_f32 v{t + 1}, v{g0 + 2}, v{g0 + 3}")
        a(f"buffer_store_dwordx2 v[{t}:{t + 1}], v7, s[28:31], s49 offen offset:{tt * 512}{STF}")
    if STAMPS:
        a("s_waitcnt vmcnt(0)")
        stamp(a, 3)
        stamp(a, 4); stamp(a, 5)
        stamp_flush(a, 8, 1, 2, 32, s_t=70, kid=4)
    if chain:
        a("s_waitcnt vmcnt(0)")
        a("s_barrier")
        wflag_set(a, 32, 3, 28, name + "_out")
        return
    a.label(f"L_{name}_end")
    a("s_endpgm")
    return name, "grid=(256,1,1) block=(512,1,1) lds=139264", 256


def gen_k37(a):
    gen_splitk("k37_kernel", KA_WO, CTX_OFF, 16, 2, fuse_ln=True, chain_out=True, endlabel="L_k67c_end")(a)
    gen_k5(a, chain=True)
    gen_splitk("k67c", KA_WD, ACT_OFF, 18, 5, fuse_ln=False, chain_in=True)(a)
    return "k37_kernel", "grid=(256,1,1) block=(512,1,1) lds=139264", 256


def gen_k27(a):
    from gen_attn import gen_k2
    ool = gen_k2(a, chain=True)
    gen_splitk("k34c", KA_WO, CTX_OFF, 16, 2, fuse_ln=True, chain_in=True, chain_out=True)(a)
    gen_k5(a, chain=True)
    gen_splitk("k67c", KA_WD, ACT_OFF, 18, 5, fuse_ln=False, chain_in=True)(a)
    a.L += ool.L
    return "k27_kernel", "grid=(256,1,1) block=(512,1,1) lds=163840", 256
```

```python
import sys
from gen_common import *
from gen_gemm import *
from gen_attn import *
from gen_gemm2 import *

HEADER = open("sequential_preLN__compressed_kv_cla__swiglu_ffn__prompt.s.ref").read().split("; Override launch")[0]

def build(gens, out):
    a = Asm()
    infos = []
    for g in gens:
        infos.append(g(a))
    s = HEADER
    for name, launch, vg in infos:
        s += f"; @launch kernel={name} {launch}\n"
    s += '.amdgcn_target "amdgcn-amd-amdhsa--gfx950"\n.text\n'
    s += a.text()
    s += '.section .rodata,"a"\n'
    seen = set()
    for name, launch, vg in infos:
        if name in seen: continue
        seen.add(name)
        s += ".p2align 6\n" + kernel_desc(name, vg)
    open(out, "w").write(s)

if __name__ == "__main__":
    gens = [gen_k1, gen_k2, gen_k3, gen_k4, gen_k5, gen_k6, gen_k7]
    if os.environ.get("FUSE2"):
        gens = [gen_k1, gen_k2, gen_k34, gen_k5, gen_k67]
    if os.environ.get("FUSE3"):
        gens = [gen_k1, gen_k2, gen_k37]
    if os.environ.get("FUSE4"):
        gens = [gen_k1, gen_k27]
    if os.environ.get("MEGA"):
        gens = [gen_mega]
    if os.environ.get("ONLY"):
        gens = [gens[int(i) - 1] for i in os.environ["ONLY"].split(",")]
    build(gens, sys.argv[1] if len(sys.argv) > 1 else "out.s")
```

```python
from gen_common import *
import math

QS_OFF = 100 * MB
SCALE_C = (128 ** -0.5) * math.log2(math.e)
NEGBIG = 0xf149f2ca
THR = 65536.0
FLOOR0 = 0xe0ad78ec


class Vm:
    def __init__(self):
        self.q = []

    def issue(self, tag):
        self.q.append(tag)

    def need(self, a, tags):
        idx = -1
        for i, t in enumerate(self.q):
            if t in tags:
                idx = i
        if idx < 0:
            return
        n = len(self.q) - 1 - idx
        assert n <= 63
        a(f"s_waitcnt vmcnt({n})")
        self.q = self.q[idx + 1:]


def gen_k12(a):
    from gen_gemm import gen_k1
    stores = gen_k1(a, fused=True)
    return gen_k2(a, k1_stores=stores)


def gen_k2(a, k1_stores=None, chain=False):
    fused = k1_stores is not None
    name = "k12_kernel" if fused else ("k27_kernel" if chain else "k2_attn_kernel")
    STF = " sc1" if (fused or chain) else globals()["STF"]
    if not fused:
        kernel_header(a, name)
    O = 192
    S = 160
    Q = 128
    NEGM = 112
    P = 96
    FR = 64
    PT = 48
    vK = 32
    vV = 40
    vL = 44
    vFloor = 45
    vLim = 46
    vLane16 = 27
    if not fused:
        a("s_cmp_ge_u32 s2, 256")
        a("s_cbranch_scc1 L_k67c_end" if chain else "s_cbranch_scc1 L_k2_end")
    else:
        a("s_waitcnt vmcnt(0)")
        a("s_barrier")
    a(f"s_load_dwordx2 s[4:5], s[0:1], {KA_WQ}")
    a(f"s_load_dwordx2 s[6:7], s[0:1], {KA_WS}")
    a(f"s_load_dwordx2 s[8:9], s[0:1], {KA_WO}")
    a(f"s_load_dwordx4 s[12:15], s[0:1], {KA_WG}")
    a(f"s_load_dwordx2 s[10:11], s[0:1], {KA_WD}")
    a("v_lshrrev_b32 v1, 6, v0")
    a("v_and_b32 v2, 63, v0")
    a("s_nop 0")
    a("v_readfirstlane_b32 s32, v1")
    a("s_and_b32 s33, s2, 7")
    a("s_lshl_b32 s33, s33, 2")
    a("s_lshr_b32 s48, s2, 3")
    a("s_and_b32 s48, s48, 3")
    a("s_add_u32 s33, s33, s48")
    a("s_lshr_b32 s34, s2, 5")
    a("s_and_b32 s35, s32, 3")
    a("s_lshr_b32 s36, s32, 2")
    a(f"v_lshlrev_b32 {vr(vLane16)}, 4, v2")
    a("s_waitcnt lgkmcnt(0)")
    stamp(a, 3 if fused else 0)
    a("s_lshl_b32 s48, s33, 8")
    a("s_add_u32 s4, s4, s48")
    a("s_addc_u32 s5, s5, 0")
    a(f"s_sub_u32 s49, {576 * 8192}, s48")
    make_srd(a, 16, "s4", "s5", "s49")
    make_srd(a, 20, "s6", "s7", WS_BYTES)
    make_srd(a, 24, "s6", "s7", WS_BYTES)
    make_srd(a, 28, "s6", "s7", WS_BYTES)
    a("s_sub_u32 s48, 15, s34")
    a("s_cmp_eq_u32 s36, 1")
    a("s_cselect_b32 s48, s48, s34")
    a("s_lshl_b32 s48, s48, 2")
    a("s_add_u32 s48, s48, s35")
    a("s_mul_i32 s50, s48, 36864")
    a(f"s_add_u32 s50, s50, {XN_OFF}")
    vWq0, vWq1 = 24, 25
    a("v_lshrrev_b32 v3, 4, v2")
    a("v_bfe_u32 v4, v2, 2, 2")
    a("v_xor_b32 v4, v4, v3")
    a("v_lshlrev_b32 v4, 6, v4")
    a("v_and_b32 v5, 3, v2")
    a("v_lshl_add_u32 v4, v5, 4, v4")
    a("s_lshl_b32 s48, s32, 3")
    a("v_add_u32 v3, s48, v3")
    a(f"v_lshl_add_u32 {vr(vWq0)}, v3, 13, v4")
    a(f"v_add_u32 {vr(vWq1)}, {4 * 8192}, {vr(vWq0)}")
    a("s_lshl_b32 s51, s32, 11")
    a("s_add_u32 s51, s51, 65536")
    vm = Vm()
    XR = 20 if fused else 36
    XF = 48
    WR = 32
    vWa = 28

    def dma_wq(st):
        a(f"s_add_u32 m0, s51, {(st % 6) * 16384}")
        a(f"s_mov_b32 s52, {st * 64 * 8192}")
        a(f"buffer_load_dwordx4 {vr(vWq0)}, s[16:19], s52 offen lds")
        vm.issue(("W", st))
        a("s_add_u32 m0, m0, 1024")
        a("s_nop 0")
        a(f"buffer_load_dwordx4 {vr(vWq1)}, s[16:19], s52 offen lds")
        vm.issue(("W", st))

    def ld_x(s):
        if s % 4 == 0 and s > 0:
            a("s_add_u32 s50, s50, 4096")
        a(f"buffer_load_dwordx4 {vr(XF + 4 * (s % XR), 4)}, {vr(vLane16)}, s[20:23], s50 offen offset:{(s % 4) * 1024}")
        vm.issue(("X", s))

    LEAD = 4
    XR = 20 if fused else 36
    QO = (lambda dt: 144 + 32 * dt) if fused else (lambda dt: O + 16 * dt)
    if not fused:
        for st in range(LEAD):
            dma_wq(st)
            for s_ in range(4 * st, 4 * st + 4):
                ld_x(s_)
    else:
        for st in range(LEAD):
            dma_wq(st)

        def xn_peers(vl, vd):
            a("s_lshl_b32 s48, s34, 4")
            a("s_sub_u32 s49, 224, s48")
            a(f"v_cmp_gt_u32 vcc, 16, v{vl}")
            a("v_mov_b32 v19, s49")
            a(f"v_mov_b32 v{vd}, s48")
            a(f"v_cndmask_b32 v{vd}, v19, v{vd}, vcc")
            a(f"v_add_u32 v{vd}, v{vd}, v{vl}")
        k1_stores[0]()
        zcount_wait(a, 32, "z")
        wflag_wait(a, 32, 5, 28, "xn", 32, xn_peers)
        for s_ in range(4 * LEAD):
            ld_x(s_)
    a("s_lshl_b32 s48, s33, 19")
    a("s_bfe_u32 s59, s32, 0x10001")
    a("s_and_b32 s49, s32, 1")
    a("s_lshl_b32 s49, s49, 12")
    a("s_add_u32 s40, s48, s49")
    a(f"s_add_u32 s58, s40, {KP_OFF}")
    a("s_xor_b32 s49, s59, 1")
    a("s_lshl_b32 s49, s49, 13")
    a("s_add_u32 s40, s58, s49")
    a("s_lshl_b32 s49, s35, 12")
    a("s_add_u32 s41, s48, s49")
    a(f"s_add_u32 s41, s41, {VP_OFF}")
    a("s_lshl_b32 s42, s32, 12")
    a("s_add_u32 s45, s42, 32768")
    a("s_lshl_b32 s37, s34, 1")
    a("s_add_u32 s37, s37, 2")

    def dma_k(sK, track=None):
        a("s_mov_b32 m0, s42")
        a("s_xor_b32 s42, s42, 65536")
        for j in range(4):
            a(f"buffer_load_dwordx4 {vr(vLane16)}, s[24:27], {sK} offen offset:{j * 1024} lds")
            if track: track.issue(("KV", 0))

    def dma_v(sV, track=None):
        a("s_mov_b32 m0, s45")
        a("s_xor_b32 s45, s45, 65536")
        for j in range(4):
            a(f"buffer_load_dwordx4 {vr(vLane16)}, s[24:27], {sV} offen offset:{j * 1024} lds")
            if track: track.issue(("KV", 0))

    a("v_lshrrev_b32 v3, 5, v2")
    a("v_bfe_u32 v4, v2, 2, 2")
    a("v_lshl_add_u32 v3, v3, 3, v4")
    a("v_lshlrev_b32 v3, 8, v3")
    a("v_bfe_u32 v5, v2, 4, 1")
    a("v_lshl_add_u32 v3, v5, 5, v3")
    a("v_and_b32 v5, 3, v2")
    a("v_lshl_add_u32 v3, v5, 3, v3")
    a("v_add_u32 v3, 65536, v3")
    for dt in range(4):
        a(f"v_xor_b32 v5, {dt}, v4")
        a(f"v_lshl_add_u32 {vr(vWa + dt)}, v5, 6, v3")
    for dt in range(4):
        for i in range(16):
            a(f"v_mov_b32 {vr(QO(dt) + i)}, 0")
    lg = Lgkm()
    seq = [(st, s, dt) for st in range(9) for s in range(4) for dt in range(4)]
    AH = 3
    STQ = int(os.environ.get('STQ', '6'))
    STAG = int(os.environ.get('STAG', '0'))
    WBL = os.environ.get('KVF', 'sc1') != 'sc1'
    WBST = int(os.environ.get('WBST', '6'))
    LATE0 = 144 - 16 * STQ

    def rd_wq(idx):
        st, s, dt = seq[idx]
        ring = idx % 4
        for i2 in range(2):
            a(f"ds_read_b64_tr_b16 {vr(WR + 4 * ring + 2 * i2, 2)}, {vr(vWa + dt)} offset:{(16 * s + 4 * i2) * 256}")
            lg.issue(("W", ring))
        if s == 3:
            d = 16384 if (st % 6) != 5 else -5 * 16384
            a(f"v_add_u32 {vr(vWa + dt)}, {d & 0xffffffff}, {vr(vWa + dt)}")

    vm.need(a, [("W", 0)])
    a("s_barrier")
    for i in range(AH):
        rd_wq(i)
    for idx, (st, s, dt) in enumerate(seq):
        if s == 0 and dt == 0:
            if st + 1 < 9:
                vm.need(a, [("W", st + 1)])
            if fused and WBL and st == WBST:
                vm.need(a, [("ST", 0)])
            if fused and st == 8 and not STAG and not WBL:
                a("s_waitcnt vmcnt(0)")
                vm.q = []
            if fused and st == 8 and STAG:
                a("s_cmp_ge_u32 s2, 128")
                a("s_cbranch_scc1 L_k12_nw8")
                a("s_waitcnt vmcnt(0)")
                a.label("L_k12_nw8")
            a("s_barrier")
            if fused and WBL and st == WBST:
                a("s_cmp_lg_u32 s32, 0")
                a("s_cbranch_scc1 L_k12_nowb")
                a("buffer_wbl2 sc1")
                a.label("L_k12_nowb")
            if fused and st == 8 and not WBL:
                if STAG:
                    a("s_cmp_ge_u32 s2, 128")
                    a("s_cbranch_scc1 L_ws_kv")
                wflag_set(a, 32, 6, 28, "kv")
            if st + LEAD < 9:
                dma_wq(st + LEAD)
                for s2_ in range(4 * (st + LEAD), 4 * (st + LEAD) + 4):
                    ld_x(s2_)
            if st + LEAD == 9 and not fused:
                dma_k("s58", vm)
                dma_v("s41", vm)
        if dt == 0:
            vm.need(a, [("X", 4 * st + s)])
        if idx + AH < len(seq):
            rd_wq(idx + AH)
        lg.need(a, [("W", idx % 4)])
        a(f"v_mfma_f32_32x32x16_bf16 {vr(QO(dt), 16)}, {vr(WR + 4 * (idx % 4), 4)}, {vr(XF + 4 * ((4 * st + s) % XR), 4)}, {vr(QO(dt), 16)}")
        if fused and not STAG and idx % STQ == STQ - 1 and idx // STQ < 16:
            k1_stores[1](idx // STQ, "")
            vm.issue(("ST", 0))
        if fused and STAG and idx % STQ == STQ - 1:
            if idx // STQ < 16:
                a("s_cmp_ge_u32 s2, 128")
                a(f"s_cbranch_scc1 L_k12_se{idx}")
                k1_stores[1](idx // STQ, "e")
                a.label(f"L_k12_se{idx}")
            elif 0 <= (idx - LATE0) // STQ < 16 and idx >= LATE0:
                a("s_cmp_lt_u32 s2, 128")
                a(f"s_cbranch_scc1 L_k12_sl{idx}")
                k1_stores[1]((idx - LATE0) // STQ, "l")
                a.label(f"L_k12_sl{idx}")
    a("s_nop 7")
    a("s_nop 7")
    stamp(a, 4 if fused else 1)
    if fused:
        def kv_peers(vl, vd):
            a(f"v_lshrrev_b32 v19, 1, v{vl}")
            a(f"v_and_b32 v{vd}, 1, v{vl}")
            a(f"v_lshlrev_b32 v{vd}, 2, v{vd}")
            a(f"v_lshl_add_u32 v{vd}, v19, 5, v{vd}")
            a("s_bfe_u32 s48, s33, 0x20001")
            a("s_lshl_b32 s48, s48, 3")
            a("s_lshr_b32 s49, s33, 3")
            a("s_add_u32 s48, s48, s49")
            a(f"v_add_u32 v{vd}, s48, v{vd}")
        if WBL:
            a("s_waitcnt vmcnt(0)")
            wflag_set(a, 32, 6, 28, "kv")
        wflag_wait(a, 32, 6, 28, "kv", 8 if STAG else 16, kv_peers)
        dma_k("s58")
        dma_v("s41")
    a(f"s_mov_b32 s48, {SCALE_C!r}")
    for dt in range(4):
        for i in range(16):
            a(f"v_mul_f32 {vr(QO(dt) + i)}, s48, {vr(QO(dt) + i)}")
    for dt in range(4):
        for i in range(8):
            a(f"v_cvt_pk_bf16_f32 {vr(Q + 8 * dt + i)}, {vr(QO(dt) + 2 * i)}, {vr(QO(dt) + 2 * i + 1)}")
    a("s_barrier")
    a("s_lshl_b32 s48, s35, 13")
    a("s_add_u32 s48, s48, 131072")
    a(f"v_add_u32 v22, s48, {vr(vLane16)}")
    a("s_cmp_eq_u32 s36, 0")
    a("s_cbranch_scc1 L_k2_qw2")
    for i in range(8):
        a(f"ds_write_b128 v22, {vr(Q + 4 * i, 4)} offset:{i * 1024}")
    a.label("L_k2_qw2")
    a("v_and_b32 v3, 31, v2")
    a("v_lshrrev_b32 v4, 5, v2")
    a("s_lshl_b32 s48, s36, 14")
    a("v_bfe_u32 v5, v2, 2, 2")
    a("v_xor_b32 v5, v5, v4")
    a("v_lshlrev_b32 v6, 6, v3")
    a("v_add_u32 v6, s48, v6")
    a(f"v_lshl_add_u32 {vr(vK)}, v5, 4, v6")
    a(f"v_xor_b32 {vr(vK + 1)}, 32, {vr(vK)}")
    a(f"v_add_u32 {vr(vV)}, 32768, {vr(vK)}")
    a(f"v_add_u32 {vr(vV + 1)}, 32768, {vr(vK + 1)}")
    a("v_lshlrev_b32 v6, 2, v4")
    a(f"v_sub_u32 {vr(vLim)}, v3, v6")
    a("s_sub_u32 s56, 15, s34")
    a("s_lshl_b32 s56, s56, 7")
    a("s_lshl_b32 s48, s35, 5")
    a("s_add_u32 s56, s56, s48")
    a("s_lshl_b32 s39, s34, 7")
    a("s_add_u32 s39, s39, s48")
    a("s_sub_u32 s53, s37, 1")
    a("s_cmp_eq_u32 s36, 1")
    a("s_cselect_b32 s39, s56, s39")
    a("s_cselect_b32 s53, 100, s53")
    make_srd(a, 16, "s8", "s9", 4096 * 576 * 2)
    a("s_lshl_b32 s46, s2, 3")
    a("s_add_u32 s46, s46, s32")
    a(f"s_mul_i32 s46, s46, {11 * 128}")
    a("s_mov_b32 s47, 8")
    a("v_lshlrev_b32 v20, 7, v2")

    def dstamp(k):
        if not STAMPS:
            return
        a("s_waitcnt lgkmcnt(0)")
        a("s_memtime s[70:71]")
        a("s_waitcnt lgkmcnt(0)")
        a(f"s_mov_b32 s{72 + (8 if fused else 3) + k}, s70")
    SA, SB = S, S + 16
    PA, PB = P, P + 8
    PSA, PSB = 8, 9

    def sm_part(Sx, Px, ps, part):
        out = []
        b = 8 * part
        for k in range(4):
            t0, t1 = PT + (2 * k) % 8, PT + (2 * k + 1) % 8
            out.append(f"v_exp_f32 {vr(t0)}, {vr(Sx + b + 2 * k)}")
            out.append(f"v_exp_f32 {vr(t1)}, {vr(Sx + b + 2 * k + 1)}")
        for k in range(4):
            t0, t1 = PT + (2 * k) % 8, PT + (2 * k + 1) % 8
            if part == 0 and k == 0:
                out.append(f"v_add_f32 {vr(ps)}, {vr(t0)}, {vr(t1)}")
            else:
                out.append(f"v_add_f32 {vr(ps)}, {vr(ps)}, {vr(t0)}")
                out.append(f"v_add_f32 {vr(ps)}, {vr(ps)}, {vr(t1)}")
            out.append(f"v_cvt_pk_bf16_f32 {vr(Px + 4 * part + k)}, {vr(t0)}, {vr(t1)}")
        ex = [o for o in out if o.startswith("v_exp")]
        co = [o for o in out if not o.startswith("v_exp")]
        res = ex[:3]
        ex = ex[3:]
        while ex or co:
            if ex:
                res.append(ex.pop(0))
            take = 2 if len(co) > 2 * len(ex) else 1
            for _ in range(take):
                if co:
                    res.append(co.pop(0))
        return res

    ool = Asm()

    def mask(Sx, sT, t, tag):
        a(f"s_lshl_b32 s48, {sT}, 6")
        a("s_sub_i32 s48, s39, s48")
        a(f"s_cmp_lt_i32 s48, {31 + 32 * t}")
        a(f"s_cbranch_scc1 L_k2_{tag}_mask")
        a.label(f"L_k2_{tag}_nomask")
        o = ool
        o.label(f"L_k2_{tag}_mask")
        o(f"s_sub_i32 s48, s48, {32 * t}")
        o(f"v_add_u32 v11, s48, {vr(vLim)}")
        o(f"v_mov_b32 v10, {NEGBIG}")
        o("s_nop 7")
        for i in range(18):
            if i < 16:
                cst = 8 * (i // 4) + (i % 4)
                o(f"v_cmp_le_i32 s[{60 + 2 * (i % 3)}:{61 + 2 * (i % 3)}], {cst}, v11")
            else:
                o("s_nop 0")
            if i >= 2:
                j = (i - 2) % 3
                o(f"v_cndmask_b32 {vr(Sx + i - 2)}, v10, {vr(Sx + i - 2)}, s[{60 + 2 * j}:{61 + 2 * j}]")
        o(f"s_branch L_k2_{tag}_nomask")

    def tile_of(dst, src, add):
        a(f"s_add_u32 {dst}, {src}, {add}")
        a(f"s_lshl_b32 s49, {dst}, 1")
        a("s_sub_u32 s49, s49, s37")
        a("s_add_u32 s49, s49, s36")
        a(f"s_cmp_lt_u32 {dst}, s37")
        a(f"s_cselect_b32 {dst}, {dst}, s49")

    def chk(Sx, Sy, Px, ps, tag):
        a(f"v_cmp_nge_f32 vcc, s57, {vr(ps)}")
        a(f"s_cbranch_vccnz L_k2_{tag}_rare")
        a.label(f"L_k2_{tag}_go")
        a(f"v_add_f32 {vr(vL)}, {vr(vL)}, {vr(ps)}")
        o = ool
        o.label(f"L_k2_{tag}_rare")
        o(f"s_mov_b32 s57, {THR!r}")
        o("s_nop 7")
        o("s_nop 3")
        o(f"v_max3_f32 v10, {vr(Sx)}, {vr(Sx + 1)}, {vr(vFloor)}")
        for i in range(2, 16, 2):
            o(f"v_max3_f32 v10, v10, {vr(Sx + i)}, {vr(Sx + i + 1)}")
        o("v_mov_b32 v11, v10")
        o("s_nop 1")
        o("v_permlane32_swap_b32 v10, v11")
        o("s_nop 1")
        o("v_max_f32 v10, v10, v11")
        o(f"v_mov_b32 {vr(vFloor)}, 0")
        o("v_max_f32 v11, 0, v10")
        o("v_exp_f32 v11, -v11")
        for i in range(16):
            o(f"v_sub_f32 {vr(Sx + i)}, {vr(Sx + i)}, v10")
        for i in range(16):
            o(f"v_sub_f32 {vr(Sy + i)}, {vr(Sy + i)}, v10")
        for i in range(16):
            o(f"v_sub_f32 {vr(NEGM + i)}, {vr(NEGM + i)}, v10")
        for i in range(64):
            o(f"v_mul_f32 {vr(O + i)}, {vr(O + i)}, v11")
        o(f"v_mul_f32 {vr(vL)}, {vr(vL)}, v11")
        for part in range(2):
            for x in sm_part(Sx, Px, ps, part):
                o(x)
            o("s_nop 0")
        o(f"s_branch L_k2_{tag}_go")

    def togK_l():
        return [f"v_xor_b32 {vr(vK + i)}, 0x10000, {vr(vK + i)}" for i in range(2)]

    def togV_l():
        return [f"v_xor_b32 {vr(vV + i)}, 0x10000, {vr(vV + i)}" for i in range(2)]

    def rd(n, lg):
        seg, i = (n % 32) // 8, n % 8
        dst = vr(FR + 4 * (n % 8), 4)
        if os.environ.get("A_NOLDS"):
            return
        if seg in (0, 2):
            a(f"ds_read_b128 {dst}, {vr(vK + (i & 1))} offset:{(seg // 2) * 8192 + (i >> 1) * 2048}")
        else:
            dt = i % 4
            a(f"ds_read_b128 {dst}, {vr(vV + i // 4)} offset:{(seg // 2) * 8192 + dt * 2048}")
        lg.issue(("F", n % 8))

    def mfma(n):
        seg, i = n // 8, n % 8
        fr = vr(FR + 4 * (n % 8), 4)
        if seg in (0, 2):
            Sx = SB if seg == 0 else SA
            c_ = vr(NEGM, 16) if i == 0 else vr(Sx, 16)
            a(f"v_mfma_f32_32x32x16_bf16 {vr(Sx, 16)}, {fr}, {vr(Q + 4 * i, 4)}, {c_}")
        else:
            dt = i % 4
            Px = PA if seg == 1 else PB
            a(f"v_mfma_f32_32x32x16_bf16 {vr(O + 16 * dt, 16)}, {fr}, {vr(Px + 4 * (i // 4), 4)}, {vr(O + 16 * dt, 16)}")

    def spread(lst, positions):
        d = {p: [] for p in positions}
        k = len(lst)
        m = len(positions)
        idx = 0
        for j, p in enumerate(positions):
            cnt = k // m + (1 if j < k % m else 0)
            d[p] = lst[idx:idx + cnt]
            idx += cnt
        return d

    def dma_list(kind, sreg):
        m0s = "s42" if kind == "K" else "s45"

        def first():
            a(f"s_mov_b32 m0, {m0s}")
            a(f"s_xor_b32 {m0s}, {m0s}, 65536")
            a(f"buffer_load_dwordx4 {vr(vLane16)}, s[24:27], {sreg} offen lds")
        fs = [first]
        for j in range(1, 4):
            fs.append(lambda j=j: a(f"buffer_load_dwordx4 {vr(vLane16)}, s[24:27], {sreg} offen offset:{j * 1024} lds"))
        return fs

    def pf():
        a("s_mov_b64 exec, 0x7ff")
        a("buffer_load_dword v21, v20, s[16:19], s46 offen")
        a("s_mov_b64 exec, -1")
        a("s_sub_u32 s47, s47, 1")
        a(f"s_add_u32 s46, s46, {2048 * 11 * 128}")
        a("s_bitcmp1_b32 s47, 0")
        a(f"s_cbranch_scc0 L_k2_pfrot")
        a.label("L_k2_pfdone")
        o = ool
        o.label("L_k2_pfrot")
        o(f"s_sub_u32 s46, s46, {2 * 2048 * 11 * 128}")
        o("s_mov_b32 s16, s12")
        o("s_and_b32 s17, s13, 0xffff")
        o("s_cmp_gt_i32 s47, 0")
        o(f"s_cselect_b32 s18, {576 * 4608 * 2}, 0")
        o("s_mov_b64 s[12:13], s[14:15]")
        o("s_mov_b64 s[14:15], s[10:11]")
        o("s_branch L_k2_pfdone")

    def ctx_addr(a, sq):
        a("s_lshl_b32 s48, s33, 14")
        a(f"s_add_u32 s48, s48, {sq}")
        a("s_lshl_b32 s48, s48, 5")
        a(f"s_add_u32 s48, s48, {CTX_OFF}")
        a("v_and_b32 v3, 31, v2")
        a("v_lshrrev_b32 v4, 5, v2")
        a("v_lshlrev_b32 v3, 5, v3")
        a("v_lshl_add_u32 v3, v4, 4, v3")

    def dma_offsets():
        a("s_add_u32 s50, s38, s59")
        tile_of("s50", "s50", 2)
        a("s_lshl_b32 s50, s50, 14")
        a("s_add_u32 s50, s50, s40")
        tile_of("s51", "s38", 2)
        a("s_mov_b32 s43, s51")
        a("s_lshl_b32 s51, s51, 14")
        a("s_add_u32 s51, s51, s41")
        a("s_cmp_lt_i32 s38, 15")
        a(f"s_cselect_b32 s26, {WS_BYTES}, 0")

    DQ = int(os.environ.get("DQ", "2"))
    R0 = int(os.environ.get('R0', '26'))
    AHD = 8
    for i in range(64):
        a(f"v_mov_b32 {vr(O + i)}, 0")
    for i in range(16):
        a(f"v_mov_b32 {vr(NEGM + i)}, 0")
    for i in range(8):
        a(f"v_mov_b32 {vr(PB + i)}, 0")
    a(f"v_mov_b32 {vr(vL)}, 0")
    a(f"v_mov_b32 {vr(vFloor)}, {FLOOR0}")
    a("s_mov_b32 s57, -1.0")
    a("s_mov_b32 s38, -1")
    a("s_mov_b32 s55, 0")
    a("s_waitcnt vmcnt(0) lgkmcnt(0)")
    a("s_barrier")
    if fused and STAG:
        a("s_cmp_lt_u32 s2, 128")
        a("s_cbranch_scc1 L_ws_kvl")
        wflag_set(a, 32, 6, 28, "kvl")
    a("s_lshl_b32 s50, s59, 14")
    a("s_add_u32 s50, s50, s40")
    dma_k("s50")
    a("s_mov_b64 exec, 1")
    a("buffer_load_dword v21, v20, s[20:23], s40 offen")
    a("s_mov_b64 exec, -1")
    lg = Lgkm()
    for n in range(16, 24):
        rd(n, lg)
    dma_offsets()
    for n in range(16, 24):
        lg.need(a, [("F", n % 8)])
        mfma(n)
    for x in togK_l():
        a(x)
    a("s_nop 7")
    mask(SA, "s55", 0, "p0")
    dstamp(0)

    def post4(a_):
        pass

    if os.environ.get("PRIO"):
        a(f"s_cmp_eq_u32 s36, {os.environ['PRIO']}")
        a("s_cbranch_scc0 L_k2_loop")
        a("s_setprio 1")
    a.label("L_k2_loop")
    lg = Lgkm()
    a("s_waitcnt vmcnt(1)")
    if fused and STAG:
        a("s_cmp_eq_u32 s38, 3")
        a("s_cbranch_scc1 L_k2_kv2")
        a.label("L_k2_kv2_done")
        o = ool
        o.label("L_k2_kv2")

        def kv_peers2(vl, vd):
            o(f"v_lshrrev_b32 v19, 1, v{vl}")
            o(f"v_and_b32 v{vd}, 1, v{vl}")
            o(f"v_lshlrev_b32 v{vd}, 2, v{vd}")
            o(f"v_lshl_add_u32 v{vd}, v19, 5, v{vd}")
            o("s_bfe_u32 s48, s33, 0x20001")
            o("s_lshl_b32 s48, s48, 3")
            o("s_lshr_b32 s49, s33, 3")
            o("s_add_u32 s48, s48, s49")
            o("s_add_u32 s48, s48, 128")
            o(f"v_add_u32 v{vd}, s48, v{vd}")
        wflag_wait(o, 32, 6, 28, "kv2", 8, kv_peers2, barrier=False)
        o("s_branch L_k2_kv2_done")
    a("s_barrier")
    dl = dma_list("K", "s50") + dma_list("V", "s51")
    if os.environ.get("A_NODMA"):
        dl = []
    novalu = os.environ.get("A_NOVALU")
    valu = {}
    valu.update(spread(sm_part(SA, PA, PSA, 0), list(range(R0, 32))))
    valu.update(spread(sm_part(SA, PA, PSA, 1), list(range(0, 8))))
    valu.update(spread(["s_nop 1", "s_nop 1"] + sm_part(SB, PB, PSB, 0), list(range(8, 16))))
    valu[15] = valu[15] + togK_l()
    valu.update(spread(sm_part(SB, PB, PSB, 1), list(range(16, 24))))
    valu[23] = valu[23] + togV_l()
    valu.update({p: [] for p in range(24, R0)})
    if novalu:
        for k in valu:
            valu[k] = [x for x in valu[k] if x.startswith("v_xor")]
    order = list(range(R0, 32)) + list(range(0, R0))
    for n in range(32, R0 + AHD):
        rd(n, lg)
    for k, n in enumerate(order):
        nn = n + AHD if n >= R0 else n + AHD
        lg.need(a, [("F", n % 8)]) if n < R0 else None
        mfma(n)
        if n >= R0:
            rd(n + AHD, lg)
        elif n + AHD < 32:
            rd(n + AHD, lg)
        for x in valu[n]:
            a(x)
        if dl and k % DQ == 0:
            dl.pop(0)()
            if not dl:
                pf()
        if n == 31:
            a("s_cmp_eq_u32 s38, s53")
            a("s_cbranch_scc1 L_k2_fin_small")
            a.label("L_k2_fin_small_done")
            a("s_mov_b32 s54, s55")
            a("s_mov_b32 s55, s43")
            a("s_add_u32 s38, s38, 1")
            o = ool
            o.label("L_k2_fin_small")
            o(f"v_mov_b32 v10, {vr(vL)}")
            o(f"v_mov_b32 v11, {vr(vL)}")
            ctx_addr(o, "s52")
            o("v_permlane32_swap_b32 v10, v11")
            o("s_nop 1")
            o("v_add_f32 v10, v10, v11")
            o("v_rcp_f32 v10, v10")
            o("s_nop 0")
            for c4 in range(8):
                for i in range(8):
                    o(f"v_mul_f32 {vr(O + 8 * c4 + i)}, {vr(O + 8 * c4 + i)}, v10")
                for i in range(4):
                    o(f"v_cvt_pk_bf16_f32 {vr(O + 8 * c4 + i)}, {vr(O + 8 * c4 + 2 * i)}, {vr(O + 8 * c4 + 2 * i + 1)}")
                o(f"buffer_store_dwordx4 {vr(O + 8 * c4, 4)}, v3, s[20:23], s48 offen{STF}")
                o("s_add_u32 s48, s48, 65536")
            o("s_nop 1")
            for i in range(64):
                o(f"v_mov_b32 {vr(O + i)}, 0")
            o(f"v_mov_b32 {vr(vL)}, 0")
            o(f"v_mov_b32 {vr(vFloor)}, {FLOOR0}")
            o("s_mov_b32 s57, -1.0")
            o("s_branch L_k2_fin_small_done")
        if n == 7:
            mask(SB, "s54", 1, "m1")
            chk(SA, SB, PA, PSA, "a")
            a("s_cmp_eq_u32 s38, s53")
            a("s_cbranch_scc1 L_k2_sw1")
            a.label("L_k2_sw1_done")
            o = ool
            o.label("L_k2_sw1")
            for i in range(8):
                o(f"ds_read_b128 {vr(Q + 4 * i, 4)}, v22 offset:{i * 1024}")
            o("s_mov_b32 s52, s39")
            o("s_mov_b32 s39, s56")
            o("s_branch L_k2_sw1_done")
        if n == 23:
            mask(SA, "s55", 0, "m0")
            chk(SB, SA, PB, PSB, "b")
        if n == 24:
            dma_offsets()
    a("s_waitcnt lgkmcnt(0)")
    a("s_cmp_lt_i32 s38, 16")
    a("s_cbranch_scc1 L_k2_loop")
    for n in range(R0, 32):
        mfma(n)
    dstamp(1)
    a(f"v_mov_b32 v12, {vr(NEGM)}")
    a(f"v_mov_b32 v10, {vr(vL)}")
    a(f"v_mov_b32 v11, {vr(vL)}")
    a("s_nop 1")
    a("v_permlane32_swap_b32 v10, v11")
    a("s_nop 1")
    a("v_add_f32 v13, v10, v11")
    a("s_barrier")
    a("s_and_b32 s48, s42, 0x10000")
    a("s_and_b32 s49, s45, 0x18000")
    a("s_lshl_b32 s50, s35, 13")
    a("s_add_u32 s48, s48, s50")
    a("s_add_u32 s49, s49, s50")
    a("s_cmp_eq_u32 s36, 1")
    a("s_cselect_b32 s50, s48, s49")
    a("s_cselect_b32 s49, s49, s48")
    a(f"v_add_u32 v3, s49, {vr(vLane16)}")
    a(f"v_add_u32 v4, s50, {vr(vLane16)}")
    a("s_lshl_b32 s49, s32, 9")
    a("s_add_u32 s49, s49, 131072")
    a("s_xor_b32 s50, s49, 2048")
    a("v_lshlrev_b32 v5, 3, v2")
    a("v_add_u32 v6, s50, v5")
    a("v_add_u32 v5, s49, v5")
    a("ds_write_b64 v5, v[12:13]")
    a("s_cmp_eq_u32 s36, 1")
    a("s_cbranch_scc1 L_k2_m1")
    for i in range(8):
        a(f"ds_write_b128 v3, {vr(O + 32 + 4 * i, 4)} offset:{i * 1024}")
    a("s_branch L_k2_m2")
    a.label("L_k2_m1")
    for i in range(8):
        a(f"ds_write_b128 v3, {vr(O + 4 * i, 4)} offset:{i * 1024}")
    for i in range(32):
        a(f"v_mov_b32 {vr(O + i)}, {vr(O + 32 + i)}")
    a.label("L_k2_m2")
    a("s_waitcnt lgkmcnt(0)")
    a("s_barrier")
    a("ds_read_b64 v[14:15], v6")
    for i in range(8):
        a(f"ds_read_b128 {vr(O + 32 + 4 * i, 4)}, v4 offset:{i * 1024}")
    a("s_waitcnt lgkmcnt(8)")
    a("v_min_f32 v16, v12, v14")
    a("v_sub_f32 v17, v16, v12")
    a("v_sub_f32 v18, v16, v14")
    a("v_exp_f32 v17, v17")
    a("v_exp_f32 v18, v18")
    a("s_nop 0")
    a("v_mul_f32 v19, v13, v17")
    a("v_fmac_f32 v19, v15, v18")
    a("v_rcp_f32 v19, v19")
    a("s_nop 0")
    a("v_mul_f32 v17, v17, v19")
    a("v_mul_f32 v18, v18, v19")
    a("s_waitcnt lgkmcnt(0)")
    for i in range(32):
        a(f"v_mul_f32 {vr(O + i)}, {vr(O + i)}, v17")
        a(f"v_fmac_f32 {vr(O + i)}, {vr(O + 32 + i)}, v18")
    for i in range(16):
        a(f"v_cvt_pk_bf16_f32 {vr(S + i)}, {vr(O + 2 * i)}, {vr(O + 2 * i + 1)}")
    ctx_addr(a, "s56")
    a("s_lshl_b32 s49, s36, 18")
    a("s_add_u32 s48, s48, s49")
    for i in range(4):
        a(f"buffer_store_dwordx4 {vr(S + 4 * i, 4)}, v3, s[20:23], s48 offen{STF}")
        a("s_add_u32 s48, s48, 65536")
    a.label("L_k2_fin")
    if STAMPS:
        a("s_waitcnt vmcnt(0)")
        stamp(a, 10 if fused else 2)
        stamp_flush(a, 11 if fused else 5, 1, 2, 32, s_t=70, kid=(0 if fused else 1))
    if chain:
        a("s_waitcnt vmcnt(0)")
        a("s_barrier")
        wflag_set(a, 32, 4, 28, "k2out")
        return ool
    a.label("L_k2_end")
    a("s_endpgm")
    a.L += ool.L
    return name, "grid=(256,1,1) block=(512,1,1) lds=163840", 256
```

```python
MB = 1 << 20
XN_OFF = 0
KP_OFF = 4 * MB
VP_OFF = 20 * MB
CTX_OFF = 36 * MB
PART_OFF = 52 * MB
H_OFF = 72 * MB
HN_OFF = 76 * MB
ACT_OFF = 80 * MB
PART2_OFF = 128 * MB
WS_BYTES = 268435456

KA_X, KA_CKV, KA_WQ, KA_WUK, KA_WUV, KA_WO, KA_BX, KA_WG, KA_WU, KA_WD, KA_OUT, KA_DBG, KA_WS = [8 * i for i in range(13)]


class Asm:
    def __init__(self):
        self.L = []

    def __call__(self, s):
        for line in s.split("\n"):
            line = line.strip()
            if line:
                self.L.append("    " + line)

    def label(self, l):
        self.L.append(l + ":")

    def comment(self, s):
        self.L.append("    ; " + s)

    def text(self):
        return "\n".join(self.L) + "\n"


class Lgkm:
    def __init__(self):
        self.q = []

    def issue(self, tag):
        self.q.append(tag)

    def need(self, a, tags):
        idx = -1
        for i, t in enumerate(self.q):
            if t in tags:
                idx = i
        if idx < 0:
            return
        n = len(self.q) - 1 - idx
        assert n <= 15, n
        a(f"s_waitcnt lgkmcnt({n})")
        self.q = self.q[idx + 1:]


def vr(b, n=1):
    return f"v{b}" if n == 1 else f"v[{b}:{b + n - 1}]"


def sr(b, n=1):
    return f"s{b}" if n == 1 else f"s[{b}:{b + n - 1}]"


def kernel_header(a, name):
    a.L.append(f".globl {name}")
    a.L.append(".p2align 8")
    a.L.append(f".type {name},@function")
    a.label(name)


def kernel_desc(name, vgpr=256, sgpr=102):
    acc = (vgpr + 3) // 4 * 4
    return f""".amdhsa_kernel {name}
  .amdhsa_next_free_vgpr {vgpr}
  .amdhsa_next_free_sgpr {sgpr}
  .amdhsa_accum_offset {acc}
  .amdhsa_group_segment_fixed_size 0
  .amdhsa_kernarg_size 104
  .amdhsa_user_sgpr_count 2
  .amdhsa_user_sgpr_kernarg_segment_ptr 1
  .amdhsa_system_sgpr_workgroup_id_x 1
.end_amdhsa_kernel
"""


def wave_sum(a, v, t0, t1):
    a("s_nop 1")
    a(f"v_add_f32_dpp {vr(v)}, {vr(v)}, {vr(v)} quad_perm:[1,0,3,2] row_mask:0xf bank_mask:0xf")
    a("s_nop 1")
    a(f"v_add_f32_dpp {vr(v)}, {vr(v)}, {vr(v)} quad_perm:[2,3,0,1] row_mask:0xf bank_mask:0xf")
    a("s_nop 1")
    a(f"v_add_f32_dpp {vr(v)}, {vr(v)}, {vr(v)} row_half_mirror row_mask:0xf bank_mask:0xf")
    a("s_nop 1")
    a(f"v_add_f32_dpp {vr(v)}, {vr(v)}, {vr(v)} row_mirror row_mask:0xf bank_mask:0xf")
    a(f"v_mov_b32 {vr(t0)}, {vr(v)}")
    a("s_nop 1")
    a(f"v_permlane16_swap_b32 {vr(v)}, {vr(t0)}")
    a("s_nop 1")
    a(f"v_add_f32 {vr(v)}, {vr(v)}, {vr(t0)}")
    a(f"v_mov_b32 {vr(t0)}, {vr(v)}")
    a("s_nop 1")
    a(f"v_permlane32_swap_b32 {vr(v)}, {vr(t0)}")
    a("s_nop 1")
    a(f"v_add_f32 {vr(v)}, {vr(v)}, {vr(t0)}")


def round_bf16(a, v, t):
    a(f"v_cvt_pk_bf16_f32 {vr(t)}, {vr(v)}, {vr(v)}")
    a(f"v_lshlrev_b32 {vr(v)}, 16, {vr(t)}")


def make_srd(a, s, base_lo, base_hi, nrec):
    a(f"s_mov_b32 {sr(s)}, {base_lo}")
    a(f"s_and_b32 {sr(s + 1)}, {base_hi}, 0xffff")
    a(f"s_mov_b32 {sr(s + 2)}, {nrec}")
    a(f"s_mov_b32 {sr(s + 3)}, 0x00020000")


STAMP_OFF = 200 * MB
import os
STAMPS = bool(os.environ.get("STAMPS"))


def stamp(a, idx, s_t=70, srd=28):
    if not STAMPS:
        return
    a("s_waitcnt lgkmcnt(0)")
    a(f"s_memtime s[{s_t}:{s_t + 1}]")
    a("s_waitcnt lgkmcnt(0)")
    a(f"v_mov_b32 v254, s{s_t}") if False else None
    a(f"s_mov_b32 s{s_t + 2 + idx}, s{s_t}")
    if idx == 0:
        a(f"s_memrealtime s[{s_t}:{s_t + 1}]")
        a("s_waitcnt lgkmcnt(0)")
        a(f"s_mov_b32 s{s_t + 2 + 14}, s{s_t}")


def stamp_flush(a, n, vtmp0, vtmp1, s_w, s_t=90, srd=28, kid=0):
    if not STAMPS:
        return
    if s_t == 70:
        a(f"s_memrealtime s[{s_t}:{s_t + 1}]")
        a("s_waitcnt lgkmcnt(0)")
        a(f"s_mov_b32 s{s_t + 2 + 15}, s{s_t}")
    a(f"s_lshl_b32 s{s_t}, s2, 3")
    a(f"s_add_u32 s{s_t}, s{s_t}, s{s_w}")
    a(f"s_lshl_b32 s{s_t}, s{s_t}, 6")
    a(f"s_add_u32 s{s_t}, s{s_t}, {STAMP_OFF + kid * MB}")
    a(f"v_mov_b32 v{vtmp0}, 0")
    for i in list(range(n)) + ([14, 15] if s_t == 70 else []):
        a(f"v_mov_b32 v{vtmp1}, s{s_t + 2 + i}")
        a(f"buffer_store_dword v{vtmp1}, v{vtmp0}, s[{srd}:{srd + 3}], s{s_t} offen offset:{4 * i}")


def prefetch(a, ptrs, s_w, srd, vtmp, vdst, lanes, s_tmp):
    if os.environ.get("NOPF"):
        return
    a(f"s_lshl_b32 s{s_tmp}, s2, 3")
    a(f"s_add_u32 s{s_tmp}, s{s_tmp}, s{s_w}")
    a(f"s_mul_i32 s{s_tmp}, s{s_tmp}, {lanes * 128}")
    a(f"v_and_b32 v{vtmp}, 63, v0")
    a(f"v_lshlrev_b32 v{vtmp}, 7, v{vtmp}")
    a(f"s_mov_b64 exec, {(1 << lanes) - 1}")
    for i, (lo, hi, nb) in enumerate(ptrs):
        make_srd(a, srd, lo, hi, nb)
        a(f"buffer_load_dword v{vdst + i}, v{vtmp}, s[{srd}:{srd + 3}], s{s_tmp} offen")
    a("s_mov_b64 exec, -1")

STF = os.environ.get("STF", "")


DBG_SRD = 92


def dbg_setup(a):
    a(f"s_load_dwordx2 s[90:91], s[0:1], {KA_DBG}")


def dbg_srd(a):
    make_srd(a, DBG_SRD, "s90", "s91", 256)


def flag_set(a, s_w, val, tag, vt=(16, 17)):
    a(f"s_cmp_lg_u32 s{s_w}, 0")
    a(f"s_cbranch_scc1 L_fs_{tag}")
    a(f"v_mov_b32 v{vt[0]}, {val}")
    a(f"v_mov_b32 v{vt[1]}, s2")
    a("s_mov_b64 exec, 1")
    a(f"buffer_store_byte v{vt[0]}, v{vt[1]}, s[{DBG_SRD}:{DBG_SRD + 3}], 0 offen sc1")
    a("s_mov_b64 exec, -1")
    a.label(f"L_fs_{tag}")


def flag_wait(a, s_w, val, tag, mask_code, vt=(16, 17, 18)):
    a(f"s_cmp_lg_u32 s{s_w}, 0")
    a(f"s_cbranch_scc1 L_fw_{tag}_done")
    a(f"v_and_b32 v{vt[0]}, 63, v0")
    mask_code(vt[0], vt[1])
    a(f"v_lshlrev_b32 v{vt[0]}, 2, v{vt[0]}")
    a("s_mov_b32 s96, 0x100000")
    a.label(f"L_fw_{tag}_loop")
    a(f"buffer_load_dword v{vt[2]}, v{vt[0]}, s[{DBG_SRD}:{DBG_SRD + 3}], 0 offen sc1")
    a("s_waitcnt vmcnt(0)")
    a(f"v_or_b32 v{vt[2]}, 0x80808080, v{vt[2]}")
    a(f"v_subrev_u32 v{vt[2]}, {val * 0x01010101}, v{vt[2]}")
    a(f"v_and_b32 v{vt[2]}, v{vt[2]}, v{vt[1]}")
    a(f"v_cmp_ne_u32 vcc, v{vt[2]}, v{vt[1]}")
    a("s_nop 1")
    a(f"s_cbranch_vccz L_fw_{tag}_done")
    a(f"s_sleep {os.environ.get('SLP', '8')}")
    a("s_sub_u32 s96, s96, 1")
    a("s_cmp_lg_u32 s96, 0")
    a(f"s_cbranch_scc1 L_fw_{tag}_loop")
    a.label(f"L_fw_{tag}_done")
    a("s_barrier")


FLG_OFF = 120 * MB
NPHASE = 8


def wflag_zero(a, s_w, srd, vt=(16, 17)):
    a(f"s_lshl_b32 s96, s{s_w}, 8")
    a("s_add_u32 s96, s96, s2")
    a("s_lshl_b32 s96, s96, 7")
    a(f"s_add_u32 s96, s96, {FLG_OFF}")
    a(f"v_mov_b32 v{vt[0]}, 0")
    a("s_mov_b64 exec, 1")
    a(f"buffer_store_dword v{vt[0]}, v{vt[0]}, s[{srd}:{srd + 3}], s96 offen sc1")
    a("s_mov_b64 exec, -1")


def wflag_set(a, s_w, ph, srd, tag, vt=(16, 17)):
    a(f"s_cmp_lg_u32 s{s_w}, 0")
    a(f"s_cbranch_scc1 L_ws_{tag}")
    a("s_lshl_b32 s96, s2, 7")
    a(f"s_add_u32 s96, s96, {FLG_OFF + ph * 256 * 128}")
    a(f"v_mov_b32 v{vt[0]}, 1")
    a(f"v_mov_b32 v{vt[1]}, 0")
    a("s_mov_b64 exec, 1")
    a(f"buffer_store_dword v{vt[0]}, v{vt[1]}, s[{srd}:{srd + 3}], s96 offen sc1")
    a("s_mov_b64 exec, -1")
    a.label(f"L_ws_{tag}")


def wflag_wait(a, s_w, ph, srd, tag, npeers, peer_code, vt=(16, 17, 18), barrier=True):
    a(f"s_cmp_lg_u32 s{s_w}, 0")
    a(f"s_cbranch_scc1 L_ww_{tag}_done")
    a(f"v_and_b32 v{vt[0]}, 63, v0")
    peer_code(vt[0], vt[1])
    a(f"v_lshlrev_b32 v{vt[1]}, 7, v{vt[1]}")
    a(f"s_mov_b32 s97, {FLG_OFF + ph * 256 * 128}")
    a("s_mov_b32 s96, 0x100000")
    a(f"s_mov_b64 exec, {(1 << npeers) - 1}")
    a.label(f"L_ww_{tag}_loop")
    a(f"buffer_load_dword v{vt[2]}, v{vt[1]}, s[{srd}:{srd + 3}], s97 offen sc1")
    a("s_waitcnt vmcnt(0)")
    a(f"v_cmp_ne_u32 vcc, 1, v{vt[2]}")
    a("s_nop 1")
    a(f"s_cbranch_vccz L_ww_{tag}_ok")
    a(f"s_sleep {os.environ.get('SLP', '2')}")
    a("s_sub_u32 s96, s96, 1")
    a("s_cmp_lg_u32 s96, 0")
    a(f"s_cbranch_scc1 L_ww_{tag}_loop")
    a.label(f"L_ww_{tag}_ok")
    a("s_mov_b64 exec, -1")
    a.label(f"L_ww_{tag}_done")
    if barrier:
        a("s_barrier")


def zcount_add(a, s_w, tag, vt=(16, 17)):
    a(f"s_cmp_lg_u32 s{s_w}, 0")
    a(f"s_cbranch_scc1 L_zc_{tag}")
    a(f"v_mov_b32 v{vt[0]}, 1")
    a(f"v_mov_b32 v{vt[1]}, 0")
    a("s_mov_b64 exec, 1")
    a(f"buffer_atomic_add v{vt[0]}, v{vt[1]}, s[{DBG_SRD}:{DBG_SRD + 3}], 0 offen sc1")
    a("s_mov_b64 exec, -1")
    a.label(f"L_zc_{tag}")


def zcount_wait(a, s_w, tag, vt=(16, 17)):
    a(f"s_cmp_lg_u32 s{s_w}, 0")
    a(f"s_cbranch_scc1 L_zw_{tag}_done")
    a(f"v_mov_b32 v{vt[1]}, 0")
    a("s_mov_b32 s96, 0x100000")
    a("s_mov_b64 exec, 1")
    a.label(f"L_zw_{tag}_loop")
    a(f"buffer_load_dword v{vt[0]}, v{vt[1]}, s[{DBG_SRD}:{DBG_SRD + 3}], 0 offen sc1")
    a("s_waitcnt vmcnt(0)")
    a(f"v_cmp_ne_u32 vcc, 0x100, v{vt[0]}")
    a("s_nop 1")
    a(f"s_cbranch_vccz L_zw_{tag}_ok")
    a("s_sleep 8")
    a("s_sub_u32 s96, s96, 1")
    a("s_cmp_lg_u32 s96, 0")
    a(f"s_cbranch_scc1 L_zw_{tag}_loop")
    a.label(f"L_zw_{tag}_ok")
    a("s_mov_b64 exec, -1")
    a.label(f"L_zw_{tag}_done")
```

```python
from gen_common import *


class GemmCfg:
    pass


ENV = os.environ.get


def gemm_prologue_and_loop(a, c, tag):
    TN, TM, R, AH = c.TN, c.TM, c.R, c.AHEAD
    NSW, WSLOT, NST, TSLOT, TPER = c.NSW, c.WSLOT, c.NST, c.TSLOT, c.TPER
    lg = Lgkm()

    def ring_adv(sreg, slot, ns):
        a(f"s_add_u32 {sr(sreg)}, {sr(sreg)}, {slot}")
        a(f"s_cmp_eq_u32 {sr(sreg)}, {ns * slot}")
        a(f"s_cselect_b32 {sr(sreg)}, 0, {sr(sreg)}")

    def finW():
        c.advW()
        ring_adv(c.s_dmaW, WSLOT, NSW)

    def finT():
        c.advT()
        ring_adv(c.s_dmaT, TSLOT, NST)

    def rd_w(nt, ring, dreg):
        for j, (ar, imm) in enumerate(c.wread(nt)):
            if ENV("NOLDS"):
                continue
            a(f"ds_read_b64_tr_b16 {vr(c.wfrag(ring) + 2 * j, 2)}, {vr(ar)} offset:{imm}")
            lg.issue(("W", ring))
        for r_ in c.wadv(nt):
            a(f"v_add_u32 {vr(r_)}, {sr(dreg)}, {vr(r_)}")

    def rd_t(buf, tt, dreg):
        ar, imm = c.tread(buf, tt)
        if not ENV("NOLDS"):
            a(f"ds_read_b128 {vr(c.tfrag(buf, tt), 4)}, {vr(ar)} offset:{imm}")
            lg.issue(("T", buf))
        if tt == TM - 1:
            for r_ in c.tadv(buf):
                a(f"v_add_u32 {vr(r_)}, {sr(dreg)}, {vr(r_)}")

    a(f"s_mov_b32 {sr(c.s_dmaW)}, 0")
    a(f"s_mov_b32 {sr(c.s_dmaT)}, 0")
    stamp(a, 7)
    DW = len(c.dmaW())
    DT = len(c.dmaT(0))
    issued = []
    mid_done = False
    if TPER == 1:
        assert NST == NSW
        if getattr(c, "pre_T", None):
            for s in range(NSW - 1):
                for f in c.dmaW():
                    f(); issued.append(("W", s))
                finW()
            c.pre_T()
            for s in range(NSW - 1):
                for f in c.dmaT(0):
                    f(); issued.append(("T", 0 if s < 2 else s))
                finT()
        else:
            for s in range(NSW - 1):
                for f in c.dmaW():
                    f(); issued.append(("W", s))
                finW()
                for f in c.dmaT(0):
                    f(); issued.append(("T", s))
                finT()
        VM_LOOP = (NSW - 3) * (DW + DT)
    else:
        tq = [(t, h) for t in range(NST - 1) for h in range(2)] + [(NST - 1, 0)]
        for s in range(NSW - 1):
            for f in c.dmaW():
                f(); issued.append(("W", s))
            finW()
            n_t = 2 if len(tq) > (NSW - 1 - s) else 1
            for _ in range(n_t):
                if tq:
                    t, h = tq.pop(0)
                    for f in c.dmaT(h):
                        f(); issued.append(("T", t))
                    if h == 1:
                        finT()
            if s == int(ENV("MIDAT", "99")) and getattr(c, "mid", None):
                c.mid(len(issued))
                mid_done = True
        assert not tq
        VM_LOOP = (NSW - 3) * (DW + DT) + DT
    if getattr(c, "mid", None) and not mid_done:
        c.mid(len(issued))
    for nt in range(TN):
        for tt in range(TM):
            for r_ in range(4):
                a(f"v_mov_b32 {vr(c.acc(nt, tt) + r_)}, 0")
    a(f"s_mov_b32 {sr(c.s_dB)}, {WSLOT}")
    a(f"s_mov_b32 {sr(c.s_slotW)}, {WSLOT}")
    a(f"s_mov_b32 {sr(c.s_sl)}, 0")
    a(f"s_mov_b32 {sr(c.s_dT)}, {TSLOT}")
    a(f"s_mov_b32 {sr(c.s_slotT)}, {TSLOT}")
    a(f"s_mov_b32 {sr(c.s_slT)}, 0")
    stamp(a, 6)
    last0 = max(i for i, x in enumerate(issued) if x[1] == 0)
    a(f"s_waitcnt vmcnt({len(issued) - 1 - last0})")
    a("s_barrier")
    stamp(a, 1)
    if getattr(c, "post_bar", None):
        c.post_bar(tag)
    TPOS = c.TPOS
    order = []
    for n in range(TN):
        if n + AH >= TN:
            order.append(("W", n + AH - TN))
        if 0 <= n - TPOS < TM:
            order.append(("T", n - TPOS))
    for kind, i in order:
        if kind == "W":
            rd_w(i, i % R, c.s_dB)
        else:
            rd_t(0, i, c.s_dT)
    q0 = list(lg.q)
    a(f"s_mov_b32 {sr(c.s_cnt)}, {c.NSTEPS // 2}")
    a.label(f"L_{tag}_loop")
    for p in range(2):
        a(f"s_waitcnt vmcnt({VM_LOOP})")
        if not ENV("NOBAR"):
            a("s_barrier")
        if p == 0 and getattr(c, "inloop", None):
            c.inloop(tag)
        a(f"s_mov_b32 {sr(c.s_dA)}, {sr(c.s_dB)}")
        a(f"s_add_u32 {sr(c.s_sl)}, {sr(c.s_sl)}, 1")
        a(f"s_cmp_eq_u32 {sr(c.s_sl)}, {NSW}")
        a(f"s_cselect_b32 {sr(c.s_sl)}, 0, {sr(c.s_sl)}")
        a(f"s_cmp_eq_u32 {sr(c.s_sl)}, {NSW - 1}")
        a(f"s_cselect_b32 {sr(c.s_dB)}, {(-(NSW - 1) * WSLOT) & 0xffffffff}, {sr(c.s_slotW)}")
        if TPER == 1 or p == 1:
            a(f"s_add_u32 {sr(c.s_slT)}, {sr(c.s_slT)}, 1")
            a(f"s_cmp_eq_u32 {sr(c.s_slT)}, {NST}")
            a(f"s_cselect_b32 {sr(c.s_slT)}, 0, {sr(c.s_slT)}")
            a(f"s_cmp_eq_u32 {sr(c.s_slT)}, {NST - 1}")
            a(f"s_cselect_b32 {sr(c.s_dT)}, {(-(NST - 1) * TSLOT) & 0xffffffff}, {sr(c.s_slotT)}")
        h = 0 if TPER == 1 else (1 - p)
        dmas = c.dmaW() + [finW] + c.dmaT(h) + ([finT] if (TPER == 1 or h == 1) else [])
        if ENV("NODMA"):
            dmas = []
        allp = [(n, tt) for n in range(TN) for tt in range(TM)]
        nd = DW + DT
        frac = float(ENV("DFRAC", "0.8"))
        slots = [allp[int(j * len(allp) * frac / nd)] for j in range(nd)]
        k = 0
        for n in range(TN):
            gi = p * TN + n
            nt2 = n + AH
            if nt2 < TN:
                rd_w(nt2, (gi + AH) % R, c.s_dA)
            else:
                rd_w(nt2 - TN, (gi + AH) % R, c.s_dB)
            if 0 <= n - TPOS < TM:
                rd_t(p ^ 1, n - TPOS, c.s_dT)
            need = [("W", gi % R)]
            if n == 0:
                need.append(("T", p))
            lg.need(a, need)
            for tt in range(TM):
                w_, t_ = vr(c.wfrag(gi % R), 4), vr(c.tfrag(p, tt), 4)
                ac = vr(c.acc(n, tt), 4)
                if c.swap:
                    a(f"v_mfma_f32_16x16x32_bf16 {ac}, {t_}, {w_}, {ac}")
                else:
                    a(f"v_mfma_f32_16x16x32_bf16 {ac}, {w_}, {t_}, {ac}")
                if (n, tt) in slots and dmas:
                    f = dmas.pop(0)
                    f()
                    while dmas and dmas[0] in (finW, finT):
                        dmas.pop(0)()
        assert not dmas
    assert lg.q == q0[len(q0) - len(lg.q):], (lg.q, q0)
    a(f"s_sub_u32 {sr(c.s_cnt)}, {sr(c.s_cnt)}, 1")
    a(f"s_cmp_lg_u32 {sr(c.s_cnt)}, 0")
    a(f"s_cbranch_scc1 L_{tag}_loop")
    a("s_waitcnt lgkmcnt(0)")
    a("s_nop 7")
    a("s_nop 7")
    stamp(a, 2)


def gen_k1(a, fused=False):
    name = fused if fused else "k1_kv_kernel"
    STF = " sc1" if fused else globals()["STF"]
    PFMODE = ENV("PFMODE", "loop")
    KVF = {"sc1": " sc1", "nt": " nt", "plain": ""}[ENV("KVF", "sc1")]
    kernel_header(a, name)
    a("s_cmp_ge_u32 s2, 256")
    a("s_cbranch_scc1 L_k67c_end" if fused else "s_cbranch_scc1 L_k1_end")
    if fused:
        dbg_setup(a)
    a(f"s_load_dwordx4 s[4:7], s[0:1], {KA_X}")
    a(f"s_load_dwordx4 s[8:11], s[0:1], {KA_WUK}")
    a(f"s_load_dwordx2 s[12:13], s[0:1], {KA_WS}")
    a(f"s_load_dwordx2 s[14:15], s[0:1], {KA_WQ}")
    a("v_lshrrev_b32 v1, 6, v0")
    a("v_and_b32 v2, 63, v0")
    a("s_nop 0")
    a("v_readfirstlane_b32 s32, v1")
    a("s_and_b32 s34, s2, 7")
    a("s_lshl_b32 s34, s34, 2")
    a("s_lshr_b32 s48, s2, 3")
    a("s_and_b32 s48, s48, 3")
    a("s_add_u32 s34, s34, s48")
    a("s_lshr_b32 s33, s2, 5")
    a("s_lshr_b32 s35, s32, 1")
    a("s_and_b32 s36, s32, 1")
    a("s_lshl_b32 s40, s32, 11")
    a("s_waitcnt lgkmcnt(0)")
    stamp(a, 0)
    a("s_lshl_b32 s48, s33, 18")
    a("s_add_u32 s6, s6, s48")
    a("s_addc_u32 s7, s7, 0")
    make_srd(a, 16, "s6", "s7", 256 * 1024)
    a(f"s_mov_b32 s46, {256 * 1024}")
    a("s_cmp_ge_u32 s34, 16")
    a("s_cselect_b32 s8, s10, s8")
    a("s_cselect_b32 s9, s11, s9")
    a("s_and_b32 s48, s34, 15")
    a("s_lshl_b32 s48, s48, 9")
    a("s_add_u32 s8, s8, s48")
    a("s_addc_u32 s9, s9, 0")
    a(f"s_sub_u32 s47, {512 * 8192}, s48")
    make_srd(a, 20, "s8", "s9", "s47")
    make_srd(a, 24, "s4", "s5", 2048 * 1152)
    make_srd(a, 28, "s12", "s13", WS_BYTES)
    if fused:
        dbg_srd(a)
    wflag_zero(a, 32, 28)
    a("s_lshl_b32 s49, s2, 3")
    a("s_add_u32 s49, s49, s32")
    a("s_mul_i32 s50, s49, 1152")
    a("v_lshlrev_b32 v3, 4, v2")
    for i in range(8, 12):
        a(f"v_mov_b32 v{i}, 0")
    a("buffer_load_dwordx4 v[4:7], v3, s[24:27], s50 offen")
    a("s_mov_b64 exec, 0xff")
    a("buffer_load_dwordx4 v[8:11], v3, s[24:27], s50 offen offset:1024")
    a("s_mov_b64 exec, -1")
    vA = 56
    vW0, vW1 = 66, 67
    vT0, vT1 = 70, 71
    vWa = 72
    WBASE = 3 * 32768
    a("v_lshrrev_b32 v20, 3, v2")
    a("s_lshl_b32 s48, s32, 5")
    a("v_add_u32 v20, s48, v20")
    a("v_lshlrev_b32 v20, 10, v20")
    a("v_lshrrev_b32 v21, 5, v2")
    a("v_and_b32 v22, 7, v2")
    a("v_bfe_u32 v24, v2, 4, 1")
    a("v_lshlrev_b32 v24, 2, v24")
    a("v_xor_b32 v22, v22, v24")
    for j in range(4):
        a(f"v_sub_u32 v23, {(-2 * (j >> 1)) & 3}, v21")
        a("v_and_b32 v23, 3, v23")
        a("v_xor_b32 v23, v23, v22")
        a("v_lshl_add_u32 v23, v23, 4, v20")
        a(f"v_add_u32 {vr(vA + j)}, {j * 8 * 1024}, v23")
    a("v_lshrrev_b32 v20, 5, v2")
    a("v_bfe_u32 v21, v2, 1, 4")
    a("v_and_b32 v22, 1, v2")
    a("s_and_b32 s48, s35, 1")
    a("s_lshl_b32 s48, s48, 2")
    a("s_lshl_b32 s51, s32, 2")
    for j, vd in ((0, vW0), (1, vW1)):
        a(f"v_add_u32 v23, {2 * j}, v20")
        a("v_or_b32 v24, s48, v23")
        a("v_xor_b32 v24, v24, v21")
        a("v_lshrrev_b32 v25, 1, v24")
        a("v_lshlrev_b32 v25, 2, v25")
        a("v_and_b32 v24, 1, v24")
        a("v_add_u32 v25, v25, v24")
        a("v_lshl_add_u32 v25, v22, 1, v25")
        a("v_add_u32 v23, s51, v23")
        a("v_lshlrev_b32 v23, 13, v23")
        a(f"v_lshl_add_u32 {vr(vd)}, v25, 4, v23")
    a("v_and_b32 v62, 15, v2")
    a("v_lshrrev_b32 v61, 4, v2")
    a("v_bfe_u32 v20, v2, 3, 1")
    a("v_lshlrev_b32 v20, 4, v20")
    a("v_and_b32 v21, 7, v2")
    a("v_add_u32 v60, v20, v21")
    a("v_lshrrev_b32 v20, 2, v62")
    a("v_sub_u32 v20, 0, v20")
    a("v_and_b32 v20, 3, v20")
    a("v_xor_b32 v20, v20, v61")
    a("v_bfe_u32 v21, v2, 1, 1")
    a("v_lshl_or_b32 v20, v21, 2, v20")
    a("s_lshl_b32 s48, s35, 6")
    a("v_add_u32 v21, s48, v60")
    a("v_lshlrev_b32 v21, 7, v21")
    a(f"v_lshl_add_u32 {vr(vT0)}, v20, 4, v21")
    a(f"v_xor_b32 {vr(vT1)}, 64, {vr(vT0)}")
    a("v_bfe_u32 v20, v2, 2, 2")
    a("v_and_b32 v21, 1, v61")
    a("v_lshl_or_b32 v21, v21, 2, v20")
    a("v_lshl_add_u32 v22, v61, 3, v20")
    a("v_lshlrev_b32 v22, 9, v22")
    a("v_and_b32 v23, 3, v2")
    a("v_lshl_add_u32 v22, v23, 3, v22")
    a("s_lshl_b32 s48, s36, 8")
    a(f"s_add_u32 s48, s48, {WBASE}")
    a("v_add_u32 v22, s48, v22")
    for nt in range(8):
        a(f"v_xor_b32 v23, {nt}, v21")
        a(f"v_lshl_add_u32 {vr(vWa + nt)}, v23, 5, v22")
    a("s_mov_b32 s37, 0")
    a("s_mov_b32 s38, 0")

    a("s_mov_b32 s44, 0")
    a("s_mov_b32 s53, 0")
    a("s_lshl_b32 s54, s32, 12")
    a(f"s_add_u32 s40, s40, {WBASE}")
    c = GemmCfg()
    c.TN, c.TM, c.R, c.AHEAD, c.NSTEPS = 8, 4, 4, 3, 16
    c.NSW, c.WSLOT, c.NST, c.TSLOT, c.TPER = 4, 16384, 3, 32768, 2
    c.TPOS = 0
    c.DMA_EVERY = 4
    c.acc = lambda nt, tt: 128 + (nt * 4 + tt) * 4
    c.tfrag = lambda buf, tt: 96 + buf * 16 + tt * 4
    c.wfrag = lambda r_: 80 + r_ * 4
    c.wread = lambda nt: [(vWa + nt, 0), (vWa + nt, 2048)]
    c.wadv = lambda nt: [vWa + nt]
    c.tread = lambda q, tt: ((vT0, vT1)[q], (32 * (tt >> 1) + 8 * (tt & 1)) * 128)
    c.tadv = lambda q: [(vT0, vT1)[q]]
    c.s_dA, c.s_dB, c.s_sl, c.s_dmaW, c.s_cnt, c.s_slotW = 41, 42, 43, 39, 45, 52
    c.s_dT, c.s_slT, c.s_dmaT, c.s_slotT = 55, 56, 57, 58

    def dmaW():
        def d2():
            a("s_add_u32 m0, s39, s40")
            a("s_nop 0")
            a(f"buffer_load_dwordx4 {vr(vW0)}, s[20:23], s38 offen lds")

        def d3():
            a("s_add_u32 m0, m0, 1024")
            a("s_nop 0")
            a(f"buffer_load_dwordx4 {vr(vW1)}, s[20:23], s38 offen lds")
        return [d2, d3]
    c.dmaW = dmaW

    def dmaT(h):
        def d0():
            a("s_add_u32 m0, s57, s54")
            if h:
                a("s_add_u32 m0, m0, 2048")
            a("s_nop 0")
            a(f"buffer_load_dwordx4 {vr(vA + 2 * h)}, s[16:19], s37 offen lds")

        def d1():
            a("s_add_u32 m0, m0, 1024")
            a("s_nop 0")
            a(f"buffer_load_dwordx4 {vr(vA + 2 * h + 1)}, s[16:19], s37 offen lds")
        return [d0, d1]
    c.dmaT = dmaT

    def advW():
        a(f"s_add_u32 s38, s38, {32 * 8192}")
        a("s_add_u32 s44, s44, 1")
        a(f"s_cmp_lt_u32 s44, {c.NSTEPS}")
        a("s_cselect_b32 s22, s47, 0")
    c.advW = advW

    def advT():
        a("s_add_u32 s37, s37, 128")
        a("s_add_u32 s53, s53, 1")
        a(f"s_cmp_lt_u32 s53, {c.NSTEPS // 2}")
        a("s_cselect_b32 s18, s46, 0")
    c.advT = advT

    def mid(nis):
        stamp(a, 4)
        a(f"s_waitcnt vmcnt({nis})")
        stamp(a, 5)
        for i in range(8):
            a(f"v_lshlrev_b32 v{20 + 2 * i}, 16, v{4 + i}")
            a(f"v_and_b32 v{21 + 2 * i}, 0xffff0000, v{4 + i}")
        a("v_add_f32 v36, v20, v21")
        for i in range(22, 36):
            a(f"v_add_f32 v36, v36, v{i}")
        wave_sum(a, 36, 37, 38)
        a(f"v_mul_f32 v36, {1.0 / 576.0!r}, v36")
        a("v_mov_b32 v39, 0")
        for i in range(20, 28):
            a(f"v_sub_f32 v37, v{i}, v36")
            a("v_fmac_f32 v39, v37, v37")
        a("s_mov_b64 exec, 0xff")
        for i in range(28, 36):
            a(f"v_sub_f32 v37, v{i}, v36")
            a("v_fmac_f32 v39, v37, v37")
        a("s_mov_b64 exec, -1")
        wave_sum(a, 39, 37, 38)
        a(f"v_mul_f32 v39, {1.0 / 576.0!r}, v39")
        round_bf16(a, 39, 37)
        a("v_add_f32 v39, 0x3727c5ac, v39")
        round_bf16(a, 39, 37)
        a("v_sqrt_f32 v39, v39")
        a("s_nop 0")
        round_bf16(a, 39, 37)
        a("v_rcp_f32 v39, v39")
        round_bf16(a, 36, 37)
        for i in range(8):
            a(f"v_sub_f32 v{20 + 2 * i}, v{20 + 2 * i}, v36")
            a(f"v_sub_f32 v{21 + 2 * i}, v{21 + 2 * i}, v36")
            a(f"v_cvt_pk_bf16_f32 v37, v{20 + 2 * i}, v{21 + 2 * i}")
            a(f"v_lshlrev_b32 v{20 + 2 * i}, 16, v37")
            a(f"v_and_b32 v{21 + 2 * i}, 0xffff0000, v37")
            a(f"v_mul_f32 v{20 + 2 * i}, v{20 + 2 * i}, v39")
            a(f"v_mul_f32 v{21 + 2 * i}, v{21 + 2 * i}, v39")
            a(f"v_cvt_pk_bf16_f32 v{4 + i}, v{20 + 2 * i}, v{21 + 2 * i}")
        a("s_lshr_b32 s50, s49, 5")
        a("s_mul_i32 s50, s50, 36864")
        a("s_and_b32 s51, s49, 31")
        a("s_lshl_b32 s51, s51, 4")
        a("s_add_u32 s50, s50, s51")
        a(f"s_add_u32 s50, s50, {XN_OFF}")
        a("v_lshrrev_b32 v37, 1, v2")
        a("v_lshlrev_b32 v37, 10, v37")
        a("v_and_b32 v38, 1, v2")
        a("v_lshl_add_u32 v37, v38, 9, v37")
        a(f"buffer_store_dwordx4 v[4:7], v37, s[28:31], s50 offen{STF}")
        a(f"s_add_u32 s50, s50, {32 * 1024}")
        a("s_mov_b64 exec, 0xff")
        a(f"buffer_store_dwordx4 v[8:11], v37, s[28:31], s50 offen{STF}")
        a("s_mov_b64 exec, -1")
        if PFMODE == "mid":
            prefetch(a, [("s14", "s15", 576 * 8192)], 32, 24, 50, 51, 18, 48)
    c.mid = mid
    if fused:
        c.post_bar = lambda tag: zcount_add(a, 32, tag)

    def inloop(tag):
        a(f"s_cmp_lg_u32 s45, {ENV('PFIT', '6')}")
        a(f"s_cbranch_scc1 L_{tag}_nopf")
        prefetch(a, [("s14", "s15", 576 * 8192)], 32, 24, 50, 51, 18, 48)
        if fused:
            wflag_set(a, 32, 5, 28, "xn" + tag, vt=(52, 53))
        a.label(f"L_{tag}_nopf")
    if PFMODE == "loop":
        c.inloop = inloop

    a("s_cmp_ge_u32 s34, 16")
    a("s_cbranch_scc1 L_k1_vpath")
    c.swap = False
    gemm_prologue_and_loop(a, c, "k1k")
    VA = 12 if fused else 24
    SB = "s66" if fused else "s48"
    ST = "s68" if fused else "s49"

    def kv_addr(off):
        a("s_and_b32 s48, s34, 15")
        a("s_lshl_b32 s48, s48, 1")
        a("s_add_u32 s48, s48, s36")
        a("s_lshl_b32 s48, s48, 6")
        a("s_lshl_b32 s49, s33, 3")
        a("s_add_u32 s48, s48, s49")
        a("s_lshl_b32 s49, s35, 1")
        a("s_add_u32 s48, s48, s49")
        a("s_lshl_b32 s48, s48, 13")
        a(f"s_add_u32 {SB}, s48, {off}")
        a("v_bfe_u32 v20, v62, 2, 1")
        a("v_xor_b32 v20, v20, v61")
        a("v_lshlrev_b32 v21, 6, v60")
        a(f"v_lshl_add_u32 v{VA}, v20, 4, v21")
        a(f"v_xor_b32 v{VA + 1}, 32, v{VA}")

    def k_addr():
        kv_addr(KP_OFF)

    def v_addr():
        kv_addr(VP_OFF)

    def k_store():
        k = 0
        for tt in range(4):
            for P in range(4):
                t = 32 + (k % 4) * 4
                k += 1
                a0, a1 = c.acc(2 * P, tt), c.acc(2 * P + 1, tt)
                a(f"s_add_u32 {ST}, {SB}, {(tt >> 1) * 8192 + P * 2048}")
                a(f"v_cvt_pk_bf16_f32 v{t}, v{a0}, v{a0 + 1}")
                a(f"v_cvt_pk_bf16_f32 v{t + 1}, v{a0 + 2}, v{a0 + 3}")
                a(f"v_cvt_pk_bf16_f32 v{t + 2}, v{a1}, v{a1 + 1}")
                a(f"v_cvt_pk_bf16_f32 v{t + 3}, v{a1 + 2}, v{a1 + 3}")
                a(f"buffer_store_dwordx4 v[{t}:{t + 3}], v{VA + (tt & 1)}, s[28:31], {ST} offen offset:{(tt & 1) * 512}{STF}")

    def v_store():
        k = 0
        for nt in range(8):
            P, T = nt >> 1, nt & 1
            for Q in range(2):
                t = 32 + (k % 4) * 4
                k += 1
                a0, a1 = c.acc(nt, 2 * Q), c.acc(nt, 2 * Q + 1)
                a(f"s_add_u32 {ST}, {SB}, {Q * 8192 + P * 2048}")
                a(f"v_cvt_pk_bf16_f32 v{t}, v{a0}, v{a0 + 1}")
                a(f"v_cvt_pk_bf16_f32 v{t + 1}, v{a0 + 2}, v{a0 + 3}")
                a(f"v_cvt_pk_bf16_f32 v{t + 2}, v{a1}, v{a1 + 1}")
                a(f"v_cvt_pk_bf16_f32 v{t + 3}, v{a1 + 2}, v{a1 + 3}")
                a(f"buffer_store_dwordx4 v[{t}:{t + 3}], v{VA + T}, s[28:31], {ST} offen offset:{T * 512}{STF}")

    def fin():
        if STAMPS:
            a("s_waitcnt vmcnt(0)")
            stamp(a, 3)
            stamp_flush(a, 8, 1, 2, 32, s_t=70)
    if fused:
        k_addr()
        a("s_mov_b32 s67, 0")
        a("s_branch L_k12_mid")
    else:
        if PFMODE == "end":
            prefetch(a, [("s14", "s15", 576 * 8192)], 32, 16, 50, 51, 18, 48)
        k_addr()
        k_store()
        fin()
        a("s_endpgm")
    a.label("L_k1_vpath")
    c.swap = True
    gemm_prologue_and_loop(a, c, "k1v")
    if fused:
        v_addr()
        a("s_mov_b32 s67, 1")
        a.label("L_k12_mid")

        def pack():
            a("s_cmp_eq_u32 s67, 1")
            a("s_cbranch_scc1 L_k12_vpk")
            for P in range(4):
                for tt in range(4):
                    a0, a1 = c.acc(2 * P, tt), c.acc(2 * P + 1, tt)
                    a(f"v_cvt_pk_bf16_f32 v{a0}, v{a0}, v{a0 + 1}")
                    a(f"v_cvt_pk_bf16_f32 v{a0 + 1}, v{a0 + 2}, v{a0 + 3}")
                    a(f"v_cvt_pk_bf16_f32 v{a0 + 2}, v{a1}, v{a1 + 1}")
                    a(f"v_cvt_pk_bf16_f32 v{a0 + 3}, v{a1 + 2}, v{a1 + 3}")
            a("s_branch L_k12_pkdone")
            a.label("L_k12_vpk")
            for P in range(4):
                for cc in range(4):
                    src = 128 + 32 * P + 8 * cc
                    d = 128 + 32 * P + 4 * cc
                    for j in range(4):
                        a(f"v_cvt_pk_bf16_f32 v{d + j}, v{src + 2 * j}, v{src + 2 * j + 1}")
            a.label("L_k12_pkdone")

        def store(k, sfx):
            kk = f'{k}{sfx}'
            P, cc = k // 4, k % 4
            d = 128 + 32 * P + 4 * cc
            offK = (cc >> 1) * 8192 + P * 2048 + (cc & 1) * 512
            offV = (cc & 1) * 8192 + P * 2048 + (cc >> 1) * 512
            a("s_cmp_eq_u32 s67, 1")
            a(f"s_cbranch_scc1 L_k12_sv{kk}")
            a(f"s_add_u32 s68, s66, {offK}")
            a(f"buffer_store_dwordx4 v[{d}:{d + 3}], v{VA + (cc & 1)}, s[28:31], s68 offen{KVF}")
            a(f"s_branch L_k12_sd{kk}")
            a.label(f"L_k12_sv{kk}")
            a(f"s_add_u32 s68, s66, {offV}")
            a(f"buffer_store_dwordx4 v[{d}:{d + 3}], v{VA + (cc >> 1)}, s[28:31], s68 offen{KVF}")
            a.label(f"L_k12_sd{kk}")
        return pack, store
    if PFMODE == "end":
        prefetch(a, [("s14", "s15", 576 * 8192)], 32, 16, 50, 51, 18, 48)
    v_addr()
    v_store()
    fin()
    a.label("L_k1_end")
    a("s_endpgm")
    return name, "grid=(256,1,1) block=(512,1,1) lds=163840", 256


def gen_empty(a):
    name = "k0_empty_kernel"
    kernel_header(a, name)
    a("s_endpgm")
    return name, "grid=(256,1,1) block=(512,1,1) lds=163840", 256
```

```python
import math
from gen_common import *
from gen_gemm import *


def div18(a, vq, vr_, vin, vtmp):
    a(f"v_mul_u32_u24 {vr(vq)}, 3641, {vr(vin)}")
    a(f"v_lshrrev_b32 {vr(vq)}, 16, {vr(vq)}")
    a(f"v_mul_u32_u24 {vr(vtmp)}, 18, {vr(vq)}")
    a(f"v_sub_u32 {vr(vr_)}, {vr(vin)}, {vr(vtmp)}")


def gen_splitk(name, KA_W, A_OFF, NSTAGE, kid, fuse_ln=None, chain_in=False, chain_out=False, endlabel=None):
    PART = PART2_OFF if fuse_ln is False else PART_OFF

    def g(a):
        if not chain_in:
            kernel_header(a, name)
            a("s_cmp_ge_u32 s2, 256")
            a(f"s_cbranch_scc1 {endlabel or ('L_' + name + '_end')}")
        a(f"s_load_dwordx2 s[8:9], s[0:1], {KA_W}")
        a(f"s_load_dwordx2 s[12:13], s[0:1], {KA_WS}")
        if fuse_ln is not None:
            dbg_setup(a)
            a(f"s_load_dwordx2 s[4:5], s[0:1], {KA_X if fuse_ln else KA_OUT}")
        a("v_lshrrev_b32 v1, 6, v0")
        a("v_and_b32 v2, 63, v0")
        a("s_nop 0")
        a("v_readfirstlane_b32 s32, v1")
        a("s_and_b32 s48, s2, 7")
        a("s_lshr_b32 s49, s2, 3")
        a("s_lshr_b32 s33, s48, 1")
        a("s_and_b32 s34, s48, 1")
        a("s_lshl_b32 s34, s34, 3")
        a("s_lshr_b32 s50, s49, 2")
        a("s_add_u32 s34, s34, s50")
        a("s_and_b32 s35, s49, 3")
        a("s_and_b32 s36, s32, 3")
        a("s_lshr_b32 s37, s32, 2")
        a("s_waitcnt lgkmcnt(0)")
        stamp(a, 0)
        KTOT = NSTAGE * 64 * 4
        make_srd(a, 20, "s8", "s9", KTOT * 1152)
        a(f"s_mov_b32 s47, {KTOT * 1152}")
        make_srd(a, 16, "s12", "s13", WS_BYTES)
        a(f"s_mov_b32 s46, {WS_BYTES}")
        make_srd(a, 28, "s12", "s13", WS_BYTES)
        if fuse_ln is not None:
            dbg_srd(a)
        TS, WS_ = 16384, 18432
        WBASE = 4 * TS
        vA0, vA1, vW0, vW1, vW2, vT, vWa, vWb = 64, 65, 66, 67, 68, 70, 71, 69
        a("v_lshrrev_b32 v20, 3, v2")
        a("s_lshl_b32 s48, s32, 4")
        a("v_add_u32 v20, s48, v20")
        a("v_lshlrev_b32 v20, 5, v20")
        a("v_lshrrev_b32 v21, 4, v2")
        a("v_and_b32 v22, 7, v2")
        a("v_xor_b32 v21, v21, v22")
        a("v_and_b32 v22, 1, v21")
        a("v_lshl_add_u32 v20, v22, 4, v20")
        a("v_lshrrev_b32 v21, 1, v21")
        a(f"v_lshl_add_u32 {vr(vA0)}, v21, 16, v20")
        a("v_xor_b32 v21, 2, v21")
        a("v_lshl_add_u32 v21, v21, 16, v20")
        a(f"v_add_u32 {vr(vA1)}, 256, v21")
        a(f"s_mul_i32 s38, s33, {NSTAGE * 262144}")
        a("s_lshl_b32 s48, s34, 12")
        a("s_add_u32 s38, s38, s48")
        a(f"s_add_u32 s38, s38, {A_OFF}")
        for j, vd in ((0, vW0), (1, vW1), (2, vW2)):
            a(f"v_add_u32 v20, {64 * j}, v2")
            div18(a, 21, 22, 20, 23)
            a("v_and_b32 v23, 1, v22")
            a("v_bfe_u32 v24, v22, 1, 1")
            a("v_lshl_or_b32 v23, v23, 1, v24")
            a("v_and_b32 v24, 28, v22")
            a("v_or_b32 v23, v23, v24")
            a("v_cmp_gt_u32 vcc, 16, v22")
            a("s_nop 1")
            a("v_cndmask_b32 v22, v22, v23, vcc")
            a("s_lshl_b32 s48, s32, 3")
            a("v_add_u32 v21, s48, v21")
            a("v_mul_u32_u24 v21, 1152, v21")
            a(f"v_lshl_add_u32 {vr(vd)}, v22, 4, v21")
        a(f"s_mul_i32 s39, s33, {NSTAGE * 64 * 1152}")
        a("s_mul_i32 s48, s35, 288")
        a("s_add_u32 s39, s39, s48")
        a("s_lshl_b32 s40, s32, 11")
        a("s_mul_i32 s41, s32, 2304")
        a(f"s_add_u32 s41, s41, {WBASE}")
        a("v_and_b32 v62, 15, v2")
        a("v_lshrrev_b32 v61, 4, v2")
        a("s_lshl_b32 s48, s37, 2")
        a("v_add_u32 v20, s48, v61")
        a("v_lshrrev_b32 v21, 1, v62")
        a("v_xor_b32 v20, v20, v21")
        a("s_lshl_b32 s48, s36, 5")
        a("v_add_u32 v21, s48, v62")
        a("v_lshlrev_b32 v21, 7, v21")
        a(f"v_lshl_add_u32 {vr(vT)}, v20, 4, v21")
        a("v_lshrrev_b32 v20, 5, v2")
        a("v_lshlrev_b32 v20, 4, v20")
        a("v_bfe_u32 v21, v2, 2, 3")
        a("v_add_u32 v20, v20, v21")
        a("s_lshl_b32 s48, s37, 5")
        a("v_add_u32 v20, s48, v20")
        a("v_mul_u32_u24 v20, 288, v20")
        a(f"v_add_u32 v20, {WBASE}, v20")
        a("v_and_b32 v21, 3, v2")
        a(f"v_lshl_add_u32 {vr(vWa)}, v21, 3, v20")
        a("v_and_b32 v22, 1, v2")
        a("v_lshl_add_u32 v20, v22, 4, v20")
        a("v_bfe_u32 v22, v2, 1, 1")
        a(f"v_lshl_add_u32 {vr(vWb)}, v22, 3, v20")
        a("s_mov_b32 s44, 0")
        c = GemmCfg()
        c.TN, c.TM, c.R, c.AHEAD, c.NSTEPS = 9, 2, 6, 5, NSTAGE
        c.NSW, c.WSLOT, c.NST, c.TSLOT, c.TPER = 4, WS_, 4, TS, 1
        c.TPOS = 0
        c.DMA_EVERY = 2
        c.swap = False
        c.acc = lambda nt, tt: 128 + (nt * 2 + tt) * 4
        c.tfrag = lambda buf, tt: 112 + buf * 8 + tt * 4
        c.wfrag = lambda r_: 80 + r_ * 4
        c.wread = lambda nt: [(vWb if nt == 8 else vWa, nt * 32), (vWb if nt == 8 else vWa, nt * 32 + 8 * 288)]
        c.wadv = lambda nt: [vWa] if nt == 7 else ([vWb] if nt == 8 else [])
        c.tread = lambda q, tt: (vT, tt * 2048)
        c.tadv = lambda q: [vT]
        c.s_dA, c.s_dB, c.s_sl, c.s_dmaW, c.s_cnt, c.s_slotW = 50, 51, 52, 53, 45, 54
        c.s_dT, c.s_slT, c.s_dmaT, c.s_slotT = 55, 56, 57, 58

        def dmaW():
            def d0():
                a("s_add_u32 m0, s53, s41")
                a("s_nop 0")
                a(f"buffer_load_dwordx4 {vr(vW0)}, s[20:23], s39 offen lds")

            def d1():
                a("s_add_u32 m0, m0, 1024")
                a("s_nop 0")
                a(f"buffer_load_dwordx4 {vr(vW1)}, s[20:23], s39 offen lds")

            def d2():
                a("s_add_u32 m0, m0, 1024")
                a("s_mov_b64 exec, 0xffff")
                a(f"buffer_load_dwordx4 {vr(vW2)}, s[20:23], s39 offen lds")
                a("s_mov_b64 exec, -1")
            return [d0, d1, d2]
        c.dmaW = dmaW

        def dmaT(h):
            def d0():
                a("s_add_u32 m0, s57, s40")
                a("s_nop 0")
                a(f"buffer_load_dwordx4 {vr(vA0)}, s[16:19], s38 offen lds")

            def d1():
                a("s_add_u32 m0, m0, 1024")
                a("s_nop 0")
                a(f"buffer_load_dwordx4 {vr(vA1)}, s[16:19], s38 offen lds")
            return [d0, d1]
        c.dmaT = dmaT

        def advW():
            a(f"s_add_u32 s39, s39, {64 * 1152}")
        c.advW = advW

        def advT():
            a("s_add_u32 s38, s38, 262144")
            a("s_add_u32 s44, s44, 1")
            a(f"s_cmp_lt_u32 s44, {NSTAGE}")
            a("s_cselect_b32 s18, s46, 0")
            a("s_cselect_b32 s22, s47, 0")
        c.advT = advT
        if chain_in:
            def peers_in(vl, vd):
                a(f"v_and_b32 v19, 3, v{vl}")
                a(f"v_lshrrev_b32 v{vd}, 2, v{vl}")
                a(f"v_lshl_add_u32 v{vd}, v19, 3, v{vd}")
                if fuse_ln:
                    a("s_sub_u32 s48, 15, s34")
                    a("s_min_u32 s48, s48, s34")
                else:
                    a("s_lshr_b32 s48, s34, 1")
                a("s_lshl_b32 s48, s48, 5")
                a("s_lshl_b32 s49, s33, 1")
                a("s_add_u32 s48, s48, s49")
                a(f"v_add_u32 v{vd}, s48, v{vd}")
            c.pre_T = lambda: wflag_wait(a, 32, 4 if fuse_ln else 3, 28, name + "_in", 8, peers_in)
        gemm_prologue_and_loop(a, c, name)
        a("s_waitcnt vmcnt(0)")
        a("s_barrier")
        a("s_mul_i32 s48, s32, 9216")
        a("s_xor_b32 s49, s32, 4")
        a("s_mul_i32 s49, s49, 9216")
        a("v_lshlrev_b32 v3, 4, v2")
        a("v_add_u32 v4, s49, v3")
        a("v_add_u32 v3, s48, v3")
        a("s_cmp_eq_u32 s37, 1")
        a(f"s_cbranch_scc1 L_{name}_e1")
        for nt in range(9):
            a(f"ds_write_b128 v3, {vr(c.acc(nt, 1), 4)} offset:{nt * 1024}")
        a(f"s_branch L_{name}_e2")
        a.label(f"L_{name}_e1")
        for nt in range(9):
            a(f"ds_write_b128 v3, {vr(c.acc(nt, 0), 4)} offset:{nt * 1024}")
        for nt in range(9):
            for r_ in range(4):
                a(f"v_mov_b32 {vr(c.acc(nt, 0) + r_)}, {vr(c.acc(nt, 1) + r_)}")
        a.label(f"L_{name}_e2")
        a("s_waitcnt lgkmcnt(0)")
        a("s_barrier")
        for nt in range(9):
            a(f"ds_read_b128 {vr(c.acc(nt, 1), 4)}, v4 offset:{nt * 1024}")
        a(f"s_mul_i32 s48, s33, {2048 * 1280}")
        a("s_lshl_b32 s49, s34, 7")
        a("s_lshl_b32 s50, s36, 5")
        a("s_add_u32 s49, s49, s50")
        a("s_lshl_b32 s50, s37, 4")
        a("s_add_u32 s49, s49, s50")
        a("s_mul_i32 s49, s49, 1280")
        a("s_add_u32 s48, s48, s49")
        a("s_mul_i32 s49, s35, 320")
        a("s_add_u32 s48, s48, s49")
        a(f"s_add_u32 s48, s48, {PART}")
        a("v_mul_u32_u24 v5, 1280, v62")
        a("v_lshl_add_u32 v6, v61, 3, v5")
        a("v_lshl_add_u32 v5, v61, 4, v5")
        for nt in range(9):
            a(f"s_waitcnt lgkmcnt({8 - nt})")
            for r_ in range(4):
                a(f"v_add_f32 {vr(c.acc(nt, 0) + r_)}, {vr(c.acc(nt, 0) + r_)}, {vr(c.acc(nt, 1) + r_)}")
            t = 8 + 4 * (nt // 2) + 2 * (nt % 2)
            a(f"v_cvt_pk_bf16_f32 v{t}, v{c.acc(nt, 0)}, v{c.acc(nt, 0) + 1}")
            a(f"v_cvt_pk_bf16_f32 v{t + 1}, v{c.acc(nt, 0) + 2}, v{c.acc(nt, 0) + 3}")
            if nt % 2 == 1:
                a(f"buffer_store_dwordx4 v[{t - 2}:{t + 1}], v5, s[28:31], s48 offen offset:{(nt // 2) * 64} sc1")
            if nt == 8:
                a(f"buffer_store_dwordx2 v[{t}:{t + 1}], v6, s[28:31], s48 offen offset:256 sc1")
        if fuse_ln is not None:
            a("s_waitcnt vmcnt(0)")
            stamp(a, 3)
            a("s_barrier")
            ph = 0 if fuse_ln else 1
            wflag_set(a, 32, ph, 28, name)

            def peers(vl, vd):
                a(f"v_lshrrev_b32 v19, 2, v{vl}")
                a(f"v_and_b32 v{vd}, 3, v{vl}")
                a(f"v_lshlrev_b32 v{vd}, 1, v{vd}")
                a(f"v_lshl_add_u32 v{vd}, v19, 3, v{vd}")
                a("s_and_b32 s48, s34, 7")
                a("s_lshl_b32 s48, s48, 5")
                a("s_lshr_b32 s49, s34, 3")
                a("s_add_u32 s48, s48, s49")
                a(f"v_add_u32 v{vd}, s48, v{vd}")
            wflag_wait(a, 32, ph, 28, name, 16, peers)
            stamp(a, 4)
            a("s_lshl_b32 s49, s35, 2")
            a("s_add_u32 s49, s49, s33")
            a("s_lshl_b32 s49, s49, 3")
            a("s_add_u32 s49, s49, s32")
            a("s_lshl_b32 s48, s34, 7")
            a("s_add_u32 s49, s49, s48")
            reduce_body(a, fuse_ln, " sc1", PART, " sc1" if chain_out else "")
            if chain_out:
                a("s_waitcnt vmcnt(0)")
                if STAMPS:
                    stamp(a, 5)
                    stamp_flush(a, 8, 1, 2, 32, s_t=70, kid=kid)
                a("s_barrier")
                wflag_set(a, 32, 2, 28, name + "_out")
                return
            if STAMPS:
                a("s_waitcnt vmcnt(0)")
                stamp(a, 5)
                stamp_flush(a, 8, 1, 2, 32, s_t=70, kid=kid)
        elif STAMPS:
            a("s_waitcnt vmcnt(0)")
            stamp(a, 3)
            stamp(a, 4); stamp(a, 5)
            stamp_flush(a, 8, 1, 2, 32, s_t=70, kid=kid)
        a.label(f"L_{name}_end")
        a("s_endpgm")
        return name, "grid=(256,1,1) block=(512,1,1) lds=139264", 208
    return g


gen_k3 = gen_splitk("k3_oproj_kernel", KA_WO, CTX_OFF, 16, 2)
gen_k6 = gen_splitk("k6_down_kernel", KA_WD, ACT_OFF, 18, 5)
gen_k34 = gen_splitk("k34_kernel", KA_WO, CTX_OFF, 16, 2, fuse_ln=True)
gen_k67 = gen_splitk("k67_kernel", KA_WD, ACT_OFF, 18, 5, fuse_ln=False)


def reduce_body(a, do_ln, LF='', PART=PART_OFF, SF=''):
    if True:
        a("v_lshrrev_b32 v3, 1, v2")
        a("v_lshlrev_b32 v3, 4, v3")
        a("v_and_b32 v4, 1, v2")
        a("v_lshl_add_u32 v3, v4, 2, v3")
        div18(a, 6, 7, 2, 8)
        a("v_mul_u32_u24 v6, 320, v6")
        a("v_lshl_add_u32 v4, v7, 4, v6")
        a("v_add_u32 v8, 64, v2")
        a(f"v_lshlrev_b32 v9, 4, v2")
        a(f"v_add_u32 v9, {3 * 320 + 160}, v9")
        a("v_lshlrev_b32 v5, 1, v3")
        a("s_mul_i32 s50, s49, 1280")
        a(f"s_add_u32 s50, s50, {PART}")
        a("s_mul_i32 s51, s49, 1152")
        a("s_waitcnt lgkmcnt(0)")
        if not LF:
            stamp(a, 0)
        make_srd(a, 24, "s4", "s5", 2048 * 1152)
        make_srd(a, 28, "s12", "s13", WS_BYTES)
        for i in range(80, 120):
            a(f"v_mov_b32 v{i}, 0")
        for ks in range(4):
            b = 88 + 8 * ks
            a(f"buffer_load_dwordx4 v[{b}:{b + 3}], v4, s[28:31], s50 offen{LF}")
            a("s_mov_b64 exec, 0xff")
            a(f"buffer_load_dwordx4 v[{b + 4}:{b + 7}], v9, s[28:31], s50 offen{LF}")
            a("s_mov_b64 exec, -1")
            if ks < 3:
                a(f"s_add_u32 s50, s50, {2048 * 1280}")
        if do_ln:
            rs, so = "s[24:27]", "s51"
        else:
            a(f"s_add_u32 s52, s51, {H_OFF}")
            rs, so = "s[28:31]", "s52"
        a(f"buffer_load_dwordx2 v[80:81], v5, {rs}, {so} offen")
        a(f"buffer_load_dwordx2 v[82:83], v5, {rs}, {so} offen offset:16")
        a("s_mov_b64 exec, 0xff")
        a(f"buffer_load_dwordx2 v[84:85], v5, {rs}, {so} offen offset:1024")
        a(f"buffer_load_dwordx2 v[86:87], v5, {rs}, {so} offen offset:1040")
        a("s_mov_b64 exec, -1")
        a("s_waitcnt vmcnt(0)")
        for ks in range(4):
            for i in range(8):
                a(f"v_lshlrev_b32 v{16 + 16 * ks + 2 * i}, 16, v{88 + 8 * ks + i}")
                a(f"v_and_b32 v{17 + 16 * ks + 2 * i}, 0xffff0000, v{88 + 8 * ks + i}")
        for i in range(16):
            a(f"v_add_f32 v{16 + i}, v{16 + i}, v{32 + i}")
            a(f"v_add_f32 v{48 + i}, v{48 + i}, v{64 + i}")
        for i in range(16):
            a(f"v_add_f32 v{16 + i}, v{16 + i}, v{48 + i}")
        for i in range(8):
            a(f"v_cvt_pk_bf16_f32 v6, v{16 + 2 * i}, v{17 + 2 * i}")
            a(f"v_lshlrev_b32 v{16 + 2 * i}, 16, v6")
            a(f"v_and_b32 v{17 + 2 * i}, 0xffff0000, v6")
            a(f"v_lshlrev_b32 v6, 16, v{80 + i}")
            a(f"v_and_b32 v7, 0xffff0000, v{80 + i}")
            a(f"v_add_f32 v{16 + 2 * i}, v{16 + 2 * i}, v6")
            a(f"v_add_f32 v{17 + 2 * i}, v{17 + 2 * i}, v7")
            a(f"v_cvt_pk_bf16_f32 v{80 + i}, v{16 + 2 * i}, v{17 + 2 * i}")
        if do_ln:
            a(f"s_add_u32 s52, s51, {H_OFF}")
            rs, so = "s[28:31]", "s52"
        else:
            rs, so = "s[24:27]", "s51"
        a(f"buffer_store_dwordx2 v[80:81], v5, {rs}, {so} offen")
        a(f"buffer_store_dwordx2 v[82:83], v5, {rs}, {so} offen offset:16")
        a("s_mov_b64 exec, 0xff")
        a(f"buffer_store_dwordx2 v[84:85], v5, {rs}, {so} offen offset:1024")
        a(f"buffer_store_dwordx2 v[86:87], v5, {rs}, {so} offen offset:1040")
        a("s_mov_b64 exec, -1")
        if do_ln:
            for i in range(8):
                a(f"v_lshlrev_b32 v{20 + 2 * i}, 16, v{80 + i}")
                a(f"v_and_b32 v{21 + 2 * i}, 0xffff0000, v{80 + i}")
            a("v_add_f32 v36, v20, v21")
            for i in range(22, 36):
                a(f"v_add_f32 v36, v36, v{i}")
            wave_sum(a, 36, 37, 38)
            a(f"v_mul_f32 v36, {1.0 / 576.0!r}, v36")
            a("v_mov_b32 v39, 0")
            for i in range(20, 28):
                a(f"v_sub_f32 v37, v{i}, v36")
                a("v_fmac_f32 v39, v37, v37")
            a("s_mov_b64 exec, 0xff")
            for i in range(28, 36):
                a(f"v_sub_f32 v37, v{i}, v36")
                a("v_fmac_f32 v39, v37, v37")
            a("s_mov_b64 exec, -1")
            wave_sum(a, 39, 37, 38)
            a(f"v_mul_f32 v39, {1.0 / 576.0!r}, v39")
            round_bf16(a, 39, 37)
            a("v_add_f32 v39, 0x3727c5ac, v39")
            round_bf16(a, 39, 37)
            a("v_sqrt_f32 v39, v39")
            a("s_nop 0")
            round_bf16(a, 39, 37)
            a("v_rcp_f32 v39, v39")
            round_bf16(a, 36, 37)
            for i in range(8):
                a(f"v_sub_f32 v{20 + 2 * i}, v{20 + 2 * i}, v36")
                a(f"v_sub_f32 v{21 + 2 * i}, v{21 + 2 * i}, v36")
                a(f"v_cvt_pk_bf16_f32 v37, v{20 + 2 * i}, v{21 + 2 * i}")
                a(f"v_lshlrev_b32 v{20 + 2 * i}, 16, v37")
                a(f"v_and_b32 v{21 + 2 * i}, 0xffff0000, v37")
                a(f"v_mul_f32 v{20 + 2 * i}, v{20 + 2 * i}, v39")
                a(f"v_mul_f32 v{21 + 2 * i}, v{21 + 2 * i}, v39")
                a(f"v_cvt_pk_bf16_f32 v{8 + i}, v{20 + 2 * i}, v{21 + 2 * i}")
            a("v_lshrrev_b32 v37, 2, v2")
            a("v_lshlrev_b32 v37, 17, v37")
            a("v_and_b32 v38, 3, v2")
            a("v_lshl_add_u32 v37, v38, 4, v37")
            a("s_lshl_b32 s50, s49, 6")
            a(f"s_add_u32 s50, s50, {HN_OFF}")
            a(f"buffer_store_dwordx4 v[8:11], v37, s[28:31], s50 offen{SF}")
            a(f"s_add_u32 s50, s50, {16 * 131072}")
            a("s_mov_b64 exec, 0xff")
            a(f"buffer_store_dwordx4 v[12:15], v37, s[28:31], s50 offen{SF}")
            a("s_mov_b64 exec, -1")


def gen_reduce(name, do_ln):
    def g(a):
        kernel_header(a, name)
        a("s_cmp_ge_u32 s2, 256")
        a(f"s_cbranch_scc1 L_{name}_end")
        a(f"s_load_dwordx2 s[4:5], s[0:1], {KA_X if do_ln else KA_OUT}")
        a(f"s_load_dwordx2 s[12:13], s[0:1], {KA_WS}")
        a("v_lshrrev_b32 v1, 6, v0")
        a("v_and_b32 v2, 63, v0")
        a("s_nop 0")
        a("v_readfirstlane_b32 s32, v1")
        a("s_lshl_b32 s49, s2, 3")
        a("s_add_u32 s49, s49, s32")
        reduce_body(a, do_ln)
        if STAMPS:
            a("s_waitcnt vmcnt(0)")
            stamp(a, 1)
            stamp_flush(a, 2, 1, 2, 32, s_t=70, kid=(3 if do_ln else 6))
        a.label(f"L_{name}_end")
        a("s_endpgm")
        return name, "grid=(256,1,1) block=(512,1,1) lds=0", 120
    return g


gen_k4 = gen_reduce("k4_ln2_kernel", True)
gen_k7 = gen_reduce("k7_out_kernel", False)


def gen_k5(a, chain=False):
    name = "k5_ffn1_kernel"
    STF = " sc1" if chain else globals()["STF"]
    if not chain:
        kernel_header(a, name)
        a("s_cmp_ge_u32 s2, 256")
        a(f"s_cbranch_scc1 L_{name}_end")
    a(f"s_load_dwordx4 s[8:11], s[0:1], {KA_WG}")
    a(f"s_load_dwordx2 s[12:13], s[0:1], {KA_WS}")
    a("v_lshrrev_b32 v1, 6, v0")
    a("v_and_b32 v2, 63, v0")
    a("s_nop 0")
    a("v_readfirstlane_b32 s32, v1")
    a("s_and_b32 s35, s2, 7")
    a("s_lshl_b32 s35, s35, 2")
    a("s_lshr_b32 s48, s2, 3")
    a("s_and_b32 s48, s48, 3")
    a("s_add_u32 s35, s35, s48")
    a("s_lshr_b32 s34, s2, 5")
    a("s_and_b32 s36, s32, 3")
    a("s_lshr_b32 s37, s32, 2")
    a("s_waitcnt lgkmcnt(0)")
    stamp(a, 0)
    a("s_cmp_eq_u32 s37, 1")
    a("s_cselect_b32 s8, s10, s8")
    a("s_cselect_b32 s9, s11, s9")
    make_srd(a, 20, "s8", "s9", 576 * 9216)
    a(f"s_mov_b32 s47, {576 * 9216}")
    make_srd(a, 16, "s12", "s13", WS_BYTES)
    a(f"s_mov_b32 s46, {WS_BYTES}")
    make_srd(a, 28, "s12", "s13", WS_BYTES)
    TS, WS_ = 16384, 18432
    WBASE = 4 * TS
    vA0, vW0, vW1, vW2, vT, vWa, vWb = 64, 66, 67, 68, 69, 70, 71
    a("v_lshrrev_b32 v20, 2, v2")
    a("s_lshl_b32 s48, s32, 5")
    a("v_add_u32 v20, s48, v20")
    a("v_lshlrev_b32 v20, 6, v20")
    a("v_lshrrev_b32 v21, 4, v2")
    a("v_sub_u32 v21, 0, v21")
    a("v_and_b32 v21, 3, v21")
    a("v_and_b32 v22, 3, v2")
    a("v_xor_b32 v21, v21, v22")
    a(f"v_lshl_add_u32 {vr(vA0)}, v21, 4, v20")
    a("s_lshl_b32 s38, s34, 14")
    a(f"s_add_u32 s38, s38, {HN_OFF}")
    for j, vd in ((0, vW0), (1, vW1), (2, vW2)):
        a(f"v_add_u32 v20, {64 * j}, v2")
        div18(a, 21, 22, 20, 23)
        a("v_and_b32 v23, 1, v22")
        a("v_bfe_u32 v24, v22, 1, 1")
        a("v_lshl_or_b32 v23, v23, 1, v24")
        a("v_and_b32 v24, 28, v22")
        a("v_or_b32 v23, v23, v24")
        a("v_cmp_gt_u32 vcc, 16, v22")
        a("s_nop 1")
        a("v_cndmask_b32 v22, v22, v23, vcc")
        a("s_lshl_b32 s48, s36, 3")
        a("v_add_u32 v21, s48, v21")
        a("v_mul_u32_u24 v21, 9216, v21")
        a(f"v_lshl_add_u32 {vr(vd)}, v22, 4, v21")
    a("s_mul_i32 s39, s35, 288")
    a("s_lshl_b32 s40, s32, 11")
    a("s_mul_i32 s41, s32, 2304")
    a(f"s_add_u32 s41, s41, {WBASE}")
    a("v_and_b32 v62, 15, v2")
    a("v_lshrrev_b32 v61, 4, v2")
    a("v_lshrrev_b32 v20, 2, v62")
    a("v_sub_u32 v20, 0, v20")
    a("v_and_b32 v20, 3, v20")
    a("v_xor_b32 v20, v20, v61")
    a("s_lshl_b32 s48, s32, 5")
    a("v_add_u32 v21, s48, v62")
    a("v_lshlrev_b32 v21, 6, v21")
    a(f"v_lshl_add_u32 {vr(vT)}, v20, 4, v21")
    a("v_lshrrev_b32 v20, 5, v2")
    a("v_lshlrev_b32 v20, 4, v20")
    a("v_bfe_u32 v21, v2, 2, 3")
    a("v_add_u32 v20, v20, v21")
    a("v_mul_u32_u24 v20, 288, v20")
    a(f"v_add_u32 v20, {WBASE}, v20")
    a("v_and_b32 v21, 3, v2")
    a(f"v_lshl_add_u32 {vr(vWa)}, v21, 3, v20")
    a("v_and_b32 v22, 1, v2")
    a("v_lshl_add_u32 v20, v22, 4, v20")
    a("v_bfe_u32 v22, v2, 1, 1")
    a(f"v_lshl_add_u32 {vr(vWb)}, v22, 3, v20")
    a("s_mov_b32 s44, 0")
    c = GemmCfg()
    c.TN, c.TM, c.R, c.AHEAD, c.NSTEPS = 18, 2, 6, 5, 18
    c.NSW, c.WSLOT, c.NST, c.TSLOT, c.TPER = 4, WS_, 4, TS, 1
    c.TPOS = 0
    c.DMA_EVERY = 2
    c.swap = False
    c.acc = lambda nt, tt: 112 + (nt * 2 + tt) * 4
    c.tfrag = lambda buf, tt: 96 + buf * 8 + tt * 4
    c.wfrag = lambda r_: 72 + r_ * 4

    def wread(nt):
        pl, u = nt // 9, nt % 9
        r_ = vWb if u == 8 else vWa
        return [(r_, pl * 9216 + u * 32), (r_, pl * 9216 + u * 32 + 8 * 288)]
    c.wread = wread
    c.wadv = lambda nt: [vWa] if nt == 16 else ([vWb] if nt == 17 else [])
    c.tread = lambda q, tt: (vT, tt * 1024)
    c.tadv = lambda q: [vT]
    c.s_dA, c.s_dB, c.s_sl, c.s_dmaW, c.s_cnt, c.s_slotW = 50, 51, 52, 53, 45, 54
    c.s_dT, c.s_slT, c.s_dmaT, c.s_slotT = 55, 56, 57, 58

    def dmaW():
        def d0():
            a("s_add_u32 m0, s53, s41")
            a("s_nop 0")
            a(f"buffer_load_dwordx4 {vr(vW0)}, s[20:23], s39 offen lds")

        def d1():
            a("s_add_u32 m0, m0, 1024")
            a("s_nop 0")
            a(f"buffer_load_dwordx4 {vr(vW1)}, s[20:23], s39 offen lds")

        def d2():
            a("s_add_u32 m0, m0, 1024")
            a("s_mov_b64 exec, 0xffff")
            a(f"buffer_load_dwordx4 {vr(vW2)}, s[20:23], s39 offen lds")
            a("s_mov_b64 exec, -1")
        return [d0, d1, d2]
    c.dmaW = dmaW

    def dmaT(h):
        def d0():
            a("s_add_u32 m0, s57, s40")
            a("s_nop 0")
            a(f"buffer_load_dwordx4 {vr(vA0)}, s[16:19], s38 offen lds")

        def d1():
            a(f"buffer_load_dwordx4 {vr(vA0)}, s[16:19], s38 offen offset:1024 lds")
        return [d0, d1]
    c.dmaT = dmaT

    def advW():
        a(f"s_add_u32 s39, s39, {32 * 9216}")
    c.advW = advW

    def advT():
        a("s_add_u32 s38, s38, 131072")
        a("s_add_u32 s44, s44, 1")
        a(f"s_cmp_lt_u32 s44, {c.NSTEPS}")
        a("s_cselect_b32 s18, s46, 0")
        a("s_cselect_b32 s22, s47, 0")
    c.advT = advT
    if chain:
        def peers_in(vl, vd):
            a(f"v_and_b32 v19, 3, v{vl}")
            a(f"v_lshrrev_b32 v{vd}, 2, v{vl}")
            a(f"v_lshlrev_b32 v{vd}, 3, v{vd}")
            a(f"v_lshl_add_u32 v{vd}, v19, 1, v{vd}")
            a("s_and_b32 s48, s34, 3")
            a("s_lshl_b32 s48, s48, 6")
            a("s_lshr_b32 s49, s34, 2")
            a("s_add_u32 s48, s48, s49")
            a(f"v_add_u32 v{vd}, s48, v{vd}")
        c.pre_T = lambda: wflag_wait(a, 32, 2, 28, name + "_in", 32, peers_in)
    gemm_prologue_and_loop(a, c, name)
    a(f"s_mov_b32 s48, {-math.log2(math.e)!r}")

    def act4(g0, u0):
        for r_ in range(4):
            a(f"v_mul_f32 v{20 + r_}, s48, v{g0 + r_}")
        for r_ in range(4):
            a(f"v_exp_f32 v{20 + r_}, v{20 + r_}")
        for r_ in range(4):
            a(f"v_add_f32 v{20 + r_}, 1.0, v{20 + r_}")
        for r_ in range(4):
            a(f"v_rcp_f32 v{20 + r_}, v{20 + r_}")
        for r_ in range(4):
            a(f"v_mul_f32 v{g0 + r_}, v{g0 + r_}, v{u0 + r_}")
        for r_ in range(4):
            a(f"v_mul_f32 v{g0 + r_}, v{g0 + r_}, v{20 + r_}")
    a("s_lshl_b32 s49, s34, 8")
    a("s_lshl_b32 s50, s32, 5")
    a("s_add_u32 s49, s49, s50")
    a("s_lshl_b32 s49, s49, 5")
    a("s_mul_i32 s50, s35, 9")
    a("s_lshl_b32 s50, s50, 16")
    a("s_add_u32 s49, s49, s50")
    a(f"s_add_u32 s49, s49, {ACT_OFF}")
    a("v_lshlrev_b32 v3, 5, v62")
    a("v_lshrrev_b32 v4, 1, v61")
    a("v_and_b32 v5, 1, v61")
    a("v_lshl_add_u32 v6, v5, 4, v3")
    a("v_lshl_add_u32 v6, v4, 16, v6")
    a("v_lshl_add_u32 v7, v61, 3, v3")
    k = 0
    for P_ in range(4):
        for tt in range(2):
            t = 32 + (k % 4) * 4
            k += 1
            for T_ in range(2):
                g0, u0 = c.acc(2 * P_ + T_, tt), c.acc(9 + 2 * P_ + T_, tt)
                act4(g0, u0)
                a(f"v_cvt_pk_bf16_f32 v{t + 2 * T_}, v{g0}, v{g0 + 1}")
                a(f"v_cvt_pk_bf16_f32 v{t + 2 * T_ + 1}, v{g0 + 2}, v{g0 + 3}")
            a(f"buffer_store_dwordx4 v[{t}:{t + 3}], v6, s[28:31], s49 offen offset:{tt * 512}{STF}")
        a("s_add_u32 s49, s49, 131072")
    for tt in range(2):
        t = 32 + (k % 4) * 4
        k += 1
        g0, u0 = c.acc(8, tt), c.acc(17, tt)
        act4(g0, u0)
        a(f"v_cvt_pk_bf16_f32 v{t}, v{g0}, v{g0 + 1}")
        a(f"v_cvt_pk_bf16_f32 v{t + 1}, v{g0 + 2}, v{g0 + 3}")
        a(f"buffer_store_dwordx2 v[{t}:{t + 1}], v7, s[28:31], s49 offen offset:{tt * 512}{STF}")
    if STAMPS:
        a("s_waitcnt vmcnt(0)")
        stamp(a, 3)
        stamp(a, 4); stamp(a, 5)
        stamp_flush(a, 8, 1, 2, 32, s_t=70, kid=4)
    if chain:
        a("s_waitcnt vmcnt(0)")
        a("s_barrier")
        wflag_set(a, 32, 3, 28, name + "_out")
        return
    a.label(f"L_{name}_end")
    a("s_endpgm")
    return name, "grid=(256,1,1) block=(512,1,1) lds=139264", 256


def gen_k37(a):
    gen_splitk("k37_kernel", KA_WO, CTX_OFF, 16, 2, fuse_ln=True, chain_out=True, endlabel="L_k67c_end")(a)
    gen_k5(a, chain=True)
    gen_splitk("k67c", KA_WD, ACT_OFF, 18, 5, fuse_ln=False, chain_in=True)(a)
    return "k37_kernel", "grid=(256,1,1) block=(512,1,1) lds=139264", 256


def gen_k27(a):
    from gen_attn import gen_k2
    ool = gen_k2(a, chain=True)
    gen_splitk("k34c", KA_WO, CTX_OFF, 16, 2, fuse_ln=True, chain_in=True, chain_out=True)(a)
    gen_k5(a, chain=True)
    gen_splitk("k67c", KA_WD, ACT_OFF, 18, 5, fuse_ln=False, chain_in=True)(a)
    a.L += ool.L
    return "k27_kernel", "grid=(256,1,1) block=(512,1,1) lds=163840", 256


def gen_mega(a):
    from gen_attn import gen_k2
    stores = gen_k1(a, fused="mega_kernel")
    ool = gen_k2(a, k1_stores=stores, chain=True)
    gen_splitk("k34c", KA_WO, CTX_OFF, 16, 2, fuse_ln=True, chain_in=True, chain_out=True)(a)
    gen_k5(a, chain=True)
    gen_splitk("k67c", KA_WD, ACT_OFF, 18, 5, fuse_ln=False, chain_in=True)(a)
    a.L += ool.L
    return "mega_kernel", "grid=(256,1,1) block=(512,1,1) lds=163840", 256
```

```python
from gen_common import *
import math

QS_OFF = 100 * MB
SCALE_C = (128 ** -0.5) * math.log2(math.e)
NEGBIG = 0xf149f2ca
THR = 65536.0
FLOOR0 = 0xe0ad78ec


class Vm:
    def __init__(self):
        self.q = []

    def issue(self, tag):
        self.q.append(tag)

    def need(self, a, tags):
        idx = -1
        for i, t in enumerate(self.q):
            if t in tags:
                idx = i
        if idx < 0:
            return
        n = len(self.q) - 1 - idx
        assert n <= 63
        a(f"s_waitcnt vmcnt({n})")
        self.q = self.q[idx + 1:]


def gen_k12(a):
    from gen_gemm import gen_k1
    stores = gen_k1(a, fused=True)
    return gen_k2(a, k1_stores=stores)


def gen_k2(a, k1_stores=None, chain=False):
    fused = k1_stores is not None
    name = "k12_kernel" if fused else ("k27_kernel" if chain else "k2_attn_kernel")
    STF = " sc1" if (fused or chain) else globals()["STF"]
    if not fused:
        kernel_header(a, name)
    O = 192
    S = 160
    Q = 128
    NEGM = 112
    P = 96
    FR = 64
    PT = 48
    vK = 32
    vV = 40
    vL = 44
    vFloor = 45
    vLim = 46
    vLane16 = 27
    if not fused:
        a("s_cmp_ge_u32 s2, 256")
        a("s_cbranch_scc1 L_k67c_end" if chain else "s_cbranch_scc1 L_k2_end")
    else:
        a("s_waitcnt vmcnt(0)")
        a("s_barrier")
    a(f"s_load_dwordx2 s[4:5], s[0:1], {KA_WQ}")
    a(f"s_load_dwordx2 s[6:7], s[0:1], {KA_WS}")
    a(f"s_load_dwordx2 s[8:9], s[0:1], {KA_WO}")
    a(f"s_load_dwordx4 s[12:15], s[0:1], {KA_WG}")
    a(f"s_load_dwordx2 s[10:11], s[0:1], {KA_WD}")
    a("v_lshrrev_b32 v1, 6, v0")
    a("v_and_b32 v2, 63, v0")
    a("s_nop 0")
    a("v_readfirstlane_b32 s32, v1")
    a("s_and_b32 s33, s2, 7")
    a("s_lshl_b32 s33, s33, 2")
    a("s_lshr_b32 s48, s2, 3")
    a("s_and_b32 s48, s48, 3")
    a("s_add_u32 s33, s33, s48")
    a("s_lshr_b32 s34, s2, 5")
    a("s_and_b32 s35, s32, 3")
    a("s_lshr_b32 s36, s32, 2")
    a(f"v_lshlrev_b32 {vr(vLane16)}, 4, v2")
    a("s_waitcnt lgkmcnt(0)")
    stamp(a, 3 if fused else 0)
    a("s_lshl_b32 s48, s33, 8")
    a("s_add_u32 s4, s4, s48")
    a("s_addc_u32 s5, s5, 0")
    a(f"s_sub_u32 s49, {576 * 8192}, s48")
    make_srd(a, 16, "s4", "s5", "s49")
    make_srd(a, 20, "s6", "s7", WS_BYTES)
    make_srd(a, 24, "s6", "s7", WS_BYTES)
    make_srd(a, 28, "s6", "s7", WS_BYTES)
    a("s_sub_u32 s48, 15, s34")
    a("s_cmp_eq_u32 s36, 1")
    a("s_cselect_b32 s48, s48, s34")
    a("s_lshl_b32 s48, s48, 2")
    a("s_add_u32 s48, s48, s35")
    a("s_mul_i32 s50, s48, 36864")
    a(f"s_add_u32 s50, s50, {XN_OFF}")
    vWq0, vWq1 = 24, 25
    a("v_lshrrev_b32 v3, 4, v2")
    a("v_bfe_u32 v4, v2, 2, 2")
    a("v_xor_b32 v4, v4, v3")
    a("v_lshlrev_b32 v4, 6, v4")
    a("v_and_b32 v5, 3, v2")
    a("v_lshl_add_u32 v4, v5, 4, v4")
    a("s_lshl_b32 s48, s32, 3")
    a("v_add_u32 v3, s48, v3")
    a(f"v_lshl_add_u32 {vr(vWq0)}, v3, 13, v4")
    a(f"v_add_u32 {vr(vWq1)}, {4 * 8192}, {vr(vWq0)}")
    a("s_lshl_b32 s51, s32, 11")
    a("s_add_u32 s51, s51, 65536")
    vm = Vm()
    XR = 20 if fused else 36
    XF = 48
    WR = 32
    vWa = 28

    def dma_wq(st):
        a(f"s_add_u32 m0, s51, {(st % 6) * 16384}")
        a(f"s_mov_b32 s52, {st * 64 * 8192}")
        a(f"buffer_load_dwordx4 {vr(vWq0)}, s[16:19], s52 offen lds")
        vm.issue(("W", st))
        a("s_add_u32 m0, m0, 1024")
        a("s_nop 0")
        a(f"buffer_load_dwordx4 {vr(vWq1)}, s[16:19], s52 offen lds")
        vm.issue(("W", st))

    def ld_x(s):
        if s % 4 == 0 and s > 0:
            a("s_add_u32 s50, s50, 4096")
        a(f"buffer_load_dwordx4 {vr(XF + 4 * (s % XR), 4)}, {vr(vLane16)}, s[20:23], s50 offen offset:{(s % 4) * 1024}")
        vm.issue(("X", s))

    LEAD = 4
    XR = 20 if fused else 36
    QO = (lambda dt: 144 + 32 * dt) if fused else (lambda dt: O + 16 * dt)
    if not fused:
        for st in range(LEAD):
            dma_wq(st)
            for s_ in range(4 * st, 4 * st + 4):
                ld_x(s_)
    else:
        for st in range(LEAD):
            dma_wq(st)

        def xn_peers(vl, vd):
            a("s_lshl_b32 s48, s34, 4")
            a("s_sub_u32 s49, 224, s48")
            a(f"v_cmp_gt_u32 vcc, 16, v{vl}")
            a("v_mov_b32 v19, s49")
            a(f"v_mov_b32 v{vd}, s48")
            a(f"v_cndmask_b32 v{vd}, v19, v{vd}, vcc")
            a(f"v_add_u32 v{vd}, v{vd}, v{vl}")
        k1_stores[0]()
        zcount_wait(a, 32, "z")
        wflag_wait(a, 32, 5, 28, "xn", 32, xn_peers)
        for s_ in range(4 * LEAD):
            ld_x(s_)
    a("s_lshl_b32 s48, s33, 19")
    a("s_bfe_u32 s59, s32, 0x10001")
    a("s_and_b32 s49, s32, 1")
    a("s_lshl_b32 s49, s49, 12")
    a("s_add_u32 s40, s48, s49")
    a(f"s_add_u32 s58, s40, {KP_OFF}")
    a("s_xor_b32 s49, s59, 1")
    a("s_lshl_b32 s49, s49, 13")
    a("s_add_u32 s40, s58, s49")
    a("s_lshl_b32 s49, s35, 12")
    a("s_add_u32 s41, s48, s49")
    a(f"s_add_u32 s41, s41, {VP_OFF}")
    a("s_lshl_b32 s42, s32, 12")
    a("s_add_u32 s45, s42, 32768")
    a("s_lshl_b32 s37, s34, 1")
    a("s_add_u32 s37, s37, 2")

    def dma_k(sK, track=None):
        a("s_mov_b32 m0, s42")
        a("s_xor_b32 s42, s42, 65536")
        for j in range(4):
            a(f"buffer_load_dwordx4 {vr(vLane16)}, s[24:27], {sK} offen offset:{j * 1024} lds")
            if track: track.issue(("KV", 0))

    def dma_v(sV, track=None):
        a("s_mov_b32 m0, s45")
        a("s_xor_b32 s45, s45, 65536")
        for j in range(4):
            a(f"buffer_load_dwordx4 {vr(vLane16)}, s[24:27], {sV} offen offset:{j * 1024} lds")
            if track: track.issue(("KV", 0))

    a("v_lshrrev_b32 v3, 5, v2")
    a("v_bfe_u32 v4, v2, 2, 2")
    a("v_lshl_add_u32 v3, v3, 3, v4")
    a("v_lshlrev_b32 v3, 8, v3")
    a("v_bfe_u32 v5, v2, 4, 1")
    a("v_lshl_add_u32 v3, v5, 5, v3")
    a("v_and_b32 v5, 3, v2")
    a("v_lshl_add_u32 v3, v5, 3, v3")
    a("v_add_u32 v3, 65536, v3")
    for dt in range(4):
        a(f"v_xor_b32 v5, {dt}, v4")
        a(f"v_lshl_add_u32 {vr(vWa + dt)}, v5, 6, v3")
    for dt in range(4):
        for i in range(16):
            a(f"v_mov_b32 {vr(QO(dt) + i)}, 0")
    lg = Lgkm()
    seq = [(st, s, dt) for st in range(9) for s in range(4) for dt in range(4)]
    AH = 3
    STQ = int(os.environ.get('STQ', '8'))
    STAG = int(os.environ.get('STAG', '0'))
    WBL = os.environ.get('KVF', 'sc1') != 'sc1'
    WBST = int(os.environ.get('WBST', '6'))
    LATE0 = 144 - 16 * STQ

    def rd_wq(idx):
        st, s, dt = seq[idx]
        ring = idx % 4
        for i2 in range(2):
            a(f"ds_read_b64_tr_b16 {vr(WR + 4 * ring + 2 * i2, 2)}, {vr(vWa + dt)} offset:{(16 * s + 4 * i2) * 256}")
            lg.issue(("W", ring))
        if s == 3:
            d = 16384 if (st % 6) != 5 else -5 * 16384
            a(f"v_add_u32 {vr(vWa + dt)}, {d & 0xffffffff}, {vr(vWa + dt)}")

    vm.need(a, [("W", 0)])
    a("s_barrier")
    for i in range(AH):
        rd_wq(i)
    for idx, (st, s, dt) in enumerate(seq):
        if s == 0 and dt == 0:
            if st + 1 < 9:
                vm.need(a, [("W", st + 1)])
            if fused and WBL and st == WBST:
                vm.need(a, [("ST", 0)])
            if fused and st == 8 and not STAG and not WBL:
                a("s_waitcnt vmcnt(0)")
                vm.q = []
            if fused and st == 8 and STAG:
                a("s_cmp_ge_u32 s2, 128")
                a("s_cbranch_scc1 L_k12_nw8")
                a("s_waitcnt vmcnt(0)")
                a.label("L_k12_nw8")
            a("s_barrier")
            if fused and WBL and st == WBST:
                a("s_cmp_lg_u32 s32, 0")
                a("s_cbranch_scc1 L_k12_nowb")
                a("buffer_wbl2 sc1")
                a.label("L_k12_nowb")
            if fused and st == 8 and not WBL:
                if STAG:
                    a("s_cmp_ge_u32 s2, 128")
                    a("s_cbranch_scc1 L_ws_kv")
                wflag_set(a, 32, 6, 28, "kv")
            if st + LEAD < 9:
                dma_wq(st + LEAD)
                for s2_ in range(4 * (st + LEAD), 4 * (st + LEAD) + 4):
                    ld_x(s2_)
            if st + LEAD == 9 and not fused:
                dma_k("s58", vm)
                dma_v("s41", vm)
        if dt == 0:
            vm.need(a, [("X", 4 * st + s)])
        if idx + AH < len(seq):
            rd_wq(idx + AH)
        lg.need(a, [("W", idx % 4)])
        a(f"v_mfma_f32_32x32x16_bf16 {vr(QO(dt), 16)}, {vr(WR + 4 * (idx % 4), 4)}, {vr(XF + 4 * ((4 * st + s) % XR), 4)}, {vr(QO(dt), 16)}")
        if fused and not STAG and idx % STQ == STQ - 1 and idx // STQ < 16:
            k1_stores[1](idx // STQ, "")
            vm.issue(("ST", 0))
        if fused and STAG and idx % STQ == STQ - 1:
            if idx // STQ < 16:
                a("s_cmp_ge_u32 s2, 128")
                a(f"s_cbranch_scc1 L_k12_se{idx}")
                k1_stores[1](idx // STQ, "e")
                a.label(f"L_k12_se{idx}")
            elif 0 <= (idx - LATE0) // STQ < 16 and idx >= LATE0:
                a("s_cmp_lt_u32 s2, 128")
                a(f"s_cbranch_scc1 L_k12_sl{idx}")
                k1_stores[1]((idx - LATE0) // STQ, "l")
                a.label(f"L_k12_sl{idx}")
    a("s_nop 7")
    a("s_nop 7")
    stamp(a, 4 if fused else 1)
    if fused:
        def kv_peers(vl, vd):
            a(f"v_lshrrev_b32 v19, 1, v{vl}")
            a(f"v_and_b32 v{vd}, 1, v{vl}")
            a(f"v_lshlrev_b32 v{vd}, 2, v{vd}")
            a(f"v_lshl_add_u32 v{vd}, v19, 5, v{vd}")
            a("s_bfe_u32 s48, s33, 0x20001")
            a("s_lshl_b32 s48, s48, 3")
            a("s_lshr_b32 s49, s33, 3")
            a("s_add_u32 s48, s48, s49")
            a(f"v_add_u32 v{vd}, s48, v{vd}")
        if WBL:
            a("s_waitcnt vmcnt(0)")
            wflag_set(a, 32, 6, 28, "kv")
        wflag_wait(a, 32, 6, 28, "kv", 8 if STAG else 16, kv_peers)
        dma_k("s58")
        dma_v("s41")
    a(f"s_mov_b32 s48, {SCALE_C!r}")
    for dt in range(4):
        for i in range(16):
            a(f"v_mul_f32 {vr(QO(dt) + i)}, s48, {vr(QO(dt) + i)}")
    for dt in range(4):
        for i in range(8):
            a(f"v_cvt_pk_bf16_f32 {vr(Q + 8 * dt + i)}, {vr(QO(dt) + 2 * i)}, {vr(QO(dt) + 2 * i + 1)}")
    a("s_barrier")
    a("s_lshl_b32 s48, s35, 13")
    a("s_add_u32 s48, s48, 131072")
    a(f"v_add_u32 v22, s48, {vr(vLane16)}")
    a("s_cmp_eq_u32 s36, 0")
    a("s_cbranch_scc1 L_k2_qw2")
    for i in range(8):
        a(f"ds_write_b128 v22, {vr(Q + 4 * i, 4)} offset:{i * 1024}")
    a.label("L_k2_qw2")
    a("v_and_b32 v3, 31, v2")
    a("v_lshrrev_b32 v4, 5, v2")
    a("s_lshl_b32 s48, s36, 14")
    a("v_bfe_u32 v5, v2, 2, 2")
    a("v_xor_b32 v5, v5, v4")
    a("v_lshlrev_b32 v6, 6, v3")
    a("v_add_u32 v6, s48, v6")
    a(f"v_lshl_add_u32 {vr(vK)}, v5, 4, v6")
    a(f"v_xor_b32 {vr(vK + 1)}, 32, {vr(vK)}")
    a(f"v_add_u32 {vr(vV)}, 32768, {vr(vK)}")
    a(f"v_add_u32 {vr(vV + 1)}, 32768, {vr(vK + 1)}")
    a("v_lshlrev_b32 v6, 2, v4")
    a(f"v_sub_u32 {vr(vLim)}, v3, v6")
    a("s_sub_u32 s56, 15, s34")
    a("s_lshl_b32 s56, s56, 7")
    a("s_lshl_b32 s48, s35, 5")
    a("s_add_u32 s56, s56, s48")
    a("s_lshl_b32 s39, s34, 7")
    a("s_add_u32 s39, s39, s48")
    a("s_sub_u32 s53, s37, 1")
    a("s_cmp_eq_u32 s36, 1")
    a("s_cselect_b32 s39, s56, s39")
    a("s_cselect_b32 s53, 100, s53")
    make_srd(a, 16, "s8", "s9", 4096 * 576 * 2)
    a("s_lshl_b32 s46, s2, 3")
    a("s_add_u32 s46, s46, s32")
    a(f"s_mul_i32 s46, s46, {11 * 128}")
    a("s_mov_b32 s47, 8")
    a("v_lshlrev_b32 v20, 7, v2")

    def dstamp(k):
        if not STAMPS:
            return
        a("s_waitcnt lgkmcnt(0)")
        a("s_memtime s[70:71]")
        a("s_waitcnt lgkmcnt(0)")
        a(f"s_mov_b32 s{72 + (8 if fused else 3) + k}, s70")
    SA, SB = S, S + 16
    PA, PB = P, P + 8
    PSA, PSB = 8, 9

    def sm_part(Sx, Px, ps, part):
        out = []
        b = 8 * part
        for k in range(4):
            t0, t1 = PT + (2 * k) % 8, PT + (2 * k + 1) % 8
            out.append(f"v_exp_f32 {vr(t0)}, {vr(Sx + b + 2 * k)}")
            out.append(f"v_exp_f32 {vr(t1)}, {vr(Sx + b + 2 * k + 1)}")
        for k in range(4):
            t0, t1 = PT + (2 * k) % 8, PT + (2 * k + 1) % 8
            if part == 0 and k == 0:
                out.append(f"v_add_f32 {vr(ps)}, {vr(t0)}, {vr(t1)}")
            else:
                out.append(f"v_add_f32 {vr(ps)}, {vr(ps)}, {vr(t0)}")
                out.append(f"v_add_f32 {vr(ps)}, {vr(ps)}, {vr(t1)}")
            out.append(f"v_cvt_pk_bf16_f32 {vr(Px + 4 * part + k)}, {vr(t0)}, {vr(t1)}")
        ex = [o for o in out if o.startswith("v_exp")]
        co = [o for o in out if not o.startswith("v_exp")]
        res = ex[:3]
        ex = ex[3:]
        while ex or co:
            if ex:
                res.append(ex.pop(0))
            take = 2 if len(co) > 2 * len(ex) else 1
            for _ in range(take):
                if co:
                    res.append(co.pop(0))
        return res

    ool = Asm()
    TOUCH = int(os.environ.get("TOUCH", "0"))

    def mask(Sx, sT, t, tag):
        a(f"s_lshl_b32 s48, {sT}, 6")
        a("s_sub_i32 s48, s39, s48")
        a(f"s_cmp_lt_i32 s48, {31 + 32 * t}")
        a(f"s_cbranch_scc1 L_k2_{tag}_mask")
        a.label(f"L_k2_{tag}_nomask")
        o = ool
        o.label(f"L_k2_{tag}_mask")
        o(f"s_sub_i32 s48, s48, {32 * t}")
        o(f"v_add_u32 v11, s48, {vr(vLim)}")
        o(f"v_mov_b32 v10, {NEGBIG}")
        o("s_nop 7")
        for i in range(18):
            if i < 16:
                cst = 8 * (i // 4) + (i % 4)
                o(f"v_cmp_le_i32 s[{60 + 2 * (i % 3)}:{61 + 2 * (i % 3)}], {cst}, v11")
            else:
                o("s_nop 0")
            if i >= 2:
                j = (i - 2) % 3
                o(f"v_cndmask_b32 {vr(Sx + i - 2)}, v10, {vr(Sx + i - 2)}, s[{60 + 2 * j}:{61 + 2 * j}]")
        o(f"s_branch L_k2_{tag}_nomask")

    def tile_of(dst, src, add):
        a(f"s_add_u32 {dst}, {src}, {add}")
        a(f"s_lshl_b32 s49, {dst}, 1")
        a("s_sub_u32 s49, s49, s37")
        a("s_add_u32 s49, s49, s36")
        a(f"s_cmp_lt_u32 {dst}, s37")
        a(f"s_cselect_b32 {dst}, {dst}, s49")

    def chk(Sx, Sy, Px, ps, tag):
        a(f"v_cmp_nge_f32 vcc, s57, {vr(ps)}")
        a(f"s_cbranch_vccnz L_k2_{tag}_rare")
        a.label(f"L_k2_{tag}_go")
        a(f"v_add_f32 {vr(vL)}, {vr(vL)}, {vr(ps)}")
        o = ool
        o.label(f"L_k2_{tag}_rare")
        o(f"s_mov_b32 s57, {THR!r}")
        o("s_nop 7")
        o("s_nop 3")
        o(f"v_max3_f32 v10, {vr(Sx)}, {vr(Sx + 1)}, {vr(vFloor)}")
        for i in range(2, 16, 2):
            o(f"v_max3_f32 v10, v10, {vr(Sx + i)}, {vr(Sx + i + 1)}")
        o("v_mov_b32 v11, v10")
        o("s_nop 1")
        o("v_permlane32_swap_b32 v10, v11")
        o("s_nop 1")
        o("v_max_f32 v10, v10, v11")
        o(f"v_mov_b32 {vr(vFloor)}, 0")
        o("v_max_f32 v11, 0, v10")
        o("v_exp_f32 v11, -v11")
        for i in range(16):
            o(f"v_sub_f32 {vr(Sx + i)}, {vr(Sx + i)}, v10")
        for i in range(16):
            o(f"v_sub_f32 {vr(Sy + i)}, {vr(Sy + i)}, v10")
        for i in range(16):
            o(f"v_sub_f32 {vr(NEGM + i)}, {vr(NEGM + i)}, v10")
        for i in range(64):
            o(f"v_mul_f32 {vr(O + i)}, {vr(O + i)}, v11")
        o(f"v_mul_f32 {vr(vL)}, {vr(vL)}, v11")
        for part in range(2):
            for x in sm_part(Sx, Px, ps, part):
                o(x)
            o("s_nop 0")
        o(f"s_branch L_k2_{tag}_go")

    def togK_l():
        return [f"v_xor_b32 {vr(vK + i)}, 0x10000, {vr(vK + i)}" for i in range(2)]

    def togV_l():
        return [f"v_xor_b32 {vr(vV + i)}, 0x10000, {vr(vV + i)}" for i in range(2)]

    def rd(n, lg):
        seg, i = (n % 32) // 8, n % 8
        dst = vr(FR + 4 * (n % 8), 4)
        if os.environ.get("A_NOLDS"):
            return
        if seg in (0, 2):
            a(f"ds_read_b128 {dst}, {vr(vK + (i & 1))} offset:{(seg // 2) * 8192 + (i >> 1) * 2048}")
        else:
            dt = i % 4
            a(f"ds_read_b128 {dst}, {vr(vV + i // 4)} offset:{(seg // 2) * 8192 + dt * 2048}")
        lg.issue(("F", n % 8))

    def mfma(n):
        seg, i = n // 8, n % 8
        fr = vr(FR + 4 * (n % 8), 4)
        if seg in (0, 2):
            Sx = SB if seg == 0 else SA
            c_ = vr(NEGM, 16) if i == 0 else vr(Sx, 16)
            a(f"v_mfma_f32_32x32x16_bf16 {vr(Sx, 16)}, {fr}, {vr(Q + 4 * i, 4)}, {c_}")
        else:
            dt = i % 4
            Px = PA if seg == 1 else PB
            a(f"v_mfma_f32_32x32x16_bf16 {vr(O + 16 * dt, 16)}, {fr}, {vr(Px + 4 * (i // 4), 4)}, {vr(O + 16 * dt, 16)}")

    def spread(lst, positions):
        d = {p: [] for p in positions}
        k = len(lst)
        m = len(positions)
        idx = 0
        for j, p in enumerate(positions):
            cnt = k // m + (1 if j < k % m else 0)
            d[p] = lst[idx:idx + cnt]
            idx += cnt
        return d

    def dma_list(kind, sreg):
        m0s = "s42" if kind == "K" else "s45"

        def first():
            a(f"s_mov_b32 m0, {m0s}")
            a(f"s_xor_b32 {m0s}, {m0s}, 65536")
            a(f"buffer_load_dwordx4 {vr(vLane16)}, s[24:27], {sreg} offen lds")
        fs = [first]
        for j in range(1, 4):
            fs.append(lambda j=j: a(f"buffer_load_dwordx4 {vr(vLane16)}, s[24:27], {sreg} offen offset:{j * 1024} lds"))
        return fs

    def pf():
        a("s_mov_b64 exec, 0x7ff")
        a("buffer_load_dword v21, v20, s[16:19], s46 offen")
        a("s_mov_b64 exec, -1")
        a("s_sub_u32 s47, s47, 1")
        a(f"s_add_u32 s46, s46, {2048 * 11 * 128}")
        a("s_bitcmp1_b32 s47, 0")
        a(f"s_cbranch_scc0 L_k2_pfrot")
        a.label("L_k2_pfdone")
        o = ool
        o.label("L_k2_pfrot")
        o(f"s_sub_u32 s46, s46, {2 * 2048 * 11 * 128}")
        o("s_mov_b32 s16, s12")
        o("s_and_b32 s17, s13, 0xffff")
        o("s_cmp_gt_i32 s47, 0")
        o(f"s_cselect_b32 s18, {576 * 4608 * 2}, 0")
        o("s_mov_b64 s[12:13], s[14:15]")
        o("s_mov_b64 s[14:15], s[10:11]")
        o("s_branch L_k2_pfdone")

    def ctx_addr(a, sq):
        a("s_lshl_b32 s48, s33, 14")
        a(f"s_add_u32 s48, s48, {sq}")
        a("s_lshl_b32 s48, s48, 5")
        a(f"s_add_u32 s48, s48, {CTX_OFF}")
        a("v_and_b32 v3, 31, v2")
        a("v_lshrrev_b32 v4, 5, v2")
        a("v_lshlrev_b32 v3, 5, v3")
        a("v_lshl_add_u32 v3, v4, 4, v3")

    def dma_offsets():
        a("s_add_u32 s50, s38, s59")
        tile_of("s50", "s50", 2)
        a("s_lshl_b32 s50, s50, 14")
        a("s_add_u32 s50, s50, s40")
        tile_of("s51", "s38", 2)
        a("s_mov_b32 s43, s51")
        a("s_lshl_b32 s51, s51, 14")
        a("s_add_u32 s51, s51, s41")
        a("s_cmp_lt_i32 s38, 15")
        a(f"s_cselect_b32 s26, {WS_BYTES}, 0")
        if TOUCH:
            a("s_add_u32 s66, s38, s59")
            tile_of("s66", "s66", 2 + TOUCH)
            a("s_min_u32 s66, s66, 31")
            a("s_lshl_b32 s66, s66, 14")
            a("s_add_u32 s66, s66, s40")
            tile_of("s67", "s38", 2 + TOUCH)
            a("s_min_u32 s67, s67, 31")
            a("s_lshl_b32 s67, s67, 14")
            a("s_add_u32 s67, s67, s41")

    DQ = int(os.environ.get("DQ", "2"))
    DPOS = eval(os.environ.get("DPOS", "[0,2,4,6,8,10,12,14]"))
    if TOUCH:
        a("v_and_b32 v26, 31, v2")
        a("v_lshlrev_b32 v26, 7, v26")
        a("s_mov_b32 s68, 0")
        a("s_mov_b32 s69, -1")
    R0 = int(os.environ.get('R0', '26'))
    AHD = 8
    for i in range(64):
        a(f"v_mov_b32 {vr(O + i)}, 0")
    for i in range(16):
        a(f"v_mov_b32 {vr(NEGM + i)}, 0")
    for i in range(8):
        a(f"v_mov_b32 {vr(PB + i)}, 0")
    a(f"v_mov_b32 {vr(vL)}, 0")
    a(f"v_mov_b32 {vr(vFloor)}, {FLOOR0}")
    a("s_mov_b32 s57, -1.0")
    a("s_mov_b32 s38, -1")
    a("s_mov_b32 s55, 0")
    a("s_waitcnt vmcnt(0) lgkmcnt(0)")
    a("s_barrier")
    if fused and STAG:
        a("s_cmp_lt_u32 s2, 128")
        a("s_cbranch_scc1 L_ws_kvl")
        wflag_set(a, 32, 6, 28, "kvl")
    a("s_lshl_b32 s50, s59, 14")
    a("s_add_u32 s50, s50, s40")
    dma_k("s50")
    a("s_mov_b64 exec, 1")
    a("buffer_load_dword v21, v20, s[20:23], s40 offen")
    if TOUCH:
        a("buffer_load_dword v21, v20, s[20:23], s40 offen")
    a("s_mov_b64 exec, -1")
    lg = Lgkm()
    for n in range(16, 24):
        rd(n, lg)
    dma_offsets()
    for n in range(16, 24):
        lg.need(a, [("F", n % 8)])
        mfma(n)
    for x in togK_l():
        a(x)
    a("s_nop 7")
    mask(SA, "s55", 0, "p0")
    dstamp(0)

    def post4(a_):
        pass

    if os.environ.get("PRIO"):
        a(f"s_cmp_eq_u32 s36, {os.environ['PRIO']}")
        a("s_cbranch_scc0 L_k2_loop")
        a("s_setprio 1")
    a.label("L_k2_loop")
    lg = Lgkm()
    a(f"s_waitcnt vmcnt({2 if TOUCH else 1})")
    if fused and STAG:
        a("s_cmp_eq_u32 s38, 3")
        a("s_cbranch_scc1 L_k2_kv2")
        a.label("L_k2_kv2_done")
        o = ool
        o.label("L_k2_kv2")

        def kv_peers2(vl, vd):
            o(f"v_lshrrev_b32 v19, 1, v{vl}")
            o(f"v_and_b32 v{vd}, 1, v{vl}")
            o(f"v_lshlrev_b32 v{vd}, 2, v{vd}")
            o(f"v_lshl_add_u32 v{vd}, v19, 5, v{vd}")
            o("s_bfe_u32 s48, s33, 0x20001")
            o("s_lshl_b32 s48, s48, 3")
            o("s_lshr_b32 s49, s33, 3")
            o("s_add_u32 s48, s48, s49")
            o("s_add_u32 s48, s48, 128")
            o(f"v_add_u32 v{vd}, s48, v{vd}")
        wflag_wait(o, 32, 6, 28, "kv2", 8, kv_peers2, barrier=False)
        o("s_branch L_k2_kv2_done")
    a("s_barrier")
    dl = dma_list("K", "s50") + dma_list("V", "s51")
    if os.environ.get("A_NODMA"):
        dl = []
    novalu = os.environ.get("A_NOVALU")
    valu = {}
    valu.update(spread(sm_part(SA, PA, PSA, 0), list(range(R0, 32))))
    valu.update(spread(sm_part(SA, PA, PSA, 1), list(range(0, 8))))
    valu.update(spread(["s_nop 1", "s_nop 1"] + sm_part(SB, PB, PSB, 0), list(range(8, 16))))
    valu[15] = valu[15] + togK_l()
    valu.update(spread(sm_part(SB, PB, PSB, 1), list(range(16, 24))))
    valu[23] = valu[23] + togV_l()
    valu.update({p: [] for p in range(24, R0)})
    if novalu:
        for k in valu:
            valu[k] = [x for x in valu[k] if x.startswith("v_xor")]
    order = list(range(R0, 32)) + list(range(0, R0))
    for n in range(32, R0 + AHD):
        rd(n, lg)
    for k, n in enumerate(order):
        nn = n + AHD if n >= R0 else n + AHD
        lg.need(a, [("F", n % 8)]) if n < R0 else None
        mfma(n)
        if n >= R0:
            rd(n + AHD, lg)
        elif n + AHD < 32:
            rd(n + AHD, lg)
        for x in valu[n]:
            a(x)
        if dl and k in DPOS:
            dl.pop(0)()
            if not dl:
                pf()
                if TOUCH:
                    a("v_mov_b32 v23, s66")
                    a("v_mov_b32 v19, s67")
                    a("v_cndmask_b32 v23, v23, v19, s[68:69]")
                    a("v_add_u32 v23, v23, v26")
                    a("buffer_load_dword v21, v23, s[20:23], 0 offen")
        if n == 31:
            a("s_cmp_eq_u32 s38, s53")
            a("s_cbranch_scc1 L_k2_fin_small")
            a.label("L_k2_fin_small_done")
            a("s_mov_b32 s54, s55")
            a("s_mov_b32 s55, s43")
            a("s_add_u32 s38, s38, 1")
            o = ool
            o.label("L_k2_fin_small")
            o(f"v_mov_b32 v10, {vr(vL)}")
            o(f"v_mov_b32 v11, {vr(vL)}")
            ctx_addr(o, "s52")
            o("v_permlane32_swap_b32 v10, v11")
            o("s_nop 1")
            o("v_add_f32 v10, v10, v11")
            o("v_rcp_f32 v10, v10")
            o("s_nop 0")
            for c4 in range(8):
                for i in range(8):
                    o(f"v_mul_f32 {vr(O + 8 * c4 + i)}, {vr(O + 8 * c4 + i)}, v10")
                for i in range(4):
                    o(f"v_cvt_pk_bf16_f32 {vr(O + 8 * c4 + i)}, {vr(O + 8 * c4 + 2 * i)}, {vr(O + 8 * c4 + 2 * i + 1)}")
                o(f"buffer_store_dwordx4 {vr(O + 8 * c4, 4)}, v3, s[20:23], s48 offen{STF}")
                o("s_add_u32 s48, s48, 65536")
            o("s_nop 1")
            for i in range(64):
                o(f"v_mov_b32 {vr(O + i)}, 0")
            o(f"v_mov_b32 {vr(vL)}, 0")
            o(f"v_mov_b32 {vr(vFloor)}, {FLOOR0}")
            o("s_mov_b32 s57, -1.0")
            o("s_branch L_k2_fin_small_done")
        if n == 7:
            mask(SB, "s54", 1, "m1")
            chk(SA, SB, PA, PSA, "a")
            a("s_cmp_eq_u32 s38, s53")
            a("s_cbranch_scc1 L_k2_sw1")
            a.label("L_k2_sw1_done")
            o = ool
            o.label("L_k2_sw1")
            for i in range(8):
                o(f"ds_read_b128 {vr(Q + 4 * i, 4)}, v22 offset:{i * 1024}")
            o("s_mov_b32 s52, s39")
            o("s_mov_b32 s39, s56")
            o("s_branch L_k2_sw1_done")
        if n == 23:
            mask(SA, "s55", 0, "m0")
            chk(SB, SA, PB, PSB, "b")
        if n == 24:
            dma_offsets()
    a("s_waitcnt lgkmcnt(0)")
    a("s_cmp_lt_i32 s38, 16")
    a("s_cbranch_scc1 L_k2_loop")
    for n in range(R0, 32):
        mfma(n)
    dstamp(1)
    a(f"v_mov_b32 v12, {vr(NEGM)}")
    a(f"v_mov_b32 v10, {vr(vL)}")
    a(f"v_mov_b32 v11, {vr(vL)}")
    a("s_nop 1")
    a("v_permlane32_swap_b32 v10, v11")
    a("s_nop 1")
    a("v_add_f32 v13, v10, v11")
    a("s_barrier")
    a("s_and_b32 s48, s42, 0x10000")
    a("s_and_b32 s49, s45, 0x18000")
    a("s_lshl_b32 s50, s35, 13")
    a("s_add_u32 s48, s48, s50")
    a("s_add_u32 s49, s49, s50")
    a("s_cmp_eq_u32 s36, 1")
    a("s_cselect_b32 s50, s48, s49")
    a("s_cselect_b32 s49, s49, s48")
    a(f"v_add_u32 v3, s49, {vr(vLane16)}")
    a(f"v_add_u32 v4, s50, {vr(vLane16)}")
    a("s_lshl_b32 s49, s32, 9")
    a("s_add_u32 s49, s49, 131072")
    a("s_xor_b32 s50, s49, 2048")
    a("v_lshlrev_b32 v5, 3, v2")
    a("v_add_u32 v6, s50, v5")
    a("v_add_u32 v5, s49, v5")
    a("ds_write_b64 v5, v[12:13]")
    a("s_cmp_eq_u32 s36, 1")
    a("s_cbranch_scc1 L_k2_m1")
    for i in range(8):
        a(f"ds_write_b128 v3, {vr(O + 32 + 4 * i, 4)} offset:{i * 1024}")
    a("s_branch L_k2_m2")
    a.label("L_k2_m1")
    for i in range(8):
        a(f"ds_write_b128 v3, {vr(O + 4 * i, 4)} offset:{i * 1024}")
    for i in range(32):
        a(f"v_mov_b32 {vr(O + i)}, {vr(O + 32 + i)}")
    a.label("L_k2_m2")
    a("s_waitcnt lgkmcnt(0)")
    a("s_barrier")
    a("ds_read_b64 v[14:15], v6")
    for i in range(8):
        a(f"ds_read_b128 {vr(O + 32 + 4 * i, 4)}, v4 offset:{i * 1024}")
    a("s_waitcnt lgkmcnt(8)")
    a("v_min_f32 v16, v12, v14")
    a("v_sub_f32 v17, v16, v12")
    a("v_sub_f32 v18, v16, v14")
    a("v_exp_f32 v17, v17")
    a("v_exp_f32 v18, v18")
    a("s_nop 0")
    a("v_mul_f32 v19, v13, v17")
    a("v_fmac_f32 v19, v15, v18")
    a("v_rcp_f32 v19, v19")
    a("s_nop 0")
    a("v_mul_f32 v17, v17, v19")
    a("v_mul_f32 v18, v18, v19")
    a("s_waitcnt lgkmcnt(0)")
    for i in range(32):
        a(f"v_mul_f32 {vr(O + i)}, {vr(O + i)}, v17")
        a(f"v_fmac_f32 {vr(O + i)}, {vr(O + 32 + i)}, v18")
    for i in range(16):
        a(f"v_cvt_pk_bf16_f32 {vr(S + i)}, {vr(O + 2 * i)}, {vr(O + 2 * i + 1)}")
    ctx_addr(a, "s56")
    a("s_lshl_b32 s49, s36, 18")
    a("s_add_u32 s48, s48, s49")
    for i in range(4):
        a(f"buffer_store_dwordx4 {vr(S + 4 * i, 4)}, v3, s[20:23], s48 offen{STF}")
        a("s_add_u32 s48, s48, 65536")
    a.label("L_k2_fin")
    if STAMPS:
        a("s_waitcnt vmcnt(0)")
        stamp(a, 10 if fused else 2)
        stamp_flush(a, 11 if fused else 5, 1, 2, 32, s_t=70, kid=(0 if fused else 1))
    if chain:
        a("s_waitcnt vmcnt(0)")
        a("s_barrier")
        wflag_set(a, 32, 4, 28, "k2out")
        return ool
    a.label("L_k2_end")
    a("s_endpgm")
    a.L += ool.L
    return name, "grid=(256,1,1) block=(512,1,1) lds=163840", 256
```

```python
MB = 1 << 20
XN_OFF = 0
KP_OFF = 4 * MB
VP_OFF = 20 * MB
CTX_OFF = 36 * MB
PART_OFF = 52 * MB
H_OFF = 72 * MB
HN_OFF = 76 * MB
ACT_OFF = 80 * MB
PART2_OFF = 128 * MB
WS_BYTES = 268435456

KA_X, KA_CKV, KA_WQ, KA_WUK, KA_WUV, KA_WO, KA_BX, KA_WG, KA_WU, KA_WD, KA_OUT, KA_DBG, KA_WS = [8 * i for i in range(13)]


class Asm:
    def __init__(self):
        self.L = []

    def __call__(self, s):
        for line in s.split("\n"):
            line = line.strip()
            if line:
                self.L.append("    " + line)

    def label(self, l):
        self.L.append(l + ":")

    def comment(self, s):
        self.L.append("    ; " + s)

    def text(self):
        return "\n".join(self.L) + "\n"


class Lgkm:
    def __init__(self):
        self.q = []

    def issue(self, tag):
        self.q.append(tag)

    def need(self, a, tags):
        idx = -1
        for i, t in enumerate(self.q):
            if t in tags:
                idx = i
        if idx < 0:
            return
        n = len(self.q) - 1 - idx
        assert n <= 15, n
        a(f"s_waitcnt lgkmcnt({n})")
        self.q = self.q[idx + 1:]


def vr(b, n=1):
    return f"v{b}" if n == 1 else f"v[{b}:{b + n - 1}]"


def sr(b, n=1):
    return f"s{b}" if n == 1 else f"s[{b}:{b + n - 1}]"


def kernel_header(a, name):
    a.L.append(f".globl {name}")
    a.L.append(".p2align 8")
    a.L.append(f".type {name},@function")
    a.label(name)


def kernel_desc(name, vgpr=256, sgpr=102):
    acc = (vgpr + 3) // 4 * 4
    return f""".amdhsa_kernel {name}
  .amdhsa_next_free_vgpr {vgpr}
  .amdhsa_next_free_sgpr {sgpr}
  .amdhsa_accum_offset {acc}
  .amdhsa_group_segment_fixed_size 0
  .amdhsa_kernarg_size 104
  .amdhsa_user_sgpr_count 2
  .amdhsa_user_sgpr_kernarg_segment_ptr 1
  .amdhsa_system_sgpr_workgroup_id_x 1
.end_amdhsa_kernel
"""


def wave_sum(a, v, t0, t1):
    a("s_nop 1")
    a(f"v_add_f32_dpp {vr(v)}, {vr(v)}, {vr(v)} quad_perm:[1,0,3,2] row_mask:0xf bank_mask:0xf")
    a("s_nop 1")
    a(f"v_add_f32_dpp {vr(v)}, {vr(v)}, {vr(v)} quad_perm:[2,3,0,1] row_mask:0xf bank_mask:0xf")
    a("s_nop 1")
    a(f"v_add_f32_dpp {vr(v)}, {vr(v)}, {vr(v)} row_half_mirror row_mask:0xf bank_mask:0xf")
    a("s_nop 1")
    a(f"v_add_f32_dpp {vr(v)}, {vr(v)}, {vr(v)} row_mirror row_mask:0xf bank_mask:0xf")
    a(f"v_mov_b32 {vr(t0)}, {vr(v)}")
    a("s_nop 1")
    a(f"v_permlane16_swap_b32 {vr(v)}, {vr(t0)}")
    a("s_nop 1")
    a(f"v_add_f32 {vr(v)}, {vr(v)}, {vr(t0)}")
    a(f"v_mov_b32 {vr(t0)}, {vr(v)}")
    a("s_nop 1")
    a(f"v_permlane32_swap_b32 {vr(v)}, {vr(t0)}")
    a("s_nop 1")
    a(f"v_add_f32 {vr(v)}, {vr(v)}, {vr(t0)}")


def round_bf16(a, v, t):
    a(f"v_cvt_pk_bf16_f32 {vr(t)}, {vr(v)}, {vr(v)}")
    a(f"v_lshlrev_b32 {vr(v)}, 16, {vr(t)}")


def make_srd(a, s, base_lo, base_hi, nrec):
    a(f"s_mov_b32 {sr(s)}, {base_lo}")
    a(f"s_and_b32 {sr(s + 1)}, {base_hi}, 0xffff")
    a(f"s_mov_b32 {sr(s + 2)}, {nrec}")
    a(f"s_mov_b32 {sr(s + 3)}, 0x00020000")


STAMP_OFF = 200 * MB
import os
STAMPS = bool(os.environ.get("STAMPS"))


def stamp(a, idx, s_t=70, srd=28):
    if not STAMPS:
        return
    a("s_waitcnt lgkmcnt(0)")
    a(f"s_memtime s[{s_t}:{s_t + 1}]")
    a("s_waitcnt lgkmcnt(0)")
    a(f"v_mov_b32 v254, s{s_t}") if False else None
    a(f"s_mov_b32 s{s_t + 2 + idx}, s{s_t}")
    if idx == 0:
        a(f"s_memrealtime s[{s_t}:{s_t + 1}]")
        a("s_waitcnt lgkmcnt(0)")
        a(f"s_mov_b32 s{s_t + 2 + 14}, s{s_t}")


def stamp_flush(a, n, vtmp0, vtmp1, s_w, s_t=90, srd=28, kid=0):
    if not STAMPS:
        return
    if s_t == 70:
        a(f"s_memrealtime s[{s_t}:{s_t + 1}]")
        a("s_waitcnt lgkmcnt(0)")
        a(f"s_mov_b32 s{s_t + 2 + 15}, s{s_t}")
    a(f"s_lshl_b32 s{s_t}, s2, 3")
    a(f"s_add_u32 s{s_t}, s{s_t}, s{s_w}")
    a(f"s_lshl_b32 s{s_t}, s{s_t}, 6")
    a(f"s_add_u32 s{s_t}, s{s_t}, {STAMP_OFF + kid * MB}")
    a(f"v_mov_b32 v{vtmp0}, 0")
    for i in list(range(n)) + ([14, 15] if s_t == 70 else []):
        a(f"v_mov_b32 v{vtmp1}, s{s_t + 2 + i}")
        a(f"buffer_store_dword v{vtmp1}, v{vtmp0}, s[{srd}:{srd + 3}], s{s_t} offen offset:{4 * i}")


def prefetch(a, ptrs, s_w, srd, vtmp, vdst, lanes, s_tmp):
    if os.environ.get("NOPF"):
        return
    a(f"s_lshl_b32 s{s_tmp}, s2, 3")
    a(f"s_add_u32 s{s_tmp}, s{s_tmp}, s{s_w}")
    a(f"s_mul_i32 s{s_tmp}, s{s_tmp}, {lanes * 128}")
    a(f"v_and_b32 v{vtmp}, 63, v0")
    a(f"v_lshlrev_b32 v{vtmp}, 7, v{vtmp}")
    a(f"s_mov_b64 exec, {(1 << lanes) - 1}")
    for i, (lo, hi, nb) in enumerate(ptrs):
        make_srd(a, srd, lo, hi, nb)
        a(f"buffer_load_dword v{vdst + i}, v{vtmp}, s[{srd}:{srd + 3}], s{s_tmp} offen")
    a("s_mov_b64 exec, -1")

STF = os.environ.get("STF", "")


DBG_SRD = 92


def dbg_setup(a):
    a(f"s_load_dwordx2 s[90:91], s[0:1], {KA_DBG}")


def dbg_srd(a):
    make_srd(a, DBG_SRD, "s90", "s91", 256)


def flag_set(a, s_w, val, tag, vt=(16, 17)):
    a(f"s_cmp_lg_u32 s{s_w}, 0")
    a(f"s_cbranch_scc1 L_fs_{tag}")
    a(f"v_mov_b32 v{vt[0]}, {val}")
    a(f"v_mov_b32 v{vt[1]}, s2")
    a("s_mov_b64 exec, 1")
    a(f"buffer_store_byte v{vt[0]}, v{vt[1]}, s[{DBG_SRD}:{DBG_SRD + 3}], 0 offen sc1")
    a("s_mov_b64 exec, -1")
    a.label(f"L_fs_{tag}")


def flag_wait(a, s_w, val, tag, mask_code, vt=(16, 17, 18)):
    a(f"s_cmp_lg_u32 s{s_w}, 0")
    a(f"s_cbranch_scc1 L_fw_{tag}_done")
    a(f"v_and_b32 v{vt[0]}, 63, v0")
    mask_code(vt[0], vt[1])
    a(f"v_lshlrev_b32 v{vt[0]}, 2, v{vt[0]}")
    a("s_mov_b32 s96, 0x100000")
    a.label(f"L_fw_{tag}_loop")
    a(f"buffer_load_dword v{vt[2]}, v{vt[0]}, s[{DBG_SRD}:{DBG_SRD + 3}], 0 offen sc1")
    a("s_waitcnt vmcnt(0)")
    a(f"v_or_b32 v{vt[2]}, 0x80808080, v{vt[2]}")
    a(f"v_subrev_u32 v{vt[2]}, {val * 0x01010101}, v{vt[2]}")
    a(f"v_and_b32 v{vt[2]}, v{vt[2]}, v{vt[1]}")
    a(f"v_cmp_ne_u32 vcc, v{vt[2]}, v{vt[1]}")
    a("s_nop 1")
    a(f"s_cbranch_vccz L_fw_{tag}_done")
    a(f"s_sleep {os.environ.get('SLP', '8')}")
    a("s_sub_u32 s96, s96, 1")
    a("s_cmp_lg_u32 s96, 0")
    a(f"s_cbranch_scc1 L_fw_{tag}_loop")
    a.label(f"L_fw_{tag}_done")
    a("s_barrier")


FLG_OFF = 120 * MB
NPHASE = 8


def wflag_zero(a, s_w, srd, vt=(16, 17)):
    a(f"s_lshl_b32 s96, s{s_w}, 8")
    a("s_add_u32 s96, s96, s2")
    a("s_lshl_b32 s96, s96, 7")
    a(f"s_add_u32 s96, s96, {FLG_OFF}")
    a(f"v_mov_b32 v{vt[0]}, 0")
    a("s_mov_b64 exec, 1")
    a(f"buffer_store_dword v{vt[0]}, v{vt[0]}, s[{srd}:{srd + 3}], s96 offen sc1")
    a("s_mov_b64 exec, -1")


def wflag_set(a, s_w, ph, srd, tag, vt=(16, 17)):
    a(f"s_cmp_lg_u32 s{s_w}, 0")
    a(f"s_cbranch_scc1 L_ws_{tag}")
    a("s_lshl_b32 s96, s2, 7")
    a(f"s_add_u32 s96, s96, {FLG_OFF + ph * 256 * 128}")
    a(f"v_mov_b32 v{vt[0]}, 1")
    a(f"v_mov_b32 v{vt[1]}, 0")
    a("s_mov_b64 exec, 1")
    a(f"buffer_store_dword v{vt[0]}, v{vt[1]}, s[{srd}:{srd + 3}], s96 offen sc1")
    a("s_mov_b64 exec, -1")
    a.label(f"L_ws_{tag}")


def wflag_wait(a, s_w, ph, srd, tag, npeers, peer_code, vt=(16, 17, 18), barrier=True):
    a(f"s_cmp_lg_u32 s{s_w}, 0")
    a(f"s_cbranch_scc1 L_ww_{tag}_done")
    a(f"v_and_b32 v{vt[0]}, 63, v0")
    peer_code(vt[0], vt[1])
    a(f"v_lshlrev_b32 v{vt[1]}, 7, v{vt[1]}")
    a(f"s_mov_b32 s97, {FLG_OFF + ph * 256 * 128}")
    a("s_mov_b32 s96, 0x100000")
    a(f"s_mov_b64 exec, {(1 << npeers) - 1}")
    a.label(f"L_ww_{tag}_loop")
    a(f"buffer_load_dword v{vt[2]}, v{vt[1]}, s[{srd}:{srd + 3}], s97 offen sc1")
    a("s_waitcnt vmcnt(0)")
    a(f"v_cmp_ne_u32 vcc, 1, v{vt[2]}")
    a("s_nop 1")
    a(f"s_cbranch_vccz L_ww_{tag}_ok")
    a(f"s_sleep {os.environ.get('SLP', '2')}")
    a("s_sub_u32 s96, s96, 1")
    a("s_cmp_lg_u32 s96, 0")
    a(f"s_cbranch_scc1 L_ww_{tag}_loop")
    a.label(f"L_ww_{tag}_ok")
    a("s_mov_b64 exec, -1")
    a.label(f"L_ww_{tag}_done")
    if barrier:
        a("s_barrier")


def zcount_add(a, s_w, tag, vt=(16, 17)):
    a(f"s_cmp_lg_u32 s{s_w}, 0")
    a(f"s_cbranch_scc1 L_zc_{tag}")
    a(f"v_mov_b32 v{vt[0]}, 1")
    a(f"v_mov_b32 v{vt[1]}, 0")
    a("s_mov_b64 exec, 1")
    a(f"buffer_atomic_add v{vt[0]}, v{vt[1]}, s[{DBG_SRD}:{DBG_SRD + 3}], 0 offen sc1")
    a("s_mov_b64 exec, -1")
    a.label(f"L_zc_{tag}")


def zcount_wait(a, s_w, tag, vt=(16, 17)):
    a(f"s_cmp_lg_u32 s{s_w}, 0")
    a(f"s_cbranch_scc1 L_zw_{tag}_done")
    a(f"v_lshlrev_b32 v{vt[1]}, 6, v0")
    a("s_mov_b32 s96, 0x100000")
    a("s_mov_b64 exec, 15")
    a.label(f"L_zw_{tag}_loop")
    a(f"buffer_load_dword v{vt[0]}, v{vt[1]}, s[{DBG_SRD}:{DBG_SRD + 3}], 0 offen sc1")
    a("s_waitcnt vmcnt(0)")
    a(f"v_cmp_ne_u32 vcc, 64, v{vt[0]}")
    a("s_nop 1")
    a(f"s_cbranch_vccz L_zw_{tag}_ok")
    a("s_sleep 8")
    a("s_sub_u32 s96, s96, 1")
    a("s_cmp_lg_u32 s96, 0")
    a(f"s_cbranch_scc1 L_zw_{tag}_loop")
    a.label(f"L_zw_{tag}_ok")
    a("s_mov_b64 exec, -1")
    a.label(f"L_zw_{tag}_done")


def wflag_zero_and_count(a, s_w, srd, vt=(16, 17)):
    a(f"s_cmp_lg_u32 s{s_w}, 0")
    a("s_cbranch_scc1 L_zac")
    a("s_lshl_b32 s96, s2, 7")
    a(f"s_add_u32 s96, s96, {FLG_OFF}")
    a(f"v_mov_b32 v{vt[0]}, 0")
    a(f"v_lshlrev_b32 v{vt[1]}, 15, v0")
    a("s_mov_b64 exec, 0xff")
    a(f"buffer_store_dword v{vt[0]}, v{vt[1]}, s[{srd}:{srd + 3}], s96 offen sc1")
    a("s_and_b32 s96, s2, 3")
    a("s_lshl_b32 s96, s96, 6")
    a(f"v_mov_b32 v{vt[1]}, 1")
    a("s_mov_b64 exec, 1")
    a("s_waitcnt vmcnt(0)")
    a(f"buffer_atomic_add v{vt[1]}, v{vt[0]}, s[{DBG_SRD}:{DBG_SRD + 3}], s96 offen sc1")
    a("s_mov_b64 exec, -1")
    a.label("L_zac")
```

```python
from gen_common import *


class GemmCfg:
    pass


ENV = os.environ.get


def gemm_prologue_and_loop(a, c, tag):
    TN, TM, R, AH = c.TN, c.TM, c.R, c.AHEAD
    NSW, WSLOT, NST, TSLOT, TPER = c.NSW, c.WSLOT, c.NST, c.TSLOT, c.TPER
    lg = Lgkm()

    def ring_adv(sreg, slot, ns):
        a(f"s_add_u32 {sr(sreg)}, {sr(sreg)}, {slot}")
        a(f"s_cmp_eq_u32 {sr(sreg)}, {ns * slot}")
        a(f"s_cselect_b32 {sr(sreg)}, 0, {sr(sreg)}")

    def finW():
        c.advW()
        ring_adv(c.s_dmaW, WSLOT, NSW)

    def finT():
        c.advT()
        ring_adv(c.s_dmaT, TSLOT, NST)

    def rd_w(nt, ring, dreg):
        for j, (ar, imm) in enumerate(c.wread(nt)):
            if ENV("NOLDS"):
                continue
            a(f"ds_read_b64_tr_b16 {vr(c.wfrag(ring) + 2 * j, 2)}, {vr(ar)} offset:{imm}")
            lg.issue(("W", ring))
        for r_ in c.wadv(nt):
            a(f"v_add_u32 {vr(r_)}, {sr(dreg)}, {vr(r_)}")

    def rd_t(buf, tt, dreg):
        ar, imm = c.tread(buf, tt)
        if not ENV("NOLDS"):
            a(f"ds_read_b128 {vr(c.tfrag(buf, tt), 4)}, {vr(ar)} offset:{imm}")
            lg.issue(("T", buf))
        if tt == TM - 1:
            for r_ in c.tadv(buf):
                a(f"v_add_u32 {vr(r_)}, {sr(dreg)}, {vr(r_)}")

    a(f"s_mov_b32 {sr(c.s_dmaW)}, 0")
    a(f"s_mov_b32 {sr(c.s_dmaT)}, 0")
    stamp(a, 7)
    DW = len(c.dmaW())
    DT = len(c.dmaT(0))
    issued = []
    mid_done = False
    if TPER == 1:
        assert NST == NSW
        if getattr(c, "pre_T", None):
            for s in range(NSW - 1):
                for f in c.dmaW():
                    f(); issued.append(("W", s))
                finW()
            c.pre_T()
            for s in range(NSW - 1):
                for f in c.dmaT(0):
                    f(); issued.append(("T", 0 if s < 2 else s))
                finT()
        else:
            for s in range(NSW - 1):
                for f in c.dmaW():
                    f(); issued.append(("W", s))
                finW()
                for f in c.dmaT(0):
                    f(); issued.append(("T", s))
                finT()
        VM_LOOP = (NSW - 3) * (DW + DT)
    else:
        tq = [(t, h) for t in range(NST - 1) for h in range(2)] + [(NST - 1, 0)]
        for s in range(NSW - 1):
            for f in c.dmaW():
                f(); issued.append(("W", s))
            finW()
            n_t = 2 if len(tq) > (NSW - 1 - s) else 1
            for _ in range(n_t):
                if tq:
                    t, h = tq.pop(0)
                    for f in c.dmaT(h):
                        f(); issued.append(("T", t))
                    if h == 1:
                        finT()
            if s == int(ENV("MIDAT", "99")) and getattr(c, "mid", None):
                c.mid(len(issued))
                mid_done = True
        assert not tq
        VM_LOOP = (NSW - 3) * (DW + DT) + DT
        if getattr(c, "extra", None):
            VM_LOOP += (NSW - 3) + 1
            c.extra()
            issued.append(("X", 99))
    if getattr(c, "mid", None) and not mid_done:
        c.mid(len(issued))
    for nt in range(TN):
        for tt in range(TM):
            for r_ in range(4):
                a(f"v_mov_b32 {vr(c.acc(nt, tt) + r_)}, 0")
    a(f"s_mov_b32 {sr(c.s_dB)}, {WSLOT}")
    a(f"s_mov_b32 {sr(c.s_slotW)}, {WSLOT}")
    a(f"s_mov_b32 {sr(c.s_sl)}, 0")
    a(f"s_mov_b32 {sr(c.s_dT)}, {TSLOT}")
    a(f"s_mov_b32 {sr(c.s_slotT)}, {TSLOT}")
    a(f"s_mov_b32 {sr(c.s_slT)}, 0")
    stamp(a, 6)
    last0 = max(i for i, x in enumerate(issued) if x[1] == 0)
    a(f"s_waitcnt vmcnt({len(issued) - 1 - last0})")
    a("s_barrier")
    stamp(a, 1)
    if getattr(c, "post_bar", None):
        c.post_bar(tag)
    TPOS = c.TPOS
    order = []
    for n in range(TN):
        if n + AH >= TN:
            order.append(("W", n + AH - TN))
        if 0 <= n - TPOS < TM:
            order.append(("T", n - TPOS))
    for kind, i in order:
        if kind == "W":
            rd_w(i, i % R, c.s_dB)
        else:
            rd_t(0, i, c.s_dT)
    q0 = list(lg.q)
    a(f"s_mov_b32 {sr(c.s_cnt)}, {c.NSTEPS // 2}")
    a.label(f"L_{tag}_loop")
    for p in range(2):
        a(f"s_waitcnt vmcnt({VM_LOOP})")
        if not ENV("NOBAR"):
            a("s_barrier")
        if p == 0 and getattr(c, "inloop", None):
            c.inloop(tag)
        a(f"s_mov_b32 {sr(c.s_dA)}, {sr(c.s_dB)}")
        a(f"s_add_u32 {sr(c.s_sl)}, {sr(c.s_sl)}, 1")
        a(f"s_cmp_eq_u32 {sr(c.s_sl)}, {NSW}")
        a(f"s_cselect_b32 {sr(c.s_sl)}, 0, {sr(c.s_sl)}")
        a(f"s_cmp_eq_u32 {sr(c.s_sl)}, {NSW - 1}")
        a(f"s_cselect_b32 {sr(c.s_dB)}, {(-(NSW - 1) * WSLOT) & 0xffffffff}, {sr(c.s_slotW)}")
        if TPER == 1 or p == 1:
            a(f"s_add_u32 {sr(c.s_slT)}, {sr(c.s_slT)}, 1")
            a(f"s_cmp_eq_u32 {sr(c.s_slT)}, {NST}")
            a(f"s_cselect_b32 {sr(c.s_slT)}, 0, {sr(c.s_slT)}")
            a(f"s_cmp_eq_u32 {sr(c.s_slT)}, {NST - 1}")
            a(f"s_cselect_b32 {sr(c.s_dT)}, {(-(NST - 1) * TSLOT) & 0xffffffff}, {sr(c.s_slotT)}")
        h = 0 if TPER == 1 else (1 - p)
        dmas = c.dmaW() + [finW] + c.dmaT(h) + ([finT] if (TPER == 1 or h == 1) else [])
        if getattr(c, "extra", None):
            dmas.append(c.extra)
        if ENV("NODMA"):
            dmas = []
        allp = [(n, tt) for n in range(TN) for tt in range(TM)]
        nd = DW + DT + (1 if getattr(c, "extra", None) else 0)
        frac = float(ENV("DFRAC", str(getattr(c, "DFRAC", 0.8))))
        slots = [allp[int(j * len(allp) * frac / nd)] for j in range(nd)]
        k = 0
        for n in range(TN):
            gi = p * TN + n
            nt2 = n + AH
            if nt2 < TN:
                rd_w(nt2, (gi + AH) % R, c.s_dA)
            else:
                rd_w(nt2 - TN, (gi + AH) % R, c.s_dB)
            if 0 <= n - TPOS < TM:
                rd_t(p ^ 1, n - TPOS, c.s_dT)
            need = [("W", gi % R)]
            if n == 0:
                need.append(("T", p))
            lg.need(a, need)
            for tt in range(TM):
                w_, t_ = vr(c.wfrag(gi % R), 4), vr(c.tfrag(p, tt), 4)
                ac = vr(c.acc(n, tt), 4)
                if c.swap:
                    a(f"v_mfma_f32_16x16x32_bf16 {ac}, {t_}, {w_}, {ac}")
                else:
                    a(f"v_mfma_f32_16x16x32_bf16 {ac}, {w_}, {t_}, {ac}")
                if (n, tt) in slots and dmas:
                    f = dmas.pop(0)
                    f()
                    while dmas and dmas[0] in (finW, finT):
                        dmas.pop(0)()
        assert not dmas
    assert lg.q == q0[len(q0) - len(lg.q):], (lg.q, q0)
    a(f"s_sub_u32 {sr(c.s_cnt)}, {sr(c.s_cnt)}, 1")
    a(f"s_cmp_lg_u32 {sr(c.s_cnt)}, 0")
    a(f"s_cbranch_scc1 L_{tag}_loop")
    a("s_waitcnt lgkmcnt(0)")
    a("s_nop 7")
    a("s_nop 7")
    stamp(a, 2)


def gen_k1(a, fused=False):
    name = fused if fused else "k1_kv_kernel"
    STF = " sc1" if fused else globals()["STF"]
    PFMODE = ENV("PFMODE", "step")
    KVF = {"sc1": " sc1", "nt": " nt", "plain": ""}[ENV("KVF", "sc1")]
    kernel_header(a, name)
    a("s_cmp_ge_u32 s2, 256")
    a("s_cbranch_scc1 L_k67c_end" if fused else "s_cbranch_scc1 L_k1_end")
    if fused:
        dbg_setup(a)
    a(f"s_load_dwordx4 s[4:7], s[0:1], {KA_X}")
    a(f"s_load_dwordx4 s[8:11], s[0:1], {KA_WUK}")
    a(f"s_load_dwordx2 s[12:13], s[0:1], {KA_WS}")
    a(f"s_load_dwordx2 s[14:15], s[0:1], {KA_WQ}")
    a("v_lshrrev_b32 v1, 6, v0")
    a("v_and_b32 v2, 63, v0")
    a("s_nop 0")
    a("v_readfirstlane_b32 s32, v1")
    a("s_and_b32 s34, s2, 7")
    a("s_lshl_b32 s34, s34, 2")
    a("s_lshr_b32 s48, s2, 3")
    a("s_and_b32 s48, s48, 3")
    a("s_add_u32 s34, s34, s48")
    a("s_lshr_b32 s33, s2, 5")
    a("s_lshr_b32 s35, s32, 1")
    a("s_and_b32 s36, s32, 1")
    a("s_lshl_b32 s40, s32, 11")
    a("s_waitcnt lgkmcnt(0)")
    stamp(a, 0)
    a("s_lshl_b32 s48, s33, 18")
    a("s_add_u32 s6, s6, s48")
    a("s_addc_u32 s7, s7, 0")
    make_srd(a, 16, "s6", "s7", 256 * 1024)
    a(f"s_mov_b32 s46, {256 * 1024}")
    a("s_cmp_ge_u32 s34, 16")
    a("s_cselect_b32 s8, s10, s8")
    a("s_cselect_b32 s9, s11, s9")
    a("s_and_b32 s48, s34, 15")
    a("s_lshl_b32 s48, s48, 9")
    a("s_add_u32 s8, s8, s48")
    a("s_addc_u32 s9, s9, 0")
    a(f"s_sub_u32 s47, {512 * 8192}, s48")
    make_srd(a, 20, "s8", "s9", "s47")
    make_srd(a, 24, "s4", "s5", 2048 * 1152)
    make_srd(a, 28, "s12", "s13", WS_BYTES)
    if fused:
        dbg_srd(a)
    if fused:
        wflag_zero_and_count(a, 32, 28)
    else:
        wflag_zero(a, 32, 28)
    a("s_lshl_b32 s49, s2, 3")
    a("s_add_u32 s49, s49, s32")
    a("s_mul_i32 s50, s49, 1152")
    a("v_lshlrev_b32 v3, 4, v2")
    for i in range(8, 12):
        a(f"v_mov_b32 v{i}, 0")
    a("buffer_load_dwordx4 v[4:7], v3, s[24:27], s50 offen")
    a("s_mov_b64 exec, 0xff")
    a("buffer_load_dwordx4 v[8:11], v3, s[24:27], s50 offen offset:1024")
    a("s_mov_b64 exec, -1")
    vA = 56
    vW0, vW1 = 66, 67
    vT0, vT1 = 70, 71
    vWa = 72
    WBASE = 3 * 32768
    a("v_lshrrev_b32 v20, 3, v2")
    a("s_lshl_b32 s48, s32, 5")
    a("v_add_u32 v20, s48, v20")
    a("v_lshlrev_b32 v20, 10, v20")
    a("v_lshrrev_b32 v21, 5, v2")
    a("v_and_b32 v22, 7, v2")
    a("v_bfe_u32 v24, v2, 4, 1")
    a("v_lshlrev_b32 v24, 2, v24")
    a("v_xor_b32 v22, v22, v24")
    for j in range(4):
        a(f"v_sub_u32 v23, {(-2 * (j >> 1)) & 3}, v21")
        a("v_and_b32 v23, 3, v23")
        a("v_xor_b32 v23, v23, v22")
        a("v_lshl_add_u32 v23, v23, 4, v20")
        a(f"v_add_u32 {vr(vA + j)}, {j * 8 * 1024}, v23")
    a("v_lshrrev_b32 v20, 5, v2")
    a("v_bfe_u32 v21, v2, 1, 4")
    a("v_and_b32 v22, 1, v2")
    a("s_and_b32 s48, s35, 1")
    a("s_lshl_b32 s48, s48, 2")
    a("s_lshl_b32 s51, s32, 2")
    for j, vd in ((0, vW0), (1, vW1)):
        a(f"v_add_u32 v23, {2 * j}, v20")
        a("v_or_b32 v24, s48, v23")
        a("v_xor_b32 v24, v24, v21")
        a("v_lshrrev_b32 v25, 1, v24")
        a("v_lshlrev_b32 v25, 2, v25")
        a("v_and_b32 v24, 1, v24")
        a("v_add_u32 v25, v25, v24")
        a("v_lshl_add_u32 v25, v22, 1, v25")
        a("v_add_u32 v23, s51, v23")
        a("v_lshlrev_b32 v23, 13, v23")
        a(f"v_lshl_add_u32 {vr(vd)}, v25, 4, v23")
    a("v_and_b32 v62, 15, v2")
    a("v_lshrrev_b32 v61, 4, v2")
    a("v_bfe_u32 v20, v2, 3, 1")
    a("v_lshlrev_b32 v20, 4, v20")
    a("v_and_b32 v21, 7, v2")
    a("v_add_u32 v60, v20, v21")
    a("v_lshrrev_b32 v20, 2, v62")
    a("v_sub_u32 v20, 0, v20")
    a("v_and_b32 v20, 3, v20")
    a("v_xor_b32 v20, v20, v61")
    a("v_bfe_u32 v21, v2, 1, 1")
    a("v_lshl_or_b32 v20, v21, 2, v20")
    a("s_lshl_b32 s48, s35, 6")
    a("v_add_u32 v21, s48, v60")
    a("v_lshlrev_b32 v21, 7, v21")
    a(f"v_lshl_add_u32 {vr(vT0)}, v20, 4, v21")
    a(f"v_xor_b32 {vr(vT1)}, 64, {vr(vT0)}")
    a("v_bfe_u32 v20, v2, 2, 2")
    a("v_and_b32 v21, 1, v61")
    a("v_lshl_or_b32 v21, v21, 2, v20")
    a("v_lshl_add_u32 v22, v61, 3, v20")
    a("v_lshlrev_b32 v22, 9, v22")
    a("v_and_b32 v23, 3, v2")
    a("v_lshl_add_u32 v22, v23, 3, v22")
    a("s_lshl_b32 s48, s36, 8")
    a(f"s_add_u32 s48, s48, {WBASE}")
    a("v_add_u32 v22, s48, v22")
    for nt in range(8):
        a(f"v_xor_b32 v23, {nt}, v21")
        a(f"v_lshl_add_u32 {vr(vWa + nt)}, v23, 5, v22")
    a("s_mov_b32 s37, 0")
    a("s_mov_b32 s38, 0")

    a("s_mov_b32 s44, 0")
    a("s_mov_b32 s53, 0")
    a("s_lshl_b32 s54, s32, 12")
    a(f"s_add_u32 s40, s40, {WBASE}")
    c = GemmCfg()
    c.TN, c.TM, c.R, c.AHEAD, c.NSTEPS = 8, 4, 4, 3, 16
    c.DFRAC = float(ENV("DF1", "0.5"))
    c.NSW, c.WSLOT, c.NST, c.TSLOT, c.TPER = 4, 16384, 3, 32768, 2
    c.TPOS = 0
    c.DMA_EVERY = 4
    c.acc = lambda nt, tt: 128 + (nt * 4 + tt) * 4
    c.tfrag = lambda buf, tt: 96 + buf * 16 + tt * 4
    c.wfrag = lambda r_: 80 + r_ * 4
    c.wread = lambda nt: [(vWa + nt, 0), (vWa + nt, 2048)]
    c.wadv = lambda nt: [vWa + nt]
    c.tread = lambda q, tt: ((vT0, vT1)[q], (32 * (tt >> 1) + 8 * (tt & 1)) * 128)
    c.tadv = lambda q: [(vT0, vT1)[q]]
    c.s_dA, c.s_dB, c.s_sl, c.s_dmaW, c.s_cnt, c.s_slotW = 41, 42, 43, 39, 45, 52
    c.s_dT, c.s_slT, c.s_dmaT, c.s_slotT = 55, 56, 57, 58

    def dmaW():
        def d2():
            a("s_add_u32 m0, s39, s40")
            a("s_nop 0")
            a(f"buffer_load_dwordx4 {vr(vW0)}, s[20:23], s38 offen lds")

        def d3():
            a("s_add_u32 m0, m0, 1024")
            a("s_nop 0")
            a(f"buffer_load_dwordx4 {vr(vW1)}, s[20:23], s38 offen lds")
        return [d2, d3]
    c.dmaW = dmaW

    def dmaT(h):
        def d0():
            a("s_add_u32 m0, s57, s54")
            if h:
                a("s_add_u32 m0, m0, 2048")
            a("s_nop 0")
            a(f"buffer_load_dwordx4 {vr(vA + 2 * h)}, s[16:19], s37 offen lds")

        def d1():
            a("s_add_u32 m0, m0, 1024")
            a("s_nop 0")
            a(f"buffer_load_dwordx4 {vr(vA + 2 * h + 1)}, s[16:19], s37 offen lds")
        return [d0, d1]
    c.dmaT = dmaT

    def advW():
        a(f"s_add_u32 s38, s38, {32 * 8192}")
        a("s_add_u32 s44, s44, 1")
        a(f"s_cmp_lt_u32 s44, {c.NSTEPS}")
        a("s_cselect_b32 s22, s47, 0")
    c.advW = advW

    def advT():
        a("s_add_u32 s37, s37, 128")
        a("s_add_u32 s53, s53, 1")
        a(f"s_cmp_lt_u32 s53, {c.NSTEPS // 2}")
        a("s_cselect_b32 s18, s46, 0")
    c.advT = advT

    def mid(nis):
        stamp(a, 4)
        a(f"s_waitcnt vmcnt({nis})")
        stamp(a, 5)
        for i in range(8):
            a(f"v_lshlrev_b32 v{20 + 2 * i}, 16, v{4 + i}")
            a(f"v_and_b32 v{21 + 2 * i}, 0xffff0000, v{4 + i}")
        a("v_add_f32 v36, v20, v21")
        for i in range(22, 36):
            a(f"v_add_f32 v36, v36, v{i}")
        wave_sum(a, 36, 37, 38)
        a(f"v_mul_f32 v36, {1.0 / 576.0!r}, v36")
        a("v_mov_b32 v39, 0")
        for i in range(20, 28):
            a(f"v_sub_f32 v37, v{i}, v36")
            a("v_fmac_f32 v39, v37, v37")
        a("s_mov_b64 exec, 0xff")
        for i in range(28, 36):
            a(f"v_sub_f32 v37, v{i}, v36")
            a("v_fmac_f32 v39, v37, v37")
        a("s_mov_b64 exec, -1")
        wave_sum(a, 39, 37, 38)
        a(f"v_mul_f32 v39, {1.0 / 576.0!r}, v39")
        round_bf16(a, 39, 37)
        a("v_add_f32 v39, 0x3727c5ac, v39")
        round_bf16(a, 39, 37)
        a("v_sqrt_f32 v39, v39")
        a("s_nop 0")
        round_bf16(a, 39, 37)
        a("v_rcp_f32 v39, v39")
        round_bf16(a, 36, 37)
        for i in range(8):
            a(f"v_sub_f32 v{20 + 2 * i}, v{20 + 2 * i}, v36")
            a(f"v_sub_f32 v{21 + 2 * i}, v{21 + 2 * i}, v36")
            a(f"v_cvt_pk_bf16_f32 v37, v{20 + 2 * i}, v{21 + 2 * i}")
            a(f"v_lshlrev_b32 v{20 + 2 * i}, 16, v37")
            a(f"v_and_b32 v{21 + 2 * i}, 0xffff0000, v37")
            a(f"v_mul_f32 v{20 + 2 * i}, v{20 + 2 * i}, v39")
            a(f"v_mul_f32 v{21 + 2 * i}, v{21 + 2 * i}, v39")
            a(f"v_cvt_pk_bf16_f32 v{4 + i}, v{20 + 2 * i}, v{21 + 2 * i}")
        SCR = WBASE + 3 * 16384
        a("s_lshl_b32 s50, s32, 4")
        a(f"s_add_u32 s50, s50, {SCR}")
        a("v_lshlrev_b32 v37, 7, v2")
        a("v_add_u32 v37, s50, v37")
        a("ds_write_b128 v37, v[4:7]")
        a("s_mov_b64 exec, 0xff")
        a("ds_write_b128 v37, v[8:11] offset:8192")
        a("s_mov_b64 exec, -1")
        a("s_mul_i32 s50, s32, 72")
        a("v_add_u32 v38, s50, v2")
        a("v_lshlrev_b32 v37, 4, v38")
        a(f"v_add_u32 v37, {SCR}, v37")
        a("s_waitcnt lgkmcnt(0)")
        a("s_barrier")
        a("ds_read_b128 v[4:7], v37")
        a("ds_read_b128 v[8:11], v37 offset:1024")
        a("s_lshr_b32 s50, s2, 2")
        a("s_mul_i32 s50, s50, 36864")
        a("s_and_b32 s51, s2, 3")
        a("s_lshl_b32 s51, s51, 7")
        a("s_add_u32 s50, s50, s51")
        a(f"s_add_u32 s50, s50, {XN_OFF}")
        for k in range(2):
            a("v_lshrrev_b32 v36, 3, v38")
            a("v_lshlrev_b32 v36, 9, v36")
            a("v_and_b32 v39, 7, v38")
            a(f"v_lshl_add_u32 v{40 + k}, v39, 4, v36")
            a("v_add_u32 v38, 64, v38")
        a("s_waitcnt lgkmcnt(0)")
        a(f"buffer_store_dwordx4 v[4:7], v40, s[28:31], s50 offen{STF}")
        a("s_mov_b64 exec, 0xff")
        a(f"buffer_store_dwordx4 v[8:11], v41, s[28:31], s50 offen{STF}")
        a("s_mov_b64 exec, -1")
        if PFMODE == "mid":
            prefetch(a, [("s14", "s15", 576 * 8192)], 32, 24, 50, 51, 18, 48)
    c.mid = mid

    if PFMODE == "step":
        make_srd(a, 60, "s14", "s15", 576 * 8192)
        a("s_lshl_b32 s64, s2, 3")
        a("s_add_u32 s64, s64, s32")
        a("s_lshl_b32 s64, s64, 8")
        a("v_lshlrev_b32 v50, 7, v2")

        def extra():
            a("s_mov_b64 exec, 3")
            a("buffer_load_dword v51, v50, s[60:63], s64 offen")
            a("s_mov_b64 exec, -1")
            a(f"s_add_u32 s64, s64, {2048 * 256}")
        c.extra = extra

    def inloop(tag):
        a(f"s_cmp_lg_u32 s45, {ENV('PFIT', '6')}")
        a(f"s_cbranch_scc1 L_{tag}_nopf")
        if PFMODE == "loop":
            prefetch(a, [("s14", "s15", 576 * 8192)], 32, 24, 50, 51, 18, 48)
        if fused:
            wflag_set(a, 32, 5, 28, "xn" + tag, vt=(52, 53))
        a.label(f"L_{tag}_nopf")
    if PFMODE in ("loop", "step") or fused:
        c.inloop = inloop

    a("s_cmp_ge_u32 s34, 16")
    a("s_cbranch_scc1 L_k1_vpath")
    c.swap = False
    gemm_prologue_and_loop(a, c, "k1k")
    VA = 12 if fused else 24
    SB = "s66" if fused else "s48"
    ST = "s68" if fused else "s49"

    def kv_addr(off):
        a("s_and_b32 s48, s34, 15")
        a("s_lshl_b32 s48, s48, 1")
        a("s_add_u32 s48, s48, s36")
        a("s_lshl_b32 s48, s48, 6")
        a("s_lshl_b32 s49, s33, 3")
        a("s_add_u32 s48, s48, s49")
        a("s_lshl_b32 s49, s35, 1")
        a("s_add_u32 s48, s48, s49")
        a("s_lshl_b32 s48, s48, 13")
        a(f"s_add_u32 {SB}, s48, {off}")
        a("v_bfe_u32 v20, v62, 2, 1")
        a("v_xor_b32 v20, v20, v61")
        a("v_lshlrev_b32 v21, 6, v60")
        a(f"v_lshl_add_u32 v{VA}, v20, 4, v21")
        a(f"v_xor_b32 v{VA + 1}, 32, v{VA}")

    def k_addr():
        kv_addr(KP_OFF)

    def v_addr():
        kv_addr(VP_OFF)

    def k_store():
        k = 0
        for tt in range(4):
            for P in range(4):
                t = 32 + (k % 4) * 4
                k += 1
                a0, a1 = c.acc(2 * P, tt), c.acc(2 * P + 1, tt)
                a(f"s_add_u32 {ST}, {SB}, {(tt >> 1) * 8192 + P * 2048}")
                a(f"v_cvt_pk_bf16_f32 v{t}, v{a0}, v{a0 + 1}")
                a(f"v_cvt_pk_bf16_f32 v{t + 1}, v{a0 + 2}, v{a0 + 3}")
                a(f"v_cvt_pk_bf16_f32 v{t + 2}, v{a1}, v{a1 + 1}")
                a(f"v_cvt_pk_bf16_f32 v{t + 3}, v{a1 + 2}, v{a1 + 3}")
                a(f"buffer_store_dwordx4 v[{t}:{t + 3}], v{VA + (tt & 1)}, s[28:31], {ST} offen offset:{(tt & 1) * 512}{STF}")

    def v_store():
        k = 0
        for nt in range(8):
            P, T = nt >> 1, nt & 1
            for Q in range(2):
                t = 32 + (k % 4) * 4
                k += 1
                a0, a1 = c.acc(nt, 2 * Q), c.acc(nt, 2 * Q + 1)
                a(f"s_add_u32 {ST}, {SB}, {Q * 8192 + P * 2048}")
                a(f"v_cvt_pk_bf16_f32 v{t}, v{a0}, v{a0 + 1}")
                a(f"v_cvt_pk_bf16_f32 v{t + 1}, v{a0 + 2}, v{a0 + 3}")
                a(f"v_cvt_pk_bf16_f32 v{t + 2}, v{a1}, v{a1 + 1}")
                a(f"v_cvt_pk_bf16_f32 v{t + 3}, v{a1 + 2}, v{a1 + 3}")
                a(f"buffer_store_dwordx4 v[{t}:{t + 3}], v{VA + T}, s[28:31], {ST} offen offset:{T * 512}{STF}")

    def fin():
        if STAMPS:
            a("s_waitcnt vmcnt(0)")
            stamp(a, 3)
            stamp_flush(a, 8, 1, 2, 32, s_t=70)
    if fused:
        k_addr()
        a("s_mov_b32 s67, 0")
        a("s_branch L_k12_mid")
    else:
        if PFMODE == "end":
            prefetch(a, [("s14", "s15", 576 * 8192)], 32, 16, 50, 51, 18, 48)
        k_addr()
        k_store()
        fin()
        a("s_endpgm")
    a.label("L_k1_vpath")
    c.swap = True
    gemm_prologue_and_loop(a, c, "k1v")
    if fused:
        v_addr()
        a("s_mov_b32 s67, 1")
        a.label("L_k12_mid")

        def pack():
            a("s_cmp_eq_u32 s67, 1")
            a("s_cbranch_scc1 L_k12_vpk")
            for P in range(4):
                for tt in range(4):
                    a0, a1 = c.acc(2 * P, tt), c.acc(2 * P + 1, tt)
                    a(f"v_cvt_pk_bf16_f32 v{a0}, v{a0}, v{a0 + 1}")
                    a(f"v_cvt_pk_bf16_f32 v{a0 + 1}, v{a0 + 2}, v{a0 + 3}")
                    a(f"v_cvt_pk_bf16_f32 v{a0 + 2}, v{a1}, v{a1 + 1}")
                    a(f"v_cvt_pk_bf16_f32 v{a0 + 3}, v{a1 + 2}, v{a1 + 3}")
            a("s_branch L_k12_pkdone")
            a.label("L_k12_vpk")
            for P in range(4):
                for cc in range(4):
                    src = 128 + 32 * P + 8 * cc
                    d = 128 + 32 * P + 4 * cc
                    for j in range(4):
                        a(f"v_cvt_pk_bf16_f32 v{d + j}, v{src + 2 * j}, v{src + 2 * j + 1}")
            a.label("L_k12_pkdone")

        def store(k, sfx):
            kk = f'{k}{sfx}'
            P, cc = k // 4, k % 4
            d = 128 + 32 * P + 4 * cc
            offK = (cc >> 1) * 8192 + P * 2048 + (cc & 1) * 512
            offV = (cc & 1) * 8192 + P * 2048 + (cc >> 1) * 512
            a("s_cmp_eq_u32 s67, 1")
            a(f"s_cbranch_scc1 L_k12_sv{kk}")
            a(f"s_add_u32 s68, s66, {offK}")
            a(f"buffer_store_dwordx4 v[{d}:{d + 3}], v{VA + (cc & 1)}, s[28:31], s68 offen{KVF}")
            a(f"s_branch L_k12_sd{kk}")
            a.label(f"L_k12_sv{kk}")
            a(f"s_add_u32 s68, s66, {offV}")
            a(f"buffer_store_dwordx4 v[{d}:{d + 3}], v{VA + (cc >> 1)}, s[28:31], s68 offen{KVF}")
            a.label(f"L_k12_sd{kk}")
        return pack, store
    if PFMODE == "end":
        prefetch(a, [("s14", "s15", 576 * 8192)], 32, 16, 50, 51, 18, 48)
    v_addr()
    v_store()
    fin()
    a.label("L_k1_end")
    a("s_endpgm")
    return name, "grid=(256,1,1) block=(512,1,1) lds=163840", 256


def gen_empty(a):
    name = "k0_empty_kernel"
    kernel_header(a, name)
    a("s_endpgm")
    return name, "grid=(256,1,1) block=(512,1,1) lds=163840", 256
```

```python
import math
from gen_common import *
from gen_gemm import *


def div18(a, vq, vr_, vin, vtmp):
    a(f"v_mul_u32_u24 {vr(vq)}, 3641, {vr(vin)}")
    a(f"v_lshrrev_b32 {vr(vq)}, 16, {vr(vq)}")
    a(f"v_mul_u32_u24 {vr(vtmp)}, 18, {vr(vq)}")
    a(f"v_sub_u32 {vr(vr_)}, {vr(vin)}, {vr(vtmp)}")


def gen_splitk(name, KA_W, A_OFF, NSTAGE, kid, fuse_ln=None, chain_in=False, chain_out=False, endlabel=None):
    PART = PART2_OFF if fuse_ln is False else PART_OFF

    def g(a):
        if not chain_in:
            kernel_header(a, name)
            a("s_cmp_ge_u32 s2, 256")
            a(f"s_cbranch_scc1 {endlabel or ('L_' + name + '_end')}")
        a(f"s_load_dwordx2 s[8:9], s[0:1], {KA_W}")
        a(f"s_load_dwordx2 s[12:13], s[0:1], {KA_WS}")
        if fuse_ln is not None:
            dbg_setup(a)
            a(f"s_load_dwordx2 s[4:5], s[0:1], {KA_X if fuse_ln else KA_OUT}")
        a("v_lshrrev_b32 v1, 6, v0")
        a("v_and_b32 v2, 63, v0")
        a("s_nop 0")
        a("v_readfirstlane_b32 s32, v1")
        a("s_and_b32 s48, s2, 7")
        a("s_lshr_b32 s49, s2, 3")
        a("s_lshr_b32 s33, s48, 1")
        a("s_lshr_b32 s50, s49, 2")
        a("s_sub_u32 s34, 15, s50")
        a("s_bitcmp1_b32 s48, 0")
        a("s_cselect_b32 s34, s34, s50")
        a("s_and_b32 s35, s49, 3")
        a("s_and_b32 s36, s32, 3")
        a("s_lshr_b32 s37, s32, 2")
        a("s_waitcnt lgkmcnt(0)")
        stamp(a, 0)
        KTOT = NSTAGE * 64 * 4
        make_srd(a, 20, "s8", "s9", KTOT * 1152)
        a(f"s_mov_b32 s47, {KTOT * 1152}")
        make_srd(a, 16, "s12", "s13", WS_BYTES)
        a(f"s_mov_b32 s46, {WS_BYTES}")
        make_srd(a, 28, "s12", "s13", WS_BYTES)
        if fuse_ln is not None:
            dbg_srd(a)
        TS, WS_ = 16384, 18432
        WBASE = 4 * TS
        vA0, vA1, vW0, vW1, vW2, vT, vWa, vWb = 64, 65, 66, 67, 68, 70, 71, 69
        a("s_lshr_b32 s48, s32, 1")
        a("s_lshl_b32 s48, s48, 16")
        a("s_and_b32 s49, s32, 1")
        a("s_lshl_b32 s49, s49, 11")
        a("s_add_u32 s48, s48, s49")
        a("v_lshlrev_b32 v20, 4, v2")
        a(f"v_add_u32 {vr(vA0)}, s48, v20")
        a(f"s_mul_i32 s38, s33, {NSTAGE * 262144}")
        a("s_lshl_b32 s48, s34, 12")
        a("s_add_u32 s38, s38, s48")
        a(f"s_add_u32 s38, s38, {A_OFF}")
        for j, vd in ((0, vW0), (1, vW1), (2, vW2)):
            a(f"v_add_u32 v20, {64 * j}, v2")
            div18(a, 21, 22, 20, 23)
            a("v_and_b32 v23, 1, v22")
            a("v_bfe_u32 v24, v22, 1, 1")
            a("v_lshl_or_b32 v23, v23, 1, v24")
            a("v_and_b32 v24, 28, v22")
            a("v_or_b32 v23, v23, v24")
            a("v_cmp_gt_u32 vcc, 16, v22")
            a("s_nop 1")
            a("v_cndmask_b32 v22, v22, v23, vcc")
            a("s_lshl_b32 s48, s32, 3")
            a("v_add_u32 v21, s48, v21")
            a("v_mul_u32_u24 v21, 1152, v21")
            a(f"v_lshl_add_u32 {vr(vd)}, v22, 4, v21")
        a(f"s_mul_i32 s39, s33, {NSTAGE * 64 * 1152}")
        a("s_mul_i32 s48, s35, 288")
        a("s_add_u32 s39, s39, s48")
        a("s_lshl_b32 s40, s32, 11")
        a("s_mul_i32 s41, s32, 2304")
        a(f"s_add_u32 s41, s41, {WBASE}")
        a("v_and_b32 v62, 15, v2")
        a("v_lshrrev_b32 v61, 4, v2")
        a("v_lshrrev_b32 v20, 1, v61")
        a("s_lshl_b32 s48, s37, 1")
        a("v_add_u32 v20, s48, v20")
        a("v_lshlrev_b32 v20, 12, v20")
        a("s_lshl_b32 s48, s36, 5")
        a("v_add_u32 v21, s48, v62")
        a("v_lshl_add_u32 v20, v21, 5, v20")
        a("v_and_b32 v21, 1, v61")
        a(f"v_lshl_add_u32 {vr(vT)}, v21, 4, v20")
        a("v_lshrrev_b32 v20, 5, v2")
        a("v_lshlrev_b32 v20, 4, v20")
        a("v_bfe_u32 v21, v2, 2, 3")
        a("v_add_u32 v20, v20, v21")
        a("s_lshl_b32 s48, s37, 5")
        a("v_add_u32 v20, s48, v20")
        a("v_mul_u32_u24 v20, 288, v20")
        a(f"v_add_u32 v20, {WBASE}, v20")
        a("v_and_b32 v21, 3, v2")
        a(f"v_lshl_add_u32 {vr(vWa)}, v21, 3, v20")
        a("v_and_b32 v22, 1, v2")
        a("v_lshl_add_u32 v20, v22, 4, v20")
        a("v_bfe_u32 v22, v2, 1, 1")
        a(f"v_lshl_add_u32 {vr(vWb)}, v22, 3, v20")
        a("s_mov_b32 s44, 0")
        c = GemmCfg()
        c.TN, c.TM, c.R, c.AHEAD, c.NSTEPS = 9, 2, int(ENV('SKR', '6')), int(ENV('SKA', '5')), NSTAGE
        c.NSW, c.WSLOT, c.NST, c.TSLOT, c.TPER = 4, WS_, 4, TS, 1
        c.TPOS = 0
        c.DMA_EVERY = 2
        c.swap = False
        c.acc = lambda nt, tt: 128 + (nt * 2 + tt) * 4
        c.tfrag = lambda buf, tt: 112 + buf * 8 + tt * 4
        c.wfrag = lambda r_: 200 + r_ * 4
        c.wread = lambda nt: [(vWb if nt == 8 else vWa, nt * 32), (vWb if nt == 8 else vWa, nt * 32 + 8 * 288)]
        c.wadv = lambda nt: [vWa] if nt == 7 else ([vWb] if nt == 8 else [])
        c.tread = lambda q, tt: (vT, tt * 512)
        c.tadv = lambda q: [vT]
        c.s_dA, c.s_dB, c.s_sl, c.s_dmaW, c.s_cnt, c.s_slotW = 50, 51, 52, 53, 45, 54
        c.s_dT, c.s_slT, c.s_dmaT, c.s_slotT = 55, 56, 57, 58

        def dmaW():
            def d0():
                a("s_add_u32 m0, s53, s41")
                a("s_nop 0")
                a(f"buffer_load_dwordx4 {vr(vW0)}, s[20:23], s39 offen lds")

            def d1():
                a("s_add_u32 m0, m0, 1024")
                a("s_nop 0")
                a(f"buffer_load_dwordx4 {vr(vW1)}, s[20:23], s39 offen lds")

            def d2():
                a("s_add_u32 m0, m0, 1024")
                a("s_mov_b64 exec, 0xffff")
                a(f"buffer_load_dwordx4 {vr(vW2)}, s[20:23], s39 offen lds")
                a("s_mov_b64 exec, -1")
            return [d0, d1, d2]
        c.dmaW = dmaW

        def dmaT(h):
            def d0():
                a("s_add_u32 m0, s57, s40")
                a("s_nop 0")
                a(f"buffer_load_dwordx4 {vr(vA0)}, s[16:19], s38 offen lds")

            def d1():
                a(f"buffer_load_dwordx4 {vr(vA0)}, s[16:19], s38 offen offset:1024 lds")
            return [d0, d1]
        c.dmaT = dmaT

        def advW():
            a(f"s_add_u32 s39, s39, {64 * 1152}")
        c.advW = advW

        def advT():
            a("s_add_u32 s38, s38, 262144")
            a("s_add_u32 s44, s44, 1")
            a(f"s_cmp_lt_u32 s44, {NSTAGE}")
            a("s_cselect_b32 s18, s46, 0")
            a("s_cselect_b32 s22, s47, 0")
        c.advT = advT
        if chain_in:
            def peers_in(vl, vd):
                a(f"v_and_b32 v19, 3, v{vl}")
                a(f"v_lshrrev_b32 v{vd}, 2, v{vl}")
                a(f"v_lshl_add_u32 v{vd}, v19, 3, v{vd}")
                a("s_andn2_b32 s48, s2, 31")
                a("s_lshl_b32 s49, s33, 1")
                a("s_add_u32 s48, s48, s49")
                a(f"v_add_u32 v{vd}, s48, v{vd}")
            c.pre_T = lambda: wflag_wait(a, 32, 4 if fuse_ln else 3, 28, name + "_in", 8, peers_in)
        gemm_prologue_and_loop(a, c, name)
        a("s_waitcnt vmcnt(0)")
        a("s_barrier")
        a("s_mul_i32 s48, s32, 9216")
        a("s_xor_b32 s49, s32, 4")
        a("s_mul_i32 s49, s49, 9216")
        a("v_lshlrev_b32 v3, 4, v2")
        a("v_add_u32 v4, s49, v3")
        a("v_add_u32 v3, s48, v3")
        a("s_cmp_eq_u32 s37, 1")
        a(f"s_cbranch_scc1 L_{name}_e1")
        for nt in range(9):
            a(f"ds_write_b128 v3, {vr(c.acc(nt, 1), 4)} offset:{nt * 1024}")
        a(f"s_branch L_{name}_e2")
        a.label(f"L_{name}_e1")
        for nt in range(9):
            a(f"ds_write_b128 v3, {vr(c.acc(nt, 0), 4)} offset:{nt * 1024}")
        for nt in range(9):
            for r_ in range(4):
                a(f"v_mov_b32 {vr(c.acc(nt, 0) + r_)}, {vr(c.acc(nt, 1) + r_)}")
        a.label(f"L_{name}_e2")
        a("s_waitcnt lgkmcnt(0)")
        a("s_barrier")
        for nt in range(9):
            a(f"ds_read_b128 {vr(c.acc(nt, 1), 4)}, v4 offset:{nt * 1024}")
        a(f"s_mul_i32 s48, s33, {2048 * 1280}")
        a("s_lshl_b32 s49, s34, 7")
        a("s_lshl_b32 s50, s36, 5")
        a("s_add_u32 s49, s49, s50")
        a("s_lshl_b32 s50, s37, 4")
        a("s_add_u32 s49, s49, s50")
        a("s_mul_i32 s49, s49, 1280")
        a("s_add_u32 s48, s48, s49")
        a("s_mul_i32 s49, s35, 320")
        a("s_add_u32 s48, s48, s49")
        a(f"s_add_u32 s48, s48, {PART}")
        a("v_mul_u32_u24 v5, 1280, v62")
        a("v_lshl_add_u32 v6, v61, 3, v5")
        a("v_lshl_add_u32 v5, v61, 4, v5")
        for nt in range(9):
            a(f"s_waitcnt lgkmcnt({8 - nt})")
            for r_ in range(4):
                a(f"v_add_f32 {vr(c.acc(nt, 0) + r_)}, {vr(c.acc(nt, 0) + r_)}, {vr(c.acc(nt, 1) + r_)}")
            t = 8 + 4 * (nt // 2) + 2 * (nt % 2)
            a(f"v_cvt_pk_bf16_f32 v{t}, v{c.acc(nt, 0)}, v{c.acc(nt, 0) + 1}")
            a(f"v_cvt_pk_bf16_f32 v{t + 1}, v{c.acc(nt, 0) + 2}, v{c.acc(nt, 0) + 3}")
            if nt % 2 == 1:
                a(f"buffer_store_dwordx4 v[{t - 2}:{t + 1}], v5, s[28:31], s48 offen offset:{(nt // 2) * 64} sc1")
            if nt == 8:
                a(f"buffer_store_dwordx2 v[{t}:{t + 1}], v6, s[28:31], s48 offen offset:256 sc1")
        if fuse_ln is not None:
            a("s_waitcnt vmcnt(0)")
            stamp(a, 3)
            a("s_barrier")
            ph = 0 if fuse_ln else 1
            wflag_set(a, 32, ph, 28, name)

            def peers(vl, vd):
                a(f"v_lshrrev_b32 v19, 2, v{vl}")
                a(f"v_and_b32 v{vd}, 3, v{vl}")
                a(f"v_lshlrev_b32 v{vd}, 1, v{vd}")
                a(f"v_lshl_add_u32 v{vd}, v19, 3, v{vd}")
                a("s_andn2_b32 s48, s2, 31")
                a("s_lshr_b32 s49, s34, 3")
                a("s_add_u32 s48, s48, s49")
                a(f"v_add_u32 v{vd}, s48, v{vd}")
            wflag_wait(a, 32, ph, 28, name, 16, peers)
            stamp(a, 4)
            a("s_lshl_b32 s49, s35, 2")
            a("s_add_u32 s49, s49, s33")
            a("s_lshl_b32 s49, s49, 3")
            a("s_add_u32 s49, s49, s32")
            a("s_lshl_b32 s48, s34, 7")
            a("s_add_u32 s49, s49, s48")
            reduce_body(a, fuse_ln, " sc1", PART, " sc1" if chain_out else "")
            if chain_out:
                a("s_waitcnt vmcnt(0)")
                if STAMPS:
                    stamp(a, 5)
                    stamp_flush(a, 8, 1, 2, 32, s_t=70, kid=kid)
                a("s_barrier")
                wflag_set(a, 32, 2, 28, name + "_out")
                return
            if STAMPS:
                a("s_waitcnt vmcnt(0)")
                stamp(a, 5)
                stamp_flush(a, 8, 1, 2, 32, s_t=70, kid=kid)
        elif STAMPS:
            a("s_waitcnt vmcnt(0)")
            stamp(a, 3)
            stamp(a, 4); stamp(a, 5)
            stamp_flush(a, 8, 1, 2, 32, s_t=70, kid=kid)
        a.label(f"L_{name}_end")
        a("s_endpgm")
        return name, "grid=(256,1,1) block=(512,1,1) lds=139264", 256
    return g


gen_k3 = gen_splitk("k3_oproj_kernel", KA_WO, CTX_OFF, 16, 2)
gen_k6 = gen_splitk("k6_down_kernel", KA_WD, ACT_OFF, 18, 5)
gen_k34 = gen_splitk("k34_kernel", KA_WO, CTX_OFF, 16, 2, fuse_ln=True)
gen_k67 = gen_splitk("k67_kernel", KA_WD, ACT_OFF, 18, 5, fuse_ln=False)


def reduce_body(a, do_ln, LF='', PART=PART_OFF, SF=''):
    if True:
        a("v_lshrrev_b32 v3, 1, v2")
        a("v_lshlrev_b32 v3, 4, v3")
        a("v_and_b32 v4, 1, v2")
        a("v_lshl_add_u32 v3, v4, 2, v3")
        div18(a, 6, 7, 2, 8)
        a("v_mul_u32_u24 v6, 320, v6")
        a("v_lshl_add_u32 v4, v7, 4, v6")
        a("v_add_u32 v8, 64, v2")
        a(f"v_lshlrev_b32 v9, 4, v2")
        a(f"v_add_u32 v9, {3 * 320 + 160}, v9")
        a("v_lshlrev_b32 v5, 1, v3")
        a("s_mul_i32 s50, s49, 1280")
        a(f"s_add_u32 s50, s50, {PART}")
        a("s_mul_i32 s51, s49, 1152")
        a("s_waitcnt lgkmcnt(0)")
        if not LF:
            stamp(a, 0)
        make_srd(a, 24, "s4", "s5", 2048 * 1152)
        make_srd(a, 28, "s12", "s13", WS_BYTES)
        for i in range(80, 120):
            a(f"v_mov_b32 v{i}, 0")
        for ks in range(4):
            b = 88 + 8 * ks
            a(f"buffer_load_dwordx4 v[{b}:{b + 3}], v4, s[28:31], s50 offen{LF}")
            a("s_mov_b64 exec, 0xff")
            a(f"buffer_load_dwordx4 v[{b + 4}:{b + 7}], v9, s[28:31], s50 offen{LF}")
            a("s_mov_b64 exec, -1")
            if ks < 3:
                a(f"s_add_u32 s50, s50, {2048 * 1280}")
        if do_ln:
            rs, so = "s[24:27]", "s51"
        else:
            a(f"s_add_u32 s52, s51, {H_OFF}")
            rs, so = "s[28:31]", "s52"
        a(f"buffer_load_dwordx2 v[80:81], v5, {rs}, {so} offen")
        a(f"buffer_load_dwordx2 v[82:83], v5, {rs}, {so} offen offset:16")
        a("s_mov_b64 exec, 0xff")
        a(f"buffer_load_dwordx2 v[84:85], v5, {rs}, {so} offen offset:1024")
        a(f"buffer_load_dwordx2 v[86:87], v5, {rs}, {so} offen offset:1040")
        a("s_mov_b64 exec, -1")
        a("s_waitcnt vmcnt(0)")
        for ks in range(4):
            for i in range(8):
                a(f"v_lshlrev_b32 v{16 + 16 * ks + 2 * i}, 16, v{88 + 8 * ks + i}")
                a(f"v_and_b32 v{17 + 16 * ks + 2 * i}, 0xffff0000, v{88 + 8 * ks + i}")
        for i in range(16):
            a(f"v_add_f32 v{16 + i}, v{16 + i}, v{32 + i}")
            a(f"v_add_f32 v{48 + i}, v{48 + i}, v{64 + i}")
        for i in range(16):
            a(f"v_add_f32 v{16 + i}, v{16 + i}, v{48 + i}")
        for i in range(8):
            a(f"v_cvt_pk_bf16_f32 v6, v{16 + 2 * i}, v{17 + 2 * i}")
            a(f"v_lshlrev_b32 v{16 + 2 * i}, 16, v6")
            a(f"v_and_b32 v{17 + 2 * i}, 0xffff0000, v6")
            a(f"v_lshlrev_b32 v6, 16, v{80 + i}")
            a(f"v_and_b32 v7, 0xffff0000, v{80 + i}")
            a(f"v_add_f32 v{16 + 2 * i}, v{16 + 2 * i}, v6")
            a(f"v_add_f32 v{17 + 2 * i}, v{17 + 2 * i}, v7")
            a(f"v_cvt_pk_bf16_f32 v{80 + i}, v{16 + 2 * i}, v{17 + 2 * i}")
        if do_ln:
            a(f"s_add_u32 s52, s51, {H_OFF}")
            rs, so = "s[28:31]", "s52"
        else:
            rs, so = "s[24:27]", "s51"
        a(f"buffer_store_dwordx2 v[80:81], v5, {rs}, {so} offen")
        a(f"buffer_store_dwordx2 v[82:83], v5, {rs}, {so} offen offset:16")
        a("s_mov_b64 exec, 0xff")
        a(f"buffer_store_dwordx2 v[84:85], v5, {rs}, {so} offen offset:1024")
        a(f"buffer_store_dwordx2 v[86:87], v5, {rs}, {so} offen offset:1040")
        a("s_mov_b64 exec, -1")
        if do_ln:
            for i in range(8):
                a(f"v_lshlrev_b32 v{20 + 2 * i}, 16, v{80 + i}")
                a(f"v_and_b32 v{21 + 2 * i}, 0xffff0000, v{80 + i}")
            a("v_add_f32 v36, v20, v21")
            for i in range(22, 36):
                a(f"v_add_f32 v36, v36, v{i}")
            wave_sum(a, 36, 37, 38)
            a(f"v_mul_f32 v36, {1.0 / 576.0!r}, v36")
            a("v_mov_b32 v39, 0")
            for i in range(20, 28):
                a(f"v_sub_f32 v37, v{i}, v36")
                a("v_fmac_f32 v39, v37, v37")
            a("s_mov_b64 exec, 0xff")
            for i in range(28, 36):
                a(f"v_sub_f32 v37, v{i}, v36")
                a("v_fmac_f32 v39, v37, v37")
            a("s_mov_b64 exec, -1")
            wave_sum(a, 39, 37, 38)
            a(f"v_mul_f32 v39, {1.0 / 576.0!r}, v39")
            round_bf16(a, 39, 37)
            a("v_add_f32 v39, 0x3727c5ac, v39")
            round_bf16(a, 39, 37)
            a("v_sqrt_f32 v39, v39")
            a("s_nop 0")
            round_bf16(a, 39, 37)
            a("v_rcp_f32 v39, v39")
            round_bf16(a, 36, 37)
            for i in range(8):
                a(f"v_sub_f32 v{20 + 2 * i}, v{20 + 2 * i}, v36")
                a(f"v_sub_f32 v{21 + 2 * i}, v{21 + 2 * i}, v36")
                a(f"v_cvt_pk_bf16_f32 v37, v{20 + 2 * i}, v{21 + 2 * i}")
                a(f"v_lshlrev_b32 v{20 + 2 * i}, 16, v37")
                a(f"v_and_b32 v{21 + 2 * i}, 0xffff0000, v37")
                a(f"v_mul_f32 v{20 + 2 * i}, v{20 + 2 * i}, v39")
                a(f"v_mul_f32 v{21 + 2 * i}, v{21 + 2 * i}, v39")
                a(f"v_cvt_pk_bf16_f32 v{8 + i}, v{20 + 2 * i}, v{21 + 2 * i}")
            a("v_lshrrev_b32 v37, 2, v2")
            a("v_lshlrev_b32 v37, 17, v37")
            a("v_and_b32 v38, 3, v2")
            a("v_lshl_add_u32 v37, v38, 4, v37")
            a("s_lshl_b32 s50, s49, 6")
            a(f"s_add_u32 s50, s50, {HN_OFF}")
            a(f"buffer_store_dwordx4 v[8:11], v37, s[28:31], s50 offen{SF}")
            a(f"s_add_u32 s50, s50, {16 * 131072}")
            a("s_mov_b64 exec, 0xff")
            a(f"buffer_store_dwordx4 v[12:15], v37, s[28:31], s50 offen{SF}")
            a("s_mov_b64 exec, -1")


def gen_reduce(name, do_ln):
    def g(a):
        kernel_header(a, name)
        a("s_cmp_ge_u32 s2, 256")
        a(f"s_cbranch_scc1 L_{name}_end")
        a(f"s_load_dwordx2 s[4:5], s[0:1], {KA_X if do_ln else KA_OUT}")
        a(f"s_load_dwordx2 s[12:13], s[0:1], {KA_WS}")
        a("v_lshrrev_b32 v1, 6, v0")
        a("v_and_b32 v2, 63, v0")
        a("s_nop 0")
        a("v_readfirstlane_b32 s32, v1")
        a("s_lshl_b32 s49, s2, 3")
        a("s_add_u32 s49, s49, s32")
        reduce_body(a, do_ln)
        if STAMPS:
            a("s_waitcnt vmcnt(0)")
            stamp(a, 1)
            stamp_flush(a, 2, 1, 2, 32, s_t=70, kid=(3 if do_ln else 6))
        a.label(f"L_{name}_end")
        a("s_endpgm")
        return name, "grid=(256,1,1) block=(512,1,1) lds=16384", 120
    return g


gen_k4 = gen_reduce("k4_ln2_kernel", True)
gen_k7 = gen_reduce("k7_out_kernel", False)


def gen_k5(a, chain=False):
    name = "k5_ffn1_kernel"
    STF = " sc1" if chain else globals()["STF"]
    if not chain:
        kernel_header(a, name)
        a("s_cmp_ge_u32 s2, 256")
        a(f"s_cbranch_scc1 L_{name}_end")
    a(f"s_load_dwordx4 s[8:11], s[0:1], {KA_WG}")
    a(f"s_load_dwordx2 s[12:13], s[0:1], {KA_WS}")
    a("v_lshrrev_b32 v1, 6, v0")
    a("v_and_b32 v2, 63, v0")
    a("s_nop 0")
    a("v_readfirstlane_b32 s32, v1")
    a("s_and_b32 s35, s2, 7")
    a("s_lshl_b32 s35, s35, 2")
    a("s_lshr_b32 s48, s2, 3")
    a("s_and_b32 s48, s48, 3")
    a("s_add_u32 s35, s35, s48")
    a("s_lshr_b32 s34, s2, 5")
    a("s_and_b32 s36, s32, 3")
    a("s_lshr_b32 s37, s32, 2")
    a("s_waitcnt lgkmcnt(0)")
    stamp(a, 0)
    a("s_cmp_eq_u32 s37, 1")
    a("s_cselect_b32 s8, s10, s8")
    a("s_cselect_b32 s9, s11, s9")
    make_srd(a, 20, "s8", "s9", 576 * 9216)
    a(f"s_mov_b32 s47, {576 * 9216}")
    make_srd(a, 16, "s12", "s13", WS_BYTES)
    a(f"s_mov_b32 s46, {WS_BYTES}")
    make_srd(a, 28, "s12", "s13", WS_BYTES)
    TS, WS_ = 16384, 18432
    WBASE = 4 * TS
    vA0, vW0, vW1, vW2, vT, vWa, vWb = 64, 66, 67, 68, 69, 70, 71
    a("s_sub_u32 s59, 15, s34")
    a("s_cmp_eq_u32 s37, 1")
    a("s_cselect_b32 s59, s59, s34")
    a("s_lshl_b32 s59, s59, 7")
    a("s_lshl_b32 s48, s36, 5")
    a("s_add_u32 s59, s59, s48")
    a("v_lshrrev_b32 v20, 2, v2")
    a("v_add_u32 v20, s59, v20")
    a("v_lshlrev_b32 v20, 6, v20")
    a("v_lshrrev_b32 v21, 4, v2")
    a("v_sub_u32 v21, 0, v21")
    a("v_and_b32 v21, 3, v21")
    a("v_and_b32 v22, 3, v2")
    a("v_xor_b32 v21, v21, v22")
    a(f"v_lshl_add_u32 {vr(vA0)}, v21, 4, v20")
    a(f"s_mov_b32 s38, {HN_OFF}")
    for j, vd in ((0, vW0), (1, vW1), (2, vW2)):
        a(f"v_add_u32 v20, {64 * j}, v2")
        div18(a, 21, 22, 20, 23)
        a("v_and_b32 v23, 1, v22")
        a("v_bfe_u32 v24, v22, 1, 1")
        a("v_lshl_or_b32 v23, v23, 1, v24")
        a("v_and_b32 v24, 28, v22")
        a("v_or_b32 v23, v23, v24")
        a("v_cmp_gt_u32 vcc, 16, v22")
        a("s_nop 1")
        a("v_cndmask_b32 v22, v22, v23, vcc")
        a("s_lshl_b32 s48, s36, 3")
        a("v_add_u32 v21, s48, v21")
        a("v_mul_u32_u24 v21, 9216, v21")
        a(f"v_lshl_add_u32 {vr(vd)}, v22, 4, v21")
    a("s_mul_i32 s39, s35, 288")
    a("s_lshl_b32 s40, s32, 11")
    a("s_mul_i32 s41, s32, 2304")
    a(f"s_add_u32 s41, s41, {WBASE}")
    a("v_and_b32 v62, 15, v2")
    a("v_lshrrev_b32 v61, 4, v2")
    a("v_lshrrev_b32 v20, 2, v62")
    a("v_sub_u32 v20, 0, v20")
    a("v_and_b32 v20, 3, v20")
    a("v_xor_b32 v20, v20, v61")
    a("s_lshl_b32 s48, s32, 5")
    a("v_add_u32 v21, s48, v62")
    a("v_lshlrev_b32 v21, 6, v21")
    a(f"v_lshl_add_u32 {vr(vT)}, v20, 4, v21")
    a("v_lshrrev_b32 v20, 5, v2")
    a("v_lshlrev_b32 v20, 4, v20")
    a("v_bfe_u32 v21, v2, 2, 3")
    a("v_add_u32 v20, v20, v21")
    a("v_mul_u32_u24 v20, 288, v20")
    a(f"v_add_u32 v20, {WBASE}, v20")
    a("v_and_b32 v21, 3, v2")
    a(f"v_lshl_add_u32 {vr(vWa)}, v21, 3, v20")
    a("v_and_b32 v22, 1, v2")
    a("v_lshl_add_u32 v20, v22, 4, v20")
    a("v_bfe_u32 v22, v2, 1, 1")
    a(f"v_lshl_add_u32 {vr(vWb)}, v22, 3, v20")
    a("s_mov_b32 s44, 0")
    c = GemmCfg()
    c.TN, c.TM, c.R, c.AHEAD, c.NSTEPS = 18, 2, 6, 5, 18
    c.DFRAC = float(ENV("DF5", "0.5"))
    c.NSW, c.WSLOT, c.NST, c.TSLOT, c.TPER = 4, WS_, 4, TS, 1
    c.TPOS = 0
    c.DMA_EVERY = 2
    c.swap = False
    c.acc = lambda nt, tt: 112 + (nt * 2 + tt) * 4
    c.tfrag = lambda buf, tt: 96 + buf * 8 + tt * 4
    c.wfrag = lambda r_: 72 + r_ * 4

    def wread(nt):
        pl, u = nt // 9, nt % 9
        r_ = vWb if u == 8 else vWa
        return [(r_, pl * 9216 + u * 32), (r_, pl * 9216 + u * 32 + 8 * 288)]
    c.wread = wread
    c.wadv = lambda nt: [vWa] if nt == 16 else ([vWb] if nt == 17 else [])
    c.tread = lambda q, tt: (vT, tt * 1024)
    c.tadv = lambda q: [vT]
    c.s_dA, c.s_dB, c.s_sl, c.s_dmaW, c.s_cnt, c.s_slotW = 50, 51, 52, 53, 45, 54
    c.s_dT, c.s_slT, c.s_dmaT, c.s_slotT = 55, 56, 57, 58

    def dmaW():
        def d0():
            a("s_add_u32 m0, s53, s41")
            a("s_nop 0")
            a(f"buffer_load_dwordx4 {vr(vW0)}, s[20:23], s39 offen lds")

        def d1():
            a("s_add_u32 m0, m0, 1024")
            a("s_nop 0")
            a(f"buffer_load_dwordx4 {vr(vW1)}, s[20:23], s39 offen lds")

        def d2():
            a("s_add_u32 m0, m0, 1024")
            a("s_mov_b64 exec, 0xffff")
            a(f"buffer_load_dwordx4 {vr(vW2)}, s[20:23], s39 offen lds")
            a("s_mov_b64 exec, -1")
        return [d0, d1, d2]
    c.dmaW = dmaW

    def dmaT(h):
        def d0():
            a("s_add_u32 m0, s57, s40")
            a("s_nop 0")
            a(f"buffer_load_dwordx4 {vr(vA0)}, s[16:19], s38 offen lds")

        def d1():
            a(f"buffer_load_dwordx4 {vr(vA0)}, s[16:19], s38 offen offset:1024 lds")
        return [d0, d1]
    c.dmaT = dmaT

    def advW():
        a(f"s_add_u32 s39, s39, {32 * 9216}")
    c.advW = advW

    def advT():
        a("s_add_u32 s38, s38, 131072")
        a("s_add_u32 s44, s44, 1")
        a(f"s_cmp_lt_u32 s44, {c.NSTEPS}")
        a("s_cselect_b32 s18, s46, 0")
        a("s_cselect_b32 s22, s47, 0")
    c.advT = advT
    if chain:
        def peers_in(vl, vd):
            a("s_andn2_b32 s48, s2, 31")
            a(f"v_add_u32 v{vd}, s48, v{vl}")
        c.pre_T = lambda: wflag_wait(a, 32, 2, 28, name + "_in", 32, peers_in)
    gemm_prologue_and_loop(a, c, name)
    a(f"s_mov_b32 s48, {-math.log2(math.e)!r}")

    def act4(g0, u0):
        for r_ in range(4):
            a(f"v_mul_f32 v{20 + r_}, s48, v{g0 + r_}")
        for r_ in range(4):
            a(f"v_exp_f32 v{20 + r_}, v{20 + r_}")
        for r_ in range(4):
            a(f"v_add_f32 v{20 + r_}, 1.0, v{20 + r_}")
        for r_ in range(4):
            a(f"v_rcp_f32 v{20 + r_}, v{20 + r_}")
        for r_ in range(4):
            a(f"v_mul_f32 v{g0 + r_}, v{g0 + r_}, v{u0 + r_}")
        for r_ in range(4):
            a(f"v_mul_f32 v{g0 + r_}, v{g0 + r_}, v{20 + r_}")
    a("s_lshl_b32 s49, s59, 5")
    a("s_mul_i32 s50, s35, 9")
    a("s_lshl_b32 s50, s50, 16")
    a("s_add_u32 s49, s49, s50")
    a(f"s_add_u32 s49, s49, {ACT_OFF}")
    a("v_lshlrev_b32 v3, 5, v62")
    a("v_lshrrev_b32 v4, 1, v61")
    a("v_and_b32 v5, 1, v61")
    a("v_lshl_add_u32 v6, v5, 4, v3")
    a("v_lshl_add_u32 v6, v4, 16, v6")
    a("v_lshl_add_u32 v7, v61, 3, v3")
    k = 0
    for P_ in range(4):
        for tt in range(2):
            t = 32 + (k % 4) * 4
            k += 1
            for T_ in range(2):
                g0, u0 = c.acc(2 * P_ + T_, tt), c.acc(9 + 2 * P_ + T_, tt)
                act4(g0, u0)
                a(f"v_cvt_pk_bf16_f32 v{t + 2 * T_}, v{g0}, v{g0 + 1}")
                a(f"v_cvt_pk_bf16_f32 v{t + 2 * T_ + 1}, v{g0 + 2}, v{g0 + 3}")
            a(f"buffer_store_dwordx4 v[{t}:{t + 3}], v6, s[28:31], s49 offen offset:{tt * 512}{STF}")
        a("s_add_u32 s49, s49, 131072")
    for tt in range(2):
        t = 32 + (k % 4) * 4
        k += 1
        g0, u0 = c.acc(8, tt), c.acc(17, tt)
        act4(g0, u0)
        a(f"v_cvt_pk_bf16_f32 v{t}, v{g0}, v{g0 + 1}")
        a(f"v_cvt_pk_bf16_f32 v{t + 1}, v{g0 + 2}, v{g0 + 3}")
        a(f"buffer_store_dwordx2 v[{t}:{t + 1}], v7, s[28:31], s49 offen offset:{tt * 512}{STF}")
    if STAMPS:
        a("s_waitcnt vmcnt(0)")
        stamp(a, 3)
        stamp(a, 4); stamp(a, 5)
        stamp_flush(a, 8, 1, 2, 32, s_t=70, kid=4)
    if chain:
        a("s_waitcnt vmcnt(0)")
        a("s_barrier")
        wflag_set(a, 32, 3, 28, name + "_out")
        return
    a.label(f"L_{name}_end")
    a("s_endpgm")
    return name, "grid=(256,1,1) block=(512,1,1) lds=139264", 256


def gen_k37(a):
    gen_splitk("k37_kernel", KA_WO, CTX_OFF, 16, 2, fuse_ln=True, chain_out=True, endlabel="L_k67c_end")(a)
    gen_k5(a, chain=True)
    gen_splitk("k67c", KA_WD, ACT_OFF, 18, 5, fuse_ln=False, chain_in=True)(a)
    return "k37_kernel", "grid=(256,1,1) block=(512,1,1) lds=139264", 256


def gen_k27(a):
    from gen_attn import gen_k2
    ool = gen_k2(a, chain=True)
    gen_splitk("k34c", KA_WO, CTX_OFF, 16, 2, fuse_ln=True, chain_in=True, chain_out=True)(a)
    gen_k5(a, chain=True)
    gen_splitk("k67c", KA_WD, ACT_OFF, 18, 5, fuse_ln=False, chain_in=True)(a)
    a.L += ool.L
    return "k27_kernel", "grid=(256,1,1) block=(512,1,1) lds=163840", 256


def gen_mega(a):
    from gen_attn import gen_k2
    stores = gen_k1(a, fused="mega_kernel")
    ool = gen_k2(a, k1_stores=stores, chain=True)
    gen_splitk("k34c", KA_WO, CTX_OFF, 16, 2, fuse_ln=True, chain_in=True, chain_out=True)(a)
    gen_k5(a, chain=True)
    gen_splitk("k67c", KA_WD, ACT_OFF, 18, 5, fuse_ln=False, chain_in=True)(a)
    a.L += ool.L
    a.label("L_code_end")
    return "mega_kernel", "grid=(256,1,1) block=(512,1,1) lds=163840", 256
```

```python
from gen_common import *


class GemmCfg:
    pass


ENV = os.environ.get


def gemm_prologue_and_loop(a, c, tag):
    TN, TM, R, AH = c.TN, c.TM, c.R, c.AHEAD
    NSW, WSLOT, NST, TSLOT, TPER = c.NSW, c.WSLOT, c.NST, c.TSLOT, c.TPER
    lg = Lgkm()

    def ring_adv(sreg, slot, ns):
        a(f"s_add_u32 {sr(sreg)}, {sr(sreg)}, {slot}")
        a(f"s_cmp_eq_u32 {sr(sreg)}, {ns * slot}")
        a(f"s_cselect_b32 {sr(sreg)}, 0, {sr(sreg)}")

    def finW():
        c.advW()
        ring_adv(c.s_dmaW, WSLOT, NSW)

    def finT():
        c.advT()
        ring_adv(c.s_dmaT, TSLOT, NST)

    def rd_w(nt, ring, dreg):
        for j, (ar, imm) in enumerate(c.wread(nt)):
            if ENV("NOLDS"):
                continue
            a(f"ds_read_b64_tr_b16 {vr(c.wfrag(ring) + 2 * j, 2)}, {vr(ar)} offset:{imm}")
            lg.issue(("W", ring))
        for r_ in c.wadv(nt):
            a(f"v_add_u32 {vr(r_)}, {sr(dreg)}, {vr(r_)}")

    def rd_t(buf, tt, dreg):
        ar, imm = c.tread(buf, tt)
        if not ENV("NOLDS"):
            a(f"ds_read_b128 {vr(c.tfrag(buf, tt), 4)}, {vr(ar)} offset:{imm}")
            lg.issue(("T", buf))
        if tt == TM - 1:
            for r_ in c.tadv(buf):
                a(f"v_add_u32 {vr(r_)}, {sr(dreg)}, {vr(r_)}")

    a(f"s_mov_b32 {sr(c.s_dmaW)}, 0")
    a(f"s_mov_b32 {sr(c.s_dmaT)}, 0")
    stamp(a, 7)
    DW = len(c.dmaW())
    DT = len(c.dmaT(0))
    issued = []
    mid_done = False
    if TPER == 1:
        assert NST == NSW
        if getattr(c, "pre_T", None):
            for s in range(NSW - 1):
                for f in c.dmaW():
                    f(); issued.append(("W", s))
                finW()
            c.pre_T()
            for s in range(NSW - 1):
                for f in c.dmaT(0):
                    f(); issued.append(("T", 0 if s < 2 else s))
                finT()
        else:
            for s in range(NSW - 1):
                for f in c.dmaW():
                    f(); issued.append(("W", s))
                finW()
                for f in c.dmaT(0):
                    f(); issued.append(("T", s))
                finT()
        VM_LOOP = (NSW - 3) * (DW + DT)
    else:
        tq = [(t, h) for t in range(NST - 1) for h in range(2)] + [(NST - 1, 0)]
        for s in range(NSW - 1):
            for f in c.dmaW():
                f(); issued.append(("W", s))
            finW()
            n_t = 2 if len(tq) > (NSW - 1 - s) else 1
            for _ in range(n_t):
                if tq:
                    t, h = tq.pop(0)
                    for f in c.dmaT(h):
                        f(); issued.append(("T", t))
                    if h == 1:
                        finT()
            if s == int(ENV("MIDAT", "99")) and getattr(c, "mid", None):
                c.mid(len(issued))
                mid_done = True
        assert not tq
        VM_LOOP = (NSW - 3) * (DW + DT) + DT
        if getattr(c, "extra", None):
            VM_LOOP += (NSW - 3) + 1
            c.extra()
            issued.append(("X", 99))
    if getattr(c, "mid", None) and not mid_done:
        c.mid(len(issued))
    for nt in range(TN):
        for tt in range(TM):
            for r_ in range(4):
                a(f"v_mov_b32 {vr(c.acc(nt, tt) + r_)}, 0")
    a(f"s_mov_b32 {sr(c.s_dB)}, {WSLOT}")
    a(f"s_mov_b32 {sr(c.s_slotW)}, {WSLOT}")
    a(f"s_mov_b32 {sr(c.s_sl)}, 0")
    a(f"s_mov_b32 {sr(c.s_dT)}, {TSLOT}")
    a(f"s_mov_b32 {sr(c.s_slotT)}, {TSLOT}")
    a(f"s_mov_b32 {sr(c.s_slT)}, 0")
    stamp(a, 6)
    last0 = max(i for i, x in enumerate(issued) if x[1] == 0)
    a(f"s_waitcnt vmcnt({len(issued) - 1 - last0})")
    a("s_barrier")
    stamp(a, 1)
    if getattr(c, "post_bar", None):
        c.post_bar(tag)
    TPOS = c.TPOS
    order = []
    for n in range(TN):
        if n + AH >= TN:
            order.append(("W", n + AH - TN))
        if 0 <= n - TPOS < TM:
            order.append(("T", n - TPOS))
    for kind, i in order:
        if kind == "W":
            rd_w(i, i % R, c.s_dB)
        else:
            rd_t(0, i, c.s_dT)
    q0 = list(lg.q)
    a(f"s_mov_b32 {sr(c.s_cnt)}, {c.NSTEPS // 2}")
    if ENV("GPRIO"):
        a("s_cmp_ge_u32 s32, 4")
        a(f"s_cbranch_scc{ENV('GPRIO')} L_{tag}_loop")
        a("s_setprio 1")
    a.label(f"L_{tag}_loop")
    for p in range(2):
        a(f"s_waitcnt vmcnt({VM_LOOP})")
        if not ENV("NOBAR"):
            a("s_barrier")
        if p == 0 and getattr(c, "inloop", None):
            c.inloop(tag)
        a(f"s_mov_b32 {sr(c.s_dA)}, {sr(c.s_dB)}")
        a(f"s_add_u32 {sr(c.s_sl)}, {sr(c.s_sl)}, 1")
        a(f"s_cmp_eq_u32 {sr(c.s_sl)}, {NSW}")
        a(f"s_cselect_b32 {sr(c.s_sl)}, 0, {sr(c.s_sl)}")
        a(f"s_cmp_eq_u32 {sr(c.s_sl)}, {NSW - 1}")
        a(f"s_cselect_b32 {sr(c.s_dB)}, {(-(NSW - 1) * WSLOT) & 0xffffffff}, {sr(c.s_slotW)}")
        if TPER == 1 or p == 1:
            a(f"s_add_u32 {sr(c.s_slT)}, {sr(c.s_slT)}, 1")
            a(f"s_cmp_eq_u32 {sr(c.s_slT)}, {NST}")
            a(f"s_cselect_b32 {sr(c.s_slT)}, 0, {sr(c.s_slT)}")
            a(f"s_cmp_eq_u32 {sr(c.s_slT)}, {NST - 1}")
            a(f"s_cselect_b32 {sr(c.s_dT)}, {(-(NST - 1) * TSLOT) & 0xffffffff}, {sr(c.s_slotT)}")
        h = 0 if TPER == 1 else (1 - p)
        dmas = c.dmaW() + [finW] + c.dmaT(h) + ([finT] if (TPER == 1 or h == 1) else [])
        if getattr(c, "extra", None):
            dmas.append(c.extra)
        if ENV("NODMA"):
            dmas = []
        allp = [(n, tt) for n in range(TN) for tt in range(TM)]
        nd = DW + DT + (1 if getattr(c, "extra", None) else 0)
        frac = float(ENV("DFRAC", str(getattr(c, "DFRAC", 0.8))))
        slots = [allp[int(j * len(allp) * frac / nd)] for j in range(nd)]
        k = 0
        for n in range(TN):
            gi = p * TN + n
            nt2 = n + AH
            if nt2 < TN:
                rd_w(nt2, (gi + AH) % R, c.s_dA)
            else:
                rd_w(nt2 - TN, (gi + AH) % R, c.s_dB)
            if 0 <= n - TPOS < TM:
                rd_t(p ^ 1, n - TPOS, c.s_dT)
            need = [("W", gi % R)]
            if n == 0:
                need.append(("T", p))
            lg.need(a, need)
            for tt in range(TM):
                w_, t_ = vr(c.wfrag(gi % R), 4), vr(c.tfrag(p, tt), 4)
                ac = vr(c.acc(n, tt), 4)
                if c.swap:
                    a(f"v_mfma_f32_16x16x32_bf16 {ac}, {t_}, {w_}, {ac}")
                else:
                    a(f"v_mfma_f32_16x16x32_bf16 {ac}, {w_}, {t_}, {ac}")
                if (n, tt) in slots and dmas:
                    f = dmas.pop(0)
                    f()
                    while dmas and dmas[0] in (finW, finT):
                        dmas.pop(0)()
        assert not dmas
    assert lg.q == q0[len(q0) - len(lg.q):], (lg.q, q0)
    a(f"s_sub_u32 {sr(c.s_cnt)}, {sr(c.s_cnt)}, 1")
    a(f"s_cmp_lg_u32 {sr(c.s_cnt)}, 0")
    a(f"s_cbranch_scc1 L_{tag}_loop")
    a("s_waitcnt lgkmcnt(0)")
    if ENV("GPRIO"):
        a("s_setprio 0")
    a("s_nop 7")
    a("s_nop 7")
    stamp(a, 2)


def gen_k1(a, fused=False):
    name = fused if fused else "k1_kv_kernel"
    STF = " sc1" if fused else globals()["STF"]
    PFMODE = ENV("PFMODE", "step")
    KVF = {"sc1": " sc1", "nt": " nt", "plain": ""}[ENV("KVF", "sc1")] + ENV("KVX", "")
    kernel_header(a, name)
    a("s_cmp_ge_u32 s2, 256")
    a("s_cbranch_scc1 L_k67c_end" if fused else "s_cbranch_scc1 L_k1_end")
    if fused:
        dbg_setup(a)
    a(f"s_load_dwordx4 s[4:7], s[0:1], {KA_X}")
    a(f"s_load_dwordx4 s[8:11], s[0:1], {KA_WUK}")
    a(f"s_load_dwordx2 s[12:13], s[0:1], {KA_WS}")
    a(f"s_load_dwordx2 s[14:15], s[0:1], {KA_WQ}")
    a("v_lshrrev_b32 v1, 6, v0")
    a("v_and_b32 v2, 63, v0")
    a("s_nop 0")
    a("v_readfirstlane_b32 s32, v1")
    a("s_and_b32 s34, s2, 7")
    a("s_lshl_b32 s34, s34, 2")
    a("s_lshr_b32 s48, s2, 3")
    a("s_and_b32 s48, s48, 3")
    a("s_add_u32 s34, s34, s48")
    a("s_lshr_b32 s33, s2, 5")
    a("s_lshr_b32 s35, s32, 1")
    a("s_and_b32 s36, s32, 1")
    a("s_lshl_b32 s40, s32, 11")
    a("s_waitcnt lgkmcnt(0)")
    stamp(a, 0)
    a("s_lshl_b32 s48, s33, 18")
    a("s_add_u32 s6, s6, s48")
    a("s_addc_u32 s7, s7, 0")
    make_srd(a, 16, "s6", "s7", 256 * 1024)
    a(f"s_mov_b32 s46, {256 * 1024}")
    a("s_cmp_ge_u32 s34, 16")
    a("s_cselect_b32 s8, s10, s8")
    a("s_cselect_b32 s9, s11, s9")
    a("s_and_b32 s48, s34, 15")
    a("s_lshl_b32 s48, s48, 9")
    a("s_add_u32 s8, s8, s48")
    a("s_addc_u32 s9, s9, 0")
    a(f"s_sub_u32 s47, {512 * 8192}, s48")
    make_srd(a, 20, "s8", "s9", "s47")
    make_srd(a, 24, "s4", "s5", 2048 * 1152)
    make_srd(a, 28, "s12", "s13", WS_BYTES)
    if fused:
        dbg_srd(a)
    if fused:
        wflag_zero_and_count(a, 32, 28)
    else:
        wflag_zero(a, 32, 28)
    a("s_lshl_b32 s49, s2, 3")
    a("s_add_u32 s49, s49, s32")
    a("s_mul_i32 s50, s49, 1152")
    a("v_lshlrev_b32 v3, 4, v2")
    for i in range(8, 12):
        a(f"v_mov_b32 v{i}, 0")
    a("buffer_load_dwordx4 v[4:7], v3, s[24:27], s50 offen")
    a("s_mov_b64 exec, 0xff")
    a("buffer_load_dwordx4 v[8:11], v3, s[24:27], s50 offen offset:1024")
    a("s_mov_b64 exec, -1")
    vA = 56
    vW0, vW1 = 66, 67
    vT0, vT1 = 70, 71
    vWa = 72
    WBASE = 3 * 32768
    a("v_lshrrev_b32 v20, 3, v2")
    a("s_lshl_b32 s48, s32, 5")
    a("v_add_u32 v20, s48, v20")
    a("v_lshlrev_b32 v20, 10, v20")
    a("v_lshrrev_b32 v21, 5, v2")
    a("v_and_b32 v22, 7, v2")
    a("v_bfe_u32 v24, v2, 4, 1")
    a("v_lshlrev_b32 v24, 2, v24")
    a("v_xor_b32 v22, v22, v24")
    for j in range(4):
        a(f"v_sub_u32 v23, {(-2 * (j >> 1)) & 3}, v21")
        a("v_and_b32 v23, 3, v23")
        a("v_xor_b32 v23, v23, v22")
        a("v_lshl_add_u32 v23, v23, 4, v20")
        a(f"v_add_u32 {vr(vA + j)}, {j * 8 * 1024}, v23")
    a("v_lshrrev_b32 v20, 5, v2")
    a("v_bfe_u32 v21, v2, 1, 4")
    a("v_and_b32 v22, 1, v2")
    a("s_and_b32 s48, s35, 1")
    a("s_lshl_b32 s48, s48, 2")
    a("s_lshl_b32 s51, s32, 2")
    for j, vd in ((0, vW0), (1, vW1)):
        a(f"v_add_u32 v23, {2 * j}, v20")
        a("v_or_b32 v24, s48, v23")
        a("v_xor_b32 v24, v24, v21")
        a("v_lshrrev_b32 v25, 1, v24")
        a("v_lshlrev_b32 v25, 2, v25")
        a("v_and_b32 v24, 1, v24")
        a("v_add_u32 v25, v25, v24")
        a("v_lshl_add_u32 v25, v22, 1, v25")
        a("v_add_u32 v23, s51, v23")
        a("v_lshlrev_b32 v23, 13, v23")
        a(f"v_lshl_add_u32 {vr(vd)}, v25, 4, v23")
    a("v_and_b32 v62, 15, v2")
    a("v_lshrrev_b32 v61, 4, v2")
    a("v_bfe_u32 v20, v2, 3, 1")
    a("v_lshlrev_b32 v20, 4, v20")
    a("v_and_b32 v21, 7, v2")
    a("v_add_u32 v60, v20, v21")
    a("v_lshrrev_b32 v20, 2, v62")
    a("v_sub_u32 v20, 0, v20")
    a("v_and_b32 v20, 3, v20")
    a("v_xor_b32 v20, v20, v61")
    a("v_bfe_u32 v21, v2, 1, 1")
    a("v_lshl_or_b32 v20, v21, 2, v20")
    a("s_lshl_b32 s48, s35, 6")
    a("v_add_u32 v21, s48, v60")
    a("v_lshlrev_b32 v21, 7, v21")
    a(f"v_lshl_add_u32 {vr(vT0)}, v20, 4, v21")
    a(f"v_xor_b32 {vr(vT1)}, 64, {vr(vT0)}")
    a("v_bfe_u32 v20, v2, 2, 2")
    a("v_and_b32 v21, 1, v61")
    a("v_lshl_or_b32 v21, v21, 2, v20")
    a("v_lshl_add_u32 v22, v61, 3, v20")
    a("v_lshlrev_b32 v22, 9, v22")
    a("v_and_b32 v23, 3, v2")
    a("v_lshl_add_u32 v22, v23, 3, v22")
    a("s_lshl_b32 s48, s36, 8")
    a(f"s_add_u32 s48, s48, {WBASE}")
    a("v_add_u32 v22, s48, v22")
    for nt in range(8):
        a(f"v_xor_b32 v23, {nt}, v21")
        a(f"v_lshl_add_u32 {vr(vWa + nt)}, v23, 5, v22")
    a("s_mov_b32 s37, 0")
    a("s_mov_b32 s38, 0")

    a("s_mov_b32 s44, 0")
    a("s_mov_b32 s53, 0")
    a("s_lshl_b32 s54, s32, 12")
    a(f"s_add_u32 s40, s40, {WBASE}")
    c = GemmCfg()
    c.TN, c.TM, c.R, c.AHEAD, c.NSTEPS = 8, 4, 4, 3, 16
    c.DFRAC = float(ENV("DF1", "0.5"))
    c.NSW, c.WSLOT, c.NST, c.TSLOT, c.TPER = 4, 16384, 3, 32768, 2
    c.TPOS = 0
    c.DMA_EVERY = 4
    c.acc = lambda nt, tt: 128 + (nt * 4 + tt) * 4
    c.tfrag = lambda buf, tt: 96 + buf * 16 + tt * 4
    c.wfrag = lambda r_: 80 + r_ * 4
    c.wread = lambda nt: [(vWa + nt, 0), (vWa + nt, 2048)]
    c.wadv = lambda nt: [vWa + nt]
    c.tread = lambda q, tt: ((vT0, vT1)[q], (32 * (tt >> 1) + 8 * (tt & 1)) * 128)
    c.tadv = lambda q: [(vT0, vT1)[q]]
    c.s_dA, c.s_dB, c.s_sl, c.s_dmaW, c.s_cnt, c.s_slotW = 41, 42, 43, 39, 45, 52
    c.s_dT, c.s_slT, c.s_dmaT, c.s_slotT = 55, 56, 57, 58

    def dmaW():
        def d2():
            a("s_add_u32 m0, s39, s40")
            a("s_nop 0")
            a(f"buffer_load_dwordx4 {vr(vW0)}, s[20:23], s38 offen lds")

        def d3():
            a("s_add_u32 m0, m0, 1024")
            a("s_nop 0")
            a(f"buffer_load_dwordx4 {vr(vW1)}, s[20:23], s38 offen lds")
        return [d2, d3]
    c.dmaW = dmaW

    def dmaT(h):
        def d0():
            a("s_add_u32 m0, s57, s54")
            if h:
                a("s_add_u32 m0, m0, 2048")
            a("s_nop 0")
            a(f"buffer_load_dwordx4 {vr(vA + 2 * h)}, s[16:19], s37 offen lds")

        def d1():
            a("s_add_u32 m0, m0, 1024")
            a("s_nop 0")
            a(f"buffer_load_dwordx4 {vr(vA + 2 * h + 1)}, s[16:19], s37 offen lds")
        return [d0, d1]
    c.dmaT = dmaT

    def advW():
        a(f"s_add_u32 s38, s38, {32 * 8192}")
        a("s_add_u32 s44, s44, 1")
        a(f"s_cmp_lt_u32 s44, {c.NSTEPS}")
        a("s_cselect_b32 s22, s47, 0")
    c.advW = advW

    def advT():
        a("s_add_u32 s37, s37, 128")
        a("s_add_u32 s53, s53, 1")
        a(f"s_cmp_lt_u32 s53, {c.NSTEPS // 2}")
        a("s_cselect_b32 s18, s46, 0")
    c.advT = advT

    def mid(nis):
        stamp(a, 4)
        a(f"s_waitcnt vmcnt({nis})")
        stamp(a, 5)
        for i in range(8):
            a(f"v_lshlrev_b32 v{20 + 2 * i}, 16, v{4 + i}")
            a(f"v_and_b32 v{21 + 2 * i}, 0xffff0000, v{4 + i}")
        a("v_add_f32 v36, v20, v21")
        for i in range(22, 36):
            a(f"v_add_f32 v36, v36, v{i}")
        wave_sum(a, 36, 37, 38)
        a(f"v_mul_f32 v36, {1.0 / 576.0!r}, v36")
        a("v_mov_b32 v39, 0")
        for i in range(20, 28):
            a(f"v_sub_f32 v37, v{i}, v36")
            a("v_fmac_f32 v39, v37, v37")
        a("s_mov_b64 exec, 0xff")
        for i in range(28, 36):
            a(f"v_sub_f32 v37, v{i}, v36")
            a("v_fmac_f32 v39, v37, v37")
        a("s_mov_b64 exec, -1")
        wave_sum(a, 39, 37, 38)
        a(f"v_mul_f32 v39, {1.0 / 576.0!r}, v39")
        round_bf16(a, 39, 37)
        a("v_add_f32 v39, 0x3727c5ac, v39")
        round_bf16(a, 39, 37)
        a("v_sqrt_f32 v39, v39")
        a("s_nop 0")
        round_bf16(a, 39, 37)
        a("v_rcp_f32 v39, v39")
        round_bf16(a, 36, 37)
        for i in range(8):
            a(f"v_sub_f32 v{20 + 2 * i}, v{20 + 2 * i}, v36")
            a(f"v_sub_f32 v{21 + 2 * i}, v{21 + 2 * i}, v36")
            a(f"v_cvt_pk_bf16_f32 v37, v{20 + 2 * i}, v{21 + 2 * i}")
            a(f"v_lshlrev_b32 v{20 + 2 * i}, 16, v37")
            a(f"v_and_b32 v{21 + 2 * i}, 0xffff0000, v37")
            a(f"v_mul_f32 v{20 + 2 * i}, v{20 + 2 * i}, v39")
            a(f"v_mul_f32 v{21 + 2 * i}, v{21 + 2 * i}, v39")
            a(f"v_cvt_pk_bf16_f32 v{4 + i}, v{20 + 2 * i}, v{21 + 2 * i}")
        SCR = WBASE + 3 * 16384
        a("s_lshl_b32 s50, s32, 4")
        a(f"s_add_u32 s50, s50, {SCR}")
        a("v_lshlrev_b32 v37, 7, v2")
        a("v_add_u32 v37, s50, v37")
        a("ds_write_b128 v37, v[4:7]")
        a("s_mov_b64 exec, 0xff")
        a("ds_write_b128 v37, v[8:11] offset:8192")
        a("s_mov_b64 exec, -1")
        a("s_mul_i32 s50, s32, 72")
        a("v_add_u32 v38, s50, v2")
        a("v_lshlrev_b32 v37, 4, v38")
        a(f"v_add_u32 v37, {SCR}, v37")
        a("s_waitcnt lgkmcnt(0)")
        a("s_barrier")
        a("ds_read_b128 v[4:7], v37")
        a("ds_read_b128 v[8:11], v37 offset:1024")
        a("s_lshr_b32 s50, s2, 2")
        a("s_mul_i32 s50, s50, 36864")
        a("s_and_b32 s51, s2, 3")
        a("s_lshl_b32 s51, s51, 7")
        a("s_add_u32 s50, s50, s51")
        a(f"s_add_u32 s50, s50, {XN_OFF}")
        for k in range(2):
            a("v_lshrrev_b32 v36, 3, v38")
            a("v_lshlrev_b32 v36, 9, v36")
            a("v_and_b32 v39, 7, v38")
            a(f"v_lshl_add_u32 v{40 + k}, v39, 4, v36")
            a("v_add_u32 v38, 64, v38")
        a("s_waitcnt lgkmcnt(0)")
        a(f"buffer_store_dwordx4 v[4:7], v40, s[28:31], s50 offen{STF}")
        a("s_mov_b64 exec, 0xff")
        a(f"buffer_store_dwordx4 v[8:11], v41, s[28:31], s50 offen{STF}")
        a("s_mov_b64 exec, -1")
        if PFMODE == "mid":
            prefetch(a, [("s14", "s15", 576 * 8192)], 32, 24, 50, 51, 18, 48)
    c.mid = mid

    if PFMODE == "step":
        make_srd(a, 60, "s14", "s15", 576 * 8192)
        a("s_lshl_b32 s64, s2, 3")
        a("s_add_u32 s64, s64, s32")
        a("s_lshl_b32 s64, s64, 8")
        a("v_lshlrev_b32 v50, 7, v2")

        def extra():
            a("s_mov_b64 exec, 3")
            a("buffer_load_dword v51, v50, s[60:63], s64 offen")
            a("s_mov_b64 exec, -1")
            a(f"s_add_u32 s64, s64, {2048 * 256}")
        c.extra = extra

    def inloop(tag):
        a(f"s_cmp_lg_u32 s45, {ENV('PFIT', '6')}")
        a(f"s_cbranch_scc1 L_{tag}_nopf")
        if PFMODE == "loop":
            prefetch(a, [("s14", "s15", 576 * 8192)], 32, 24, 50, 51, 18, 48)
        if fused:
            wflag_set(a, 32, 5, 28, "xn" + tag, vt=(52, 53))
        a.label(f"L_{tag}_nopf")
    if PFMODE in ("loop", "step") or fused:
        c.inloop = inloop

    a("s_cmp_ge_u32 s34, 16")
    a("s_cbranch_scc1 L_k1_vpath")
    c.swap = False
    gemm_prologue_and_loop(a, c, "k1k")
    VA = 12 if fused else 24
    SB = "s66" if fused else "s48"
    ST = "s68" if fused else "s49"

    def kv_addr(off):
        a("s_and_b32 s48, s34, 15")
        a("s_lshl_b32 s48, s48, 1")
        a("s_add_u32 s48, s48, s36")
        a("s_lshl_b32 s48, s48, 6")
        a("s_lshl_b32 s49, s33, 3")
        a("s_add_u32 s48, s48, s49")
        a("s_lshl_b32 s49, s35, 1")
        a("s_add_u32 s48, s48, s49")
        a("s_lshl_b32 s48, s48, 13")
        a(f"s_add_u32 {SB}, s48, {off}")
        a("v_bfe_u32 v20, v62, 2, 1")
        a("v_xor_b32 v20, v20, v61")
        a("v_lshlrev_b32 v21, 6, v60")
        a(f"v_lshl_add_u32 v{VA}, v20, 4, v21")
        a(f"v_xor_b32 v{VA + 1}, 32, v{VA}")

    def k_addr():
        kv_addr(KP_OFF)

    def v_addr():
        kv_addr(VP_OFF)

    def k_store():
        k = 0
        for tt in range(4):
            for P in range(4):
                t = 32 + (k % 4) * 4
                k += 1
                a0, a1 = c.acc(2 * P, tt), c.acc(2 * P + 1, tt)
                a(f"s_add_u32 {ST}, {SB}, {(tt >> 1) * 8192 + P * 2048}")
                a(f"v_cvt_pk_bf16_f32 v{t}, v{a0}, v{a0 + 1}")
                a(f"v_cvt_pk_bf16_f32 v{t + 1}, v{a0 + 2}, v{a0 + 3}")
                a(f"v_cvt_pk_bf16_f32 v{t + 2}, v{a1}, v{a1 + 1}")
                a(f"v_cvt_pk_bf16_f32 v{t + 3}, v{a1 + 2}, v{a1 + 3}")
                a(f"buffer_store_dwordx4 v[{t}:{t + 3}], v{VA + (tt & 1)}, s[28:31], {ST} offen offset:{(tt & 1) * 512}{STF}")

    def v_store():
        k = 0
        for nt in range(8):
            P, T = nt >> 1, nt & 1
            for Q in range(2):
                t = 32 + (k % 4) * 4
                k += 1
                a0, a1 = c.acc(nt, 2 * Q), c.acc(nt, 2 * Q + 1)
                a(f"s_add_u32 {ST}, {SB}, {Q * 8192 + P * 2048}")
                a(f"v_cvt_pk_bf16_f32 v{t}, v{a0}, v{a0 + 1}")
                a(f"v_cvt_pk_bf16_f32 v{t + 1}, v{a0 + 2}, v{a0 + 3}")
                a(f"v_cvt_pk_bf16_f32 v{t + 2}, v{a1}, v{a1 + 1}")
                a(f"v_cvt_pk_bf16_f32 v{t + 3}, v{a1 + 2}, v{a1 + 3}")
                a(f"buffer_store_dwordx4 v[{t}:{t + 3}], v{VA + T}, s[28:31], {ST} offen offset:{T * 512}{STF}")

    def fin():
        if STAMPS:
            a("s_waitcnt vmcnt(0)")
            stamp(a, 3)
            stamp_flush(a, 8, 1, 2, 32, s_t=70)
    if fused:
        k_addr()
        a("s_mov_b32 s67, 0")
        a("s_branch L_k12_mid")
    else:
        if PFMODE == "end":
            prefetch(a, [("s14", "s15", 576 * 8192)], 32, 16, 50, 51, 18, 48)
        k_addr()
        k_store()
        fin()
        a("s_endpgm")
    a.label("L_k1_vpath")
    c.swap = True
    gemm_prologue_and_loop(a, c, "k1v")
    if fused:
        v_addr()
        a("s_mov_b32 s67, 1")
        a.label("L_k12_mid")

        def pack():
            a("s_cmp_eq_u32 s67, 1")
            a("s_cbranch_scc1 L_k12_vpk")
            for P in range(4):
                for tt in range(4):
                    a0, a1 = c.acc(2 * P, tt), c.acc(2 * P + 1, tt)
                    a(f"v_cvt_pk_bf16_f32 v{a0}, v{a0}, v{a0 + 1}")
                    a(f"v_cvt_pk_bf16_f32 v{a0 + 1}, v{a0 + 2}, v{a0 + 3}")
                    a(f"v_cvt_pk_bf16_f32 v{a0 + 2}, v{a1}, v{a1 + 1}")
                    a(f"v_cvt_pk_bf16_f32 v{a0 + 3}, v{a1 + 2}, v{a1 + 3}")
            a("s_branch L_k12_pkdone")
            a.label("L_k12_vpk")
            for P in range(4):
                for cc in range(4):
                    src = 128 + 32 * P + 8 * cc
                    d = 128 + 32 * P + 4 * cc
                    for j in range(4):
                        a(f"v_cvt_pk_bf16_f32 v{d + j}, v{src + 2 * j}, v{src + 2 * j + 1}")
            a.label("L_k12_pkdone")

        def store(k, sfx):
            kk = f'{k}{sfx}'
            P, cc = k // 4, k % 4
            d = 128 + 32 * P + 4 * cc
            offK = (cc >> 1) * 8192 + P * 2048 + (cc & 1) * 512
            offV = (cc & 1) * 8192 + P * 2048 + (cc >> 1) * 512
            a("s_cmp_eq_u32 s67, 1")
            a(f"s_cbranch_scc1 L_k12_sv{kk}")
            a(f"s_add_u32 s68, s66, {offK}")
            a(f"buffer_store_dwordx4 v[{d}:{d + 3}], v{VA + (cc & 1)}, s[28:31], s68 offen{KVF}")
            a(f"s_branch L_k12_sd{kk}")
            a.label(f"L_k12_sv{kk}")
            a(f"s_add_u32 s68, s66, {offV}")
            a(f"buffer_store_dwordx4 v[{d}:{d + 3}], v{VA + (cc >> 1)}, s[28:31], s68 offen{KVF}")
            a.label(f"L_k12_sd{kk}")
        return pack, store
    if PFMODE == "end":
        prefetch(a, [("s14", "s15", 576 * 8192)], 32, 16, 50, 51, 18, 48)
    v_addr()
    v_store()
    fin()
    a.label("L_k1_end")
    a("s_endpgm")
    return name, "grid=(256,1,1) block=(512,1,1) lds=163840", 256


def gen_empty(a):
    name = "k0_empty_kernel"
    kernel_header(a, name)
    a("s_endpgm")
    return name, "grid=(256,1,1) block=(512,1,1) lds=163840", 256
```

```python
from gen_common import *


class GemmCfg:
    pass


ENV = os.environ.get


def gemm_prologue_and_loop(a, c, tag):
    TN, TM, R, AH = c.TN, c.TM, c.R, c.AHEAD
    NSW, WSLOT, NST, TSLOT, TPER = c.NSW, c.WSLOT, c.NST, c.TSLOT, c.TPER
    lg = Lgkm()

    def ring_adv(sreg, slot, ns):
        a(f"s_add_u32 {sr(sreg)}, {sr(sreg)}, {slot}")
        a(f"s_cmp_eq_u32 {sr(sreg)}, {ns * slot}")
        a(f"s_cselect_b32 {sr(sreg)}, 0, {sr(sreg)}")

    def finW():
        c.advW()
        ring_adv(c.s_dmaW, WSLOT, NSW)

    def finT():
        c.advT()
        ring_adv(c.s_dmaT, TSLOT, NST)

    def rd_w(nt, ring, dreg):
        for j, (ar, imm) in enumerate(c.wread(nt)):
            if ENV("NOLDS"):
                continue
            a(f"ds_read_b64_tr_b16 {vr(c.wfrag(ring) + 2 * j, 2)}, {vr(ar)} offset:{imm}")
            lg.issue(("W", ring))
        for r_ in c.wadv(nt):
            a(f"v_add_u32 {vr(r_)}, {sr(dreg)}, {vr(r_)}")

    def rd_t(buf, tt, dreg):
        ar, imm = c.tread(buf, tt)
        if not ENV("NOLDS"):
            a(f"ds_read_b128 {vr(c.tfrag(buf, tt), 4)}, {vr(ar)} offset:{imm}")
            lg.issue(("T", buf))
        if tt == TM - 1:
            for r_ in c.tadv(buf):
                a(f"v_add_u32 {vr(r_)}, {sr(dreg)}, {vr(r_)}")

    a(f"s_mov_b32 {sr(c.s_dmaW)}, 0")
    a(f"s_mov_b32 {sr(c.s_dmaT)}, 0")
    stamp(a, 7)
    DW = len(c.dmaW())
    DT = len(c.dmaT(0))
    issued = []
    mid_done = False
    if TPER == 1:
        assert NST == NSW
        if getattr(c, "pre_T", None):
            for s in range(NSW - 1):
                for f in c.dmaW():
                    f(); issued.append(("W", s))
                finW()
            c.pre_T()
            for s in range(NSW - 1):
                for f in c.dmaT(0):
                    f(); issued.append(("T", 0 if s < 2 else s))
                finT()
        else:
            for s in range(NSW - 1):
                for f in c.dmaW():
                    f(); issued.append(("W", s))
                finW()
                for f in c.dmaT(0):
                    f(); issued.append(("T", s))
                finT()
        VM_LOOP = (NSW - 3) * (DW + DT)
    else:
        tq = [(t, h) for t in range(NST - 1) for h in range(2)] + [(NST - 1, 0)]
        for s in range(NSW - 1):
            for f in c.dmaW():
                f(); issued.append(("W", s))
            finW()
            n_t = 2 if len(tq) > (NSW - 1 - s) else 1
            for _ in range(n_t):
                if tq:
                    t, h = tq.pop(0)
                    for f in c.dmaT(h):
                        f(); issued.append(("T", t))
                    if h == 1:
                        finT()
            if s == int(ENV("MIDAT", "99")) and getattr(c, "mid", None):
                c.mid(len(issued))
                mid_done = True
        assert not tq
        VM_LOOP = (NSW - 3) * (DW + DT) + DT
        if getattr(c, "extra", None):
            VM_LOOP += (NSW - 3) + 1
            c.extra()
            issued.append(("X", 99))
    if getattr(c, "mid", None) and not mid_done:
        c.mid(len(issued))
    for nt in range(TN):
        for tt in range(TM):
            for r_ in range(4):
                a(f"v_mov_b32 {vr(c.acc(nt, tt) + r_)}, 0")
    a(f"s_mov_b32 {sr(c.s_dB)}, {WSLOT}")
    a(f"s_mov_b32 {sr(c.s_slotW)}, {WSLOT}")
    a(f"s_mov_b32 {sr(c.s_sl)}, 0")
    a(f"s_mov_b32 {sr(c.s_dT)}, {TSLOT}")
    a(f"s_mov_b32 {sr(c.s_slotT)}, {TSLOT}")
    a(f"s_mov_b32 {sr(c.s_slT)}, 0")
    stamp(a, 6)
    last0 = max(i for i, x in enumerate(issued) if x[1] == 0)
    a(f"s_waitcnt vmcnt({len(issued) - 1 - last0})")
    a("s_barrier")
    stamp(a, 1)
    if getattr(c, "post_bar", None):
        c.post_bar(tag)
    TPOS = c.TPOS
    order = []
    for n in range(TN):
        if n + AH >= TN:
            order.append(("W", n + AH - TN))
        if 0 <= n - TPOS < TM:
            order.append(("T", n - TPOS))
    for kind, i in order:
        if kind == "W":
            rd_w(i, i % R, c.s_dB)
        else:
            rd_t(0, i, c.s_dT)
    q0 = list(lg.q)
    a(f"s_mov_b32 {sr(c.s_cnt)}, {c.NSTEPS // 2}")
    if ENV("GPRIO"):
        a("s_cmp_ge_u32 s32, 4")
        a(f"s_cbranch_scc{ENV('GPRIO')} L_{tag}_loop")
        a("s_setprio 1")
    a.label(f"L_{tag}_loop")
    for p in range(2):
        a(f"s_waitcnt vmcnt({VM_LOOP})")
        if not ENV("NOBAR"):
            a("s_barrier")
        if p == 0 and getattr(c, "inloop", None):
            c.inloop(tag)
        a(f"s_mov_b32 {sr(c.s_dA)}, {sr(c.s_dB)}")
        a(f"s_add_u32 {sr(c.s_sl)}, {sr(c.s_sl)}, 1")
        a(f"s_cmp_eq_u32 {sr(c.s_sl)}, {NSW}")
        a(f"s_cselect_b32 {sr(c.s_sl)}, 0, {sr(c.s_sl)}")
        a(f"s_cmp_eq_u32 {sr(c.s_sl)}, {NSW - 1}")
        a(f"s_cselect_b32 {sr(c.s_dB)}, {(-(NSW - 1) * WSLOT) & 0xffffffff}, {sr(c.s_slotW)}")
        if TPER == 1 or p == 1:
            a(f"s_add_u32 {sr(c.s_slT)}, {sr(c.s_slT)}, 1")
            a(f"s_cmp_eq_u32 {sr(c.s_slT)}, {NST}")
            a(f"s_cselect_b32 {sr(c.s_slT)}, 0, {sr(c.s_slT)}")
            a(f"s_cmp_eq_u32 {sr(c.s_slT)}, {NST - 1}")
            a(f"s_cselect_b32 {sr(c.s_dT)}, {(-(NST - 1) * TSLOT) & 0xffffffff}, {sr(c.s_slotT)}")
        h = 0 if TPER == 1 else (1 - p)
        dmas = c.dmaW() + [finW] + c.dmaT(h) + ([finT] if (TPER == 1 or h == 1) else [])
        if getattr(c, "extra", None):
            dmas.append(c.extra)
        if ENV("NODMA"):
            dmas = []
        allp = [(n, tt) for n in range(TN) for tt in range(TM)]
        nd = DW + DT + (1 if getattr(c, "extra", None) else 0)
        frac = float(ENV("DFRAC", str(getattr(c, "DFRAC", 0.8))))
        slots = [allp[int(j * len(allp) * frac / nd)] for j in range(nd)]
        k = 0
        for n in range(TN):
            gi = p * TN + n
            nt2 = n + AH
            if nt2 < TN:
                rd_w(nt2, (gi + AH) % R, c.s_dA)
            else:
                rd_w(nt2 - TN, (gi + AH) % R, c.s_dB)
            if 0 <= n - TPOS < TM:
                rd_t(p ^ 1, n - TPOS, c.s_dT)
            need = [("W", gi % R)]
            if n == 0:
                need.append(("T", p))
            lg.need(a, need)
            for tt in range(TM):
                w_, t_ = vr(c.wfrag(gi % R), 4), vr(c.tfrag(p, tt), 4)
                ac = vr(c.acc(n, tt), 4)
                if c.swap:
                    a(f"v_mfma_f32_16x16x32_bf16 {ac}, {t_}, {w_}, {ac}")
                else:
                    a(f"v_mfma_f32_16x16x32_bf16 {ac}, {w_}, {t_}, {ac}")
                if (n, tt) in slots and dmas:
                    f = dmas.pop(0)
                    f()
                    while dmas and dmas[0] in (finW, finT):
                        dmas.pop(0)()
        assert not dmas
    assert lg.q == q0[len(q0) - len(lg.q):], (lg.q, q0)
    a(f"s_sub_u32 {sr(c.s_cnt)}, {sr(c.s_cnt)}, 1")
    a(f"s_cmp_lg_u32 {sr(c.s_cnt)}, 0")
    a(f"s_cbranch_scc1 L_{tag}_loop")
    a("s_waitcnt lgkmcnt(0)")
    if ENV("GPRIO"):
        a("s_setprio 0")
    a("s_nop 7")
    a("s_nop 7")
    stamp(a, 2)


def gen_k1(a, fused=False):
    name = fused if fused else "k1_kv_kernel"
    STF = " sc1" if fused else globals()["STF"]
    PFMODE = ENV("PFMODE", "step")
    KVF = {"sc1": " sc1", "nt": " nt", "plain": ""}[ENV("KVF", "sc1")] + ENV("KVX", "")
    kernel_header(a, name)
    a("s_cmp_ge_u32 s2, 256")
    a("s_cbranch_scc1 L_k67c_end" if fused else "s_cbranch_scc1 L_k1_end")
    if fused:
        dbg_setup(a)
    a(f"s_load_dwordx4 s[4:7], s[0:1], {KA_X}")
    a(f"s_load_dwordx4 s[8:11], s[0:1], {KA_WUK}")
    a(f"s_load_dwordx2 s[12:13], s[0:1], {KA_WS}")
    a(f"s_load_dwordx2 s[14:15], s[0:1], {KA_WQ}")
    a("v_lshrrev_b32 v1, 6, v0")
    a("v_and_b32 v2, 63, v0")
    a("s_nop 0")
    a("v_readfirstlane_b32 s32, v1")
    a("s_and_b32 s34, s2, 7")
    a("s_lshl_b32 s34, s34, 2")
    a("s_lshr_b32 s48, s2, 3")
    a("s_and_b32 s48, s48, 3")
    a("s_add_u32 s34, s34, s48")
    a("s_lshr_b32 s33, s2, 5")
    a("s_lshr_b32 s35, s32, 1")
    a("s_and_b32 s36, s32, 1")
    a("s_lshl_b32 s40, s32, 11")
    a("s_waitcnt lgkmcnt(0)")
    stamp(a, 0)
    a("s_lshl_b32 s48, s33, 18")
    a("s_add_u32 s6, s6, s48")
    a("s_addc_u32 s7, s7, 0")
    make_srd(a, 16, "s6", "s7", 256 * 1024)
    a(f"s_mov_b32 s46, {256 * 1024}")
    a("s_cmp_ge_u32 s34, 16")
    a("s_cselect_b32 s8, s10, s8")
    a("s_cselect_b32 s9, s11, s9")
    a("s_and_b32 s48, s34, 15")
    a("s_lshl_b32 s48, s48, 9")
    a("s_add_u32 s8, s8, s48")
    a("s_addc_u32 s9, s9, 0")
    a(f"s_sub_u32 s47, {512 * 8192}, s48")
    make_srd(a, 20, "s8", "s9", "s47")
    make_srd(a, 24, "s4", "s5", 2048 * 1152)
    make_srd(a, 28, "s12", "s13", WS_BYTES)
    if fused:
        dbg_srd(a)
    if fused and ENV("CODEPF", "1") == "1":
        a("s_getpc_b64 s[98:99]")
        a("s_cmp_lg_u32 s32, 1")
        a("s_cbranch_scc1 L_nocodepf")
        a("s_lshr_b32 s96, s2, 3")
        a("s_mul_i32 s96, s96, 12")
        a("v_add_u32 v16, s96, v2")
        a("v_lshlrev_b32 v16, 7, v16")
        a(f"v_min_u32 v16, {int(ENV('CODESZ', '40000'))}, v16")
        a("s_mov_b64 exec, 0xfff")
        a("global_load_dword v17, v16, s[98:99]")
        a("s_mov_b64 exec, -1")
        a.label("L_nocodepf")
    if fused:
        wflag_zero_and_count(a, 32, 28)
    else:
        wflag_zero(a, 32, 28)
    a("s_lshl_b32 s49, s2, 3")
    a("s_add_u32 s49, s49, s32")
    a("s_mul_i32 s50, s49, 1152")
    a("v_lshlrev_b32 v3, 4, v2")
    for i in range(8, 12):
        a(f"v_mov_b32 v{i}, 0")
    a("buffer_load_dwordx4 v[4:7], v3, s[24:27], s50 offen")
    a("s_mov_b64 exec, 0xff")
    a("buffer_load_dwordx4 v[8:11], v3, s[24:27], s50 offen offset:1024")
    a("s_mov_b64 exec, -1")
    vA = 56
    vW0, vW1 = 66, 67
    vT0, vT1 = 70, 71
    vWa = 72
    WBASE = 3 * 32768
    a("v_lshrrev_b32 v20, 3, v2")
    a("s_lshl_b32 s48, s32, 5")
    a("v_add_u32 v20, s48, v20")
    a("v_lshlrev_b32 v20, 10, v20")
    a("v_lshrrev_b32 v21, 5, v2")
    a("v_and_b32 v22, 7, v2")
    a("v_bfe_u32 v24, v2, 4, 1")
    a("v_lshlrev_b32 v24, 2, v24")
    a("v_xor_b32 v22, v22, v24")
    for j in range(4):
        a(f"v_sub_u32 v23, {(-2 * (j >> 1)) & 3}, v21")
        a("v_and_b32 v23, 3, v23")
        a("v_xor_b32 v23, v23, v22")
        a("v_lshl_add_u32 v23, v23, 4, v20")
        a(f"v_add_u32 {vr(vA + j)}, {j * 8 * 1024}, v23")
    a("v_lshrrev_b32 v20, 5, v2")
    a("v_bfe_u32 v21, v2, 1, 4")
    a("v_and_b32 v22, 1, v2")
    a("s_and_b32 s48, s35, 1")
    a("s_lshl_b32 s48, s48, 2")
    a("s_lshl_b32 s51, s32, 2")
    for j, vd in ((0, vW0), (1, vW1)):
        a(f"v_add_u32 v23, {2 * j}, v20")
        a("v_or_b32 v24, s48, v23")
        a("v_xor_b32 v24, v24, v21")
        a("v_lshrrev_b32 v25, 1, v24")
        a("v_lshlrev_b32 v25, 2, v25")
        a("v_and_b32 v24, 1, v24")
        a("v_add_u32 v25, v25, v24")
        a("v_lshl_add_u32 v25, v22, 1, v25")
        a("v_add_u32 v23, s51, v23")
        a("v_lshlrev_b32 v23, 13, v23")
        a(f"v_lshl_add_u32 {vr(vd)}, v25, 4, v23")
    a("v_and_b32 v62, 15, v2")
    a("v_lshrrev_b32 v61, 4, v2")
    a("v_bfe_u32 v20, v2, 3, 1")
    a("v_lshlrev_b32 v20, 4, v20")
    a("v_and_b32 v21, 7, v2")
    a("v_add_u32 v60, v20, v21")
    a("v_lshrrev_b32 v20, 2, v62")
    a("v_sub_u32 v20, 0, v20")
    a("v_and_b32 v20, 3, v20")
    a("v_xor_b32 v20, v20, v61")
    a("v_bfe_u32 v21, v2, 1, 1")
    a("v_lshl_or_b32 v20, v21, 2, v20")
    a("s_lshl_b32 s48, s35, 6")
    a("v_add_u32 v21, s48, v60")
    a("v_lshlrev_b32 v21, 7, v21")
    a(f"v_lshl_add_u32 {vr(vT0)}, v20, 4, v21")
    a(f"v_xor_b32 {vr(vT1)}, 64, {vr(vT0)}")
    a("v_bfe_u32 v20, v2, 2, 2")
    a("v_and_b32 v21, 1, v61")
    a("v_lshl_or_b32 v21, v21, 2, v20")
    a("v_lshl_add_u32 v22, v61, 3, v20")
    a("v_lshlrev_b32 v22, 9, v22")
    a("v_and_b32 v23, 3, v2")
    a("v_lshl_add_u32 v22, v23, 3, v22")
    a("s_lshl_b32 s48, s36, 8")
    a(f"s_add_u32 s48, s48, {WBASE}")
    a("v_add_u32 v22, s48, v22")
    for nt in range(8):
        a(f"v_xor_b32 v23, {nt}, v21")
        a(f"v_lshl_add_u32 {vr(vWa + nt)}, v23, 5, v22")
    a("s_mov_b32 s37, 0")
    a("s_mov_b32 s38, 0")

    a("s_mov_b32 s44, 0")
    a("s_mov_b32 s53, 0")
    a("s_lshl_b32 s54, s32, 12")
    a(f"s_add_u32 s40, s40, {WBASE}")
    c = GemmCfg()
    c.TN, c.TM, c.R, c.AHEAD, c.NSTEPS = 8, 4, 4, 3, 16
    c.DFRAC = float(ENV("DF1", "0.5"))
    c.NSW, c.WSLOT, c.NST, c.TSLOT, c.TPER = 4, 16384, 3, 32768, 2
    c.TPOS = 0
    c.DMA_EVERY = 4
    c.acc = lambda nt, tt: 128 + (nt * 4 + tt) * 4
    c.tfrag = lambda buf, tt: 96 + buf * 16 + tt * 4
    c.wfrag = lambda r_: 80 + r_ * 4
    c.wread = lambda nt: [(vWa + nt, 0), (vWa + nt, 2048)]
    c.wadv = lambda nt: [vWa + nt]
    c.tread = lambda q, tt: ((vT0, vT1)[q], (32 * (tt >> 1) + 8 * (tt & 1)) * 128)
    c.tadv = lambda q: [(vT0, vT1)[q]]
    c.s_dA, c.s_dB, c.s_sl, c.s_dmaW, c.s_cnt, c.s_slotW = 41, 42, 43, 39, 45, 52
    c.s_dT, c.s_slT, c.s_dmaT, c.s_slotT = 55, 56, 57, 58

    def dmaW():
        def d2():
            a("s_add_u32 m0, s39, s40")
            a("s_nop 0")
            a(f"buffer_load_dwordx4 {vr(vW0)}, s[20:23], s38 offen lds")

        def d3():
            a("s_add_u32 m0, m0, 1024")
            a("s_nop 0")
            a(f"buffer_load_dwordx4 {vr(vW1)}, s[20:23], s38 offen lds")
        return [d2, d3]
    c.dmaW = dmaW

    def dmaT(h):
        def d0():
            a("s_add_u32 m0, s57, s54")
            if h:
                a("s_add_u32 m0, m0, 2048")
            a("s_nop 0")
            a(f"buffer_load_dwordx4 {vr(vA + 2 * h)}, s[16:19], s37 offen lds")

        def d1():
            a("s_add_u32 m0, m0, 1024")
            a("s_nop 0")
            a(f"buffer_load_dwordx4 {vr(vA + 2 * h + 1)}, s[16:19], s37 offen lds")
        return [d0, d1]
    c.dmaT = dmaT

    def advW():
        a(f"s_add_u32 s38, s38, {32 * 8192}")
        a("s_add_u32 s44, s44, 1")
        a(f"s_cmp_lt_u32 s44, {c.NSTEPS}")
        a("s_cselect_b32 s22, s47, 0")
    c.advW = advW

    def advT():
        a("s_add_u32 s37, s37, 128")
        a("s_add_u32 s53, s53, 1")
        a(f"s_cmp_lt_u32 s53, {c.NSTEPS // 2}")
        a("s_cselect_b32 s18, s46, 0")
    c.advT = advT

    def mid(nis):
        stamp(a, 4)
        a(f"s_waitcnt vmcnt({nis})")
        stamp(a, 5)
        for i in range(8):
            a(f"v_lshlrev_b32 v{20 + 2 * i}, 16, v{4 + i}")
            a(f"v_and_b32 v{21 + 2 * i}, 0xffff0000, v{4 + i}")
        a("v_add_f32 v36, v20, v21")
        for i in range(22, 36):
            a(f"v_add_f32 v36, v36, v{i}")
        wave_sum(a, 36, 37, 38)
        a(f"v_mul_f32 v36, {1.0 / 576.0!r}, v36")
        a("v_mov_b32 v39, 0")
        for i in range(20, 28):
            a(f"v_sub_f32 v37, v{i}, v36")
            a("v_fmac_f32 v39, v37, v37")
        a("s_mov_b64 exec, 0xff")
        for i in range(28, 36):
            a(f"v_sub_f32 v37, v{i}, v36")
            a("v_fmac_f32 v39, v37, v37")
        a("s_mov_b64 exec, -1")
        wave_sum(a, 39, 37, 38)
        a(f"v_mul_f32 v39, {1.0 / 576.0!r}, v39")
        round_bf16(a, 39, 37)
        a("v_add_f32 v39, 0x3727c5ac, v39")
        round_bf16(a, 39, 37)
        a("v_sqrt_f32 v39, v39")
        a("s_nop 0")
        round_bf16(a, 39, 37)
        a("v_rcp_f32 v39, v39")
        round_bf16(a, 36, 37)
        for i in range(8):
            a(f"v_sub_f32 v{20 + 2 * i}, v{20 + 2 * i}, v36")
            a(f"v_sub_f32 v{21 + 2 * i}, v{21 + 2 * i}, v36")
            a(f"v_cvt_pk_bf16_f32 v37, v{20 + 2 * i}, v{21 + 2 * i}")
            a(f"v_lshlrev_b32 v{20 + 2 * i}, 16, v37")
            a(f"v_and_b32 v{21 + 2 * i}, 0xffff0000, v37")
            a(f"v_mul_f32 v{20 + 2 * i}, v{20 + 2 * i}, v39")
            a(f"v_mul_f32 v{21 + 2 * i}, v{21 + 2 * i}, v39")
            a(f"v_cvt_pk_bf16_f32 v{4 + i}, v{20 + 2 * i}, v{21 + 2 * i}")
        SCR = WBASE + 3 * 16384
        a("s_lshl_b32 s50, s32, 4")
        a(f"s_add_u32 s50, s50, {SCR}")
        a("v_lshlrev_b32 v37, 7, v2")
        a("v_add_u32 v37, s50, v37")
        a("ds_write_b128 v37, v[4:7]")
        a("s_mov_b64 exec, 0xff")
        a("ds_write_b128 v37, v[8:11] offset:8192")
        a("s_mov_b64 exec, -1")
        a("s_mul_i32 s50, s32, 72")
        a("v_add_u32 v38, s50, v2")
        a("v_lshlrev_b32 v37, 4, v38")
        a(f"v_add_u32 v37, {SCR}, v37")
        a("s_waitcnt lgkmcnt(0)")
        a("s_barrier")
        a("ds_read_b128 v[4:7], v37")
        a("ds_read_b128 v[8:11], v37 offset:1024")
        a("s_lshr_b32 s50, s2, 2")
        a("s_mul_i32 s50, s50, 36864")
        a("s_and_b32 s51, s2, 3")
        a("s_lshl_b32 s51, s51, 7")
        a("s_add_u32 s50, s50, s51")
        a(f"s_add_u32 s50, s50, {XN_OFF}")
        for k in range(2):
            a("v_lshrrev_b32 v36, 3, v38")
            a("v_lshlrev_b32 v36, 9, v36")
            a("v_and_b32 v39, 7, v38")
            a(f"v_lshl_add_u32 v{40 + k}, v39, 4, v36")
            a("v_add_u32 v38, 64, v38")
        a("s_waitcnt lgkmcnt(0)")
        a(f"buffer_store_dwordx4 v[4:7], v40, s[28:31], s50 offen{STF}")
        a("s_mov_b64 exec, 0xff")
        a(f"buffer_store_dwordx4 v[8:11], v41, s[28:31], s50 offen{STF}")
        a("s_mov_b64 exec, -1")
        if PFMODE == "mid":
            prefetch(a, [("s14", "s15", 576 * 8192)], 32, 24, 50, 51, 18, 48)
    c.mid = mid

    if PFMODE == "step":
        make_srd(a, 60, "s14", "s15", 576 * 8192)
        a("s_lshl_b32 s64, s2, 3")
        a("s_add_u32 s64, s64, s32")
        a("s_lshl_b32 s64, s64, 8")
        a("v_lshlrev_b32 v50, 7, v2")

        def extra():
            a("s_mov_b64 exec, 3")
            a("buffer_load_dword v51, v50, s[60:63], s64 offen")
            a("s_mov_b64 exec, -1")
            a(f"s_add_u32 s64, s64, {2048 * 256}")
        c.extra = extra

    def inloop(tag):
        a(f"s_cmp_lg_u32 s45, {ENV('PFIT', '6')}")
        a(f"s_cbranch_scc1 L_{tag}_nopf")
        if PFMODE == "loop":
            prefetch(a, [("s14", "s15", 576 * 8192)], 32, 24, 50, 51, 18, 48)
        if fused:
            wflag_set(a, 32, 5, 28, "xn" + tag, vt=(52, 53))
        a.label(f"L_{tag}_nopf")
    if PFMODE in ("loop", "step") or fused:
        c.inloop = inloop

    a("s_cmp_ge_u32 s34, 16")
    a("s_cbranch_scc1 L_k1_vpath")
    c.swap = False
    gemm_prologue_and_loop(a, c, "k1k")
    VA = 12 if fused else 24
    SB = "s66" if fused else "s48"
    ST = "s68" if fused else "s49"

    def kv_addr(off):
        a("s_and_b32 s48, s34, 15")
        a("s_lshl_b32 s48, s48, 1")
        a("s_add_u32 s48, s48, s36")
        a("s_lshl_b32 s48, s48, 6")
        a("s_lshl_b32 s49, s33, 3")
        a("s_add_u32 s48, s48, s49")
        a("s_lshl_b32 s49, s35, 1")
        a("s_add_u32 s48, s48, s49")
        a("s_lshl_b32 s48, s48, 13")
        a(f"s_add_u32 {SB}, s48, {off}")
        a("v_bfe_u32 v20, v62, 2, 1")
        a("v_xor_b32 v20, v20, v61")
        a("v_lshlrev_b32 v21, 6, v60")
        a(f"v_lshl_add_u32 v{VA}, v20, 4, v21")
        a(f"v_xor_b32 v{VA + 1}, 32, v{VA}")

    def k_addr():
        kv_addr(KP_OFF)

    def v_addr():
        kv_addr(VP_OFF)

    def k_store():
        k = 0
        for tt in range(4):
            for P in range(4):
                t = 32 + (k % 4) * 4
                k += 1
                a0, a1 = c.acc(2 * P, tt), c.acc(2 * P + 1, tt)
                a(f"s_add_u32 {ST}, {SB}, {(tt >> 1) * 8192 + P * 2048}")
                a(f"v_cvt_pk_bf16_f32 v{t}, v{a0}, v{a0 + 1}")
                a(f"v_cvt_pk_bf16_f32 v{t + 1}, v{a0 + 2}, v{a0 + 3}")
                a(f"v_cvt_pk_bf16_f32 v{t + 2}, v{a1}, v{a1 + 1}")
                a(f"v_cvt_pk_bf16_f32 v{t + 3}, v{a1 + 2}, v{a1 + 3}")
                a(f"buffer_store_dwordx4 v[{t}:{t + 3}], v{VA + (tt & 1)}, s[28:31], {ST} offen offset:{(tt & 1) * 512}{STF}")

    def v_store():
        k = 0
        for nt in range(8):
            P, T = nt >> 1, nt & 1
            for Q in range(2):
                t = 32 + (k % 4) * 4
                k += 1
                a0, a1 = c.acc(nt, 2 * Q), c.acc(nt, 2 * Q + 1)
                a(f"s_add_u32 {ST}, {SB}, {Q * 8192 + P * 2048}")
                a(f"v_cvt_pk_bf16_f32 v{t}, v{a0}, v{a0 + 1}")
                a(f"v_cvt_pk_bf16_f32 v{t + 1}, v{a0 + 2}, v{a0 + 3}")
                a(f"v_cvt_pk_bf16_f32 v{t + 2}, v{a1}, v{a1 + 1}")
                a(f"v_cvt_pk_bf16_f32 v{t + 3}, v{a1 + 2}, v{a1 + 3}")
                a(f"buffer_store_dwordx4 v[{t}:{t + 3}], v{VA + T}, s[28:31], {ST} offen offset:{T * 512}{STF}")

    def fin():
        if STAMPS:
            a("s_waitcnt vmcnt(0)")
            stamp(a, 3)
            stamp_flush(a, 8, 1, 2, 32, s_t=70)
    if fused:
        k_addr()
        a("s_mov_b32 s67, 0")
        a("s_branch L_k12_mid")
    else:
        if PFMODE == "end":
            prefetch(a, [("s14", "s15", 576 * 8192)], 32, 16, 50, 51, 18, 48)
        k_addr()
        k_store()
        fin()
        a("s_endpgm")
    a.label("L_k1_vpath")
    c.swap = True
    gemm_prologue_and_loop(a, c, "k1v")
    if fused:
        v_addr()
        a("s_mov_b32 s67, 1")
        a.label("L_k12_mid")

        def pack():
            a("s_cmp_eq_u32 s67, 1")
            a("s_cbranch_scc1 L_k12_vpk")
            for P in range(4):
                for tt in range(4):
                    a0, a1 = c.acc(2 * P, tt), c.acc(2 * P + 1, tt)
                    a(f"v_cvt_pk_bf16_f32 v{a0}, v{a0}, v{a0 + 1}")
                    a(f"v_cvt_pk_bf16_f32 v{a0 + 1}, v{a0 + 2}, v{a0 + 3}")
                    a(f"v_cvt_pk_bf16_f32 v{a0 + 2}, v{a1}, v{a1 + 1}")
                    a(f"v_cvt_pk_bf16_f32 v{a0 + 3}, v{a1 + 2}, v{a1 + 3}")
            a("s_branch L_k12_pkdone")
            a.label("L_k12_vpk")
            for P in range(4):
                for cc in range(4):
                    src = 128 + 32 * P + 8 * cc
                    d = 128 + 32 * P + 4 * cc
                    for j in range(4):
                        a(f"v_cvt_pk_bf16_f32 v{d + j}, v{src + 2 * j}, v{src + 2 * j + 1}")
            a.label("L_k12_pkdone")

        def store(k, sfx):
            kk = f'{k}{sfx}'
            P, cc = k // 4, k % 4
            d = 128 + 32 * P + 4 * cc
            offK = (cc >> 1) * 8192 + P * 2048 + (cc & 1) * 512
            offV = (cc & 1) * 8192 + P * 2048 + (cc >> 1) * 512
            a("s_cmp_eq_u32 s67, 1")
            a(f"s_cbranch_scc1 L_k12_sv{kk}")
            a(f"s_add_u32 s68, s66, {offK}")
            a(f"buffer_store_dwordx4 v[{d}:{d + 3}], v{VA + (cc & 1)}, s[28:31], s68 offen{KVF}")
            a(f"s_branch L_k12_sd{kk}")
            a.label(f"L_k12_sv{kk}")
            a(f"s_add_u32 s68, s66, {offV}")
            a(f"buffer_store_dwordx4 v[{d}:{d + 3}], v{VA + (cc >> 1)}, s[28:31], s68 offen{KVF}")
            a.label(f"L_k12_sd{kk}")
        return pack, store
    if PFMODE == "end":
        prefetch(a, [("s14", "s15", 576 * 8192)], 32, 16, 50, 51, 18, 48)
    v_addr()
    v_store()
    fin()
    a.label("L_k1_end")
    a("s_endpgm")
    return name, "grid=(256,1,1) block=(512,1,1) lds=163840", 256


def gen_empty(a):
    name = "k0_empty_kernel"
    kernel_header(a, name)
    a("s_endpgm")
    return name, "grid=(256,1,1) block=(512,1,1) lds=163840", 256
```

```python
from gen_common import *


class GemmCfg:
    pass


ENV = os.environ.get


def gemm_prologue_and_loop(a, c, tag):
    TN, TM, R, AH = c.TN, c.TM, c.R, c.AHEAD
    NSW, WSLOT, NST, TSLOT, TPER = c.NSW, c.WSLOT, c.NST, c.TSLOT, c.TPER
    lg = Lgkm()

    def ring_adv(sreg, slot, ns):
        a(f"s_add_u32 {sr(sreg)}, {sr(sreg)}, {slot}")
        a(f"s_cmp_eq_u32 {sr(sreg)}, {ns * slot}")
        a(f"s_cselect_b32 {sr(sreg)}, 0, {sr(sreg)}")

    def finW():
        c.advW()
        ring_adv(c.s_dmaW, WSLOT, NSW)

    def finT():
        c.advT()
        ring_adv(c.s_dmaT, TSLOT, NST)

    def rd_w(nt, ring, dreg):
        for j, (ar, imm) in enumerate(c.wread(nt)):
            if ENV("NOLDS"):
                continue
            a(f"ds_read_b64_tr_b16 {vr(c.wfrag(ring) + 2 * j, 2)}, {vr(ar)} offset:{imm}")
            lg.issue(("W", ring))
        for r_ in c.wadv(nt):
            a(f"v_add_u32 {vr(r_)}, {sr(dreg)}, {vr(r_)}")

    def rd_t(buf, tt, dreg):
        ar, imm = c.tread(buf, tt)
        if not ENV("NOLDS"):
            a(f"ds_read_b128 {vr(c.tfrag(buf, tt), 4)}, {vr(ar)} offset:{imm}")
            lg.issue(("T", buf))
        if tt == TM - 1:
            for r_ in c.tadv(buf):
                a(f"v_add_u32 {vr(r_)}, {sr(dreg)}, {vr(r_)}")

    a(f"s_mov_b32 {sr(c.s_dmaW)}, 0")
    a(f"s_mov_b32 {sr(c.s_dmaT)}, 0")
    stamp(a, 7)
    DW = len(c.dmaW())
    DT = len(c.dmaT(0))
    issued = []
    mid_done = False
    if TPER == 1:
        assert NST == NSW
        if getattr(c, "pre_T", None):
            for s in range(NSW - 1):
                for f in c.dmaW():
                    f(); issued.append(("W", s))
                finW()
            c.pre_T()
            for s in range(NSW - 1):
                for f in c.dmaT(0):
                    f(); issued.append(("T", 0 if s < 2 else s))
                finT()
        else:
            for s in range(NSW - 1):
                for f in c.dmaW():
                    f(); issued.append(("W", s))
                finW()
                for f in c.dmaT(0):
                    f(); issued.append(("T", s))
                finT()
        VM_LOOP = (NSW - 3) * (DW + DT)
    else:
        tq = [(t, h) for t in range(NST - 1) for h in range(2)] + [(NST - 1, 0)]
        for s in range(NSW - 1):
            for f in c.dmaW():
                f(); issued.append(("W", s))
            finW()
            n_t = 2 if len(tq) > (NSW - 1 - s) else 1
            for _ in range(n_t):
                if tq:
                    t, h = tq.pop(0)
                    for f in c.dmaT(h):
                        f(); issued.append(("T", t))
                    if h == 1:
                        finT()
            if s == int(ENV("MIDAT", "99")) and getattr(c, "mid", None):
                c.mid(len(issued))
                mid_done = True
        assert not tq
        VM_LOOP = (NSW - 3) * (DW + DT) + DT
        if getattr(c, "extra", None):
            VM_LOOP += (NSW - 3) + 1
            c.extra()
            issued.append(("X", 99))
    if getattr(c, "mid", None) and not mid_done:
        c.mid(len(issued))
    for nt in range(TN):
        for tt in range(TM):
            for r_ in range(4):
                a(f"v_mov_b32 {vr(c.acc(nt, tt) + r_)}, 0")
    a(f"s_mov_b32 {sr(c.s_dB)}, {WSLOT}")
    a(f"s_mov_b32 {sr(c.s_slotW)}, {WSLOT}")
    a(f"s_mov_b32 {sr(c.s_sl)}, 0")
    a(f"s_mov_b32 {sr(c.s_dT)}, {TSLOT}")
    a(f"s_mov_b32 {sr(c.s_slotT)}, {TSLOT}")
    a(f"s_mov_b32 {sr(c.s_slT)}, 0")
    stamp(a, 6)
    last0 = max(i for i, x in enumerate(issued) if x[1] == 0)
    a(f"s_waitcnt vmcnt({len(issued) - 1 - last0})")
    a("s_barrier")
    stamp(a, 1)
    if getattr(c, "post_bar", None):
        c.post_bar(tag)
    TPOS = c.TPOS
    order = []
    for n in range(TN):
        if n + AH >= TN:
            order.append(("W", n + AH - TN))
        if 0 <= n - TPOS < TM:
            order.append(("T", n - TPOS))
    for kind, i in order:
        if kind == "W":
            rd_w(i, i % R, c.s_dB)
        else:
            rd_t(0, i, c.s_dT)
    q0 = list(lg.q)
    a(f"s_mov_b32 {sr(c.s_cnt)}, {c.NSTEPS // 2}")
    if ENV("GPRIO"):
        a("s_cmp_ge_u32 s32, 4")
        a(f"s_cbranch_scc{ENV('GPRIO')} L_{tag}_loop")
        a("s_setprio 1")
    a.label(f"L_{tag}_loop")
    for p in range(2):
        a(f"s_waitcnt vmcnt({VM_LOOP})")
        if not ENV("NOBAR"):
            a("s_barrier")
        if p == 0 and getattr(c, "inloop", None):
            c.inloop(tag)
        a(f"s_mov_b32 {sr(c.s_dA)}, {sr(c.s_dB)}")
        a(f"s_add_u32 {sr(c.s_sl)}, {sr(c.s_sl)}, 1")
        a(f"s_cmp_eq_u32 {sr(c.s_sl)}, {NSW}")
        a(f"s_cselect_b32 {sr(c.s_sl)}, 0, {sr(c.s_sl)}")
        a(f"s_cmp_eq_u32 {sr(c.s_sl)}, {NSW - 1}")
        a(f"s_cselect_b32 {sr(c.s_dB)}, {(-(NSW - 1) * WSLOT) & 0xffffffff}, {sr(c.s_slotW)}")
        if TPER == 1 or p == 1:
            a(f"s_add_u32 {sr(c.s_slT)}, {sr(c.s_slT)}, 1")
            a(f"s_cmp_eq_u32 {sr(c.s_slT)}, {NST}")
            a(f"s_cselect_b32 {sr(c.s_slT)}, 0, {sr(c.s_slT)}")
            a(f"s_cmp_eq_u32 {sr(c.s_slT)}, {NST - 1}")
            a(f"s_cselect_b32 {sr(c.s_dT)}, {(-(NST - 1) * TSLOT) & 0xffffffff}, {sr(c.s_slotT)}")
        h = 0 if TPER == 1 else (1 - p)
        dmas = c.dmaW() + [finW] + c.dmaT(h) + ([finT] if (TPER == 1 or h == 1) else [])
        if getattr(c, "extra", None):
            dmas.append(c.extra)
        if ENV("NODMA"):
            dmas = []
        allp = [(n, tt) for n in range(TN) for tt in range(TM)]
        nd = DW + DT + (1 if getattr(c, "extra", None) else 0)
        frac = float(ENV("DFRAC", str(getattr(c, "DFRAC", 0.8))))
        slots = [allp[int(j * len(allp) * frac / nd)] for j in range(nd)]
        k = 0
        for n in range(TN):
            gi = p * TN + n
            nt2 = n + AH
            if nt2 < TN:
                rd_w(nt2, (gi + AH) % R, c.s_dA)
            else:
                rd_w(nt2 - TN, (gi + AH) % R, c.s_dB)
            if 0 <= n - TPOS < TM:
                rd_t(p ^ 1, n - TPOS, c.s_dT)
            need = [("W", gi % R)]
            if n == 0:
                need.append(("T", p))
            lg.need(a, need)
            for tt in range(TM):
                w_, t_ = vr(c.wfrag(gi % R), 4), vr(c.tfrag(p, tt), 4)
                ac = vr(c.acc(n, tt), 4)
                if c.swap:
                    a(f"v_mfma_f32_16x16x32_bf16 {ac}, {t_}, {w_}, {ac}")
                else:
                    a(f"v_mfma_f32_16x16x32_bf16 {ac}, {w_}, {t_}, {ac}")
                if (n, tt) in slots and dmas:
                    f = dmas.pop(0)
                    f()
                    while dmas and dmas[0] in (finW, finT):
                        dmas.pop(0)()
        assert not dmas
    assert lg.q == q0[len(q0) - len(lg.q):], (lg.q, q0)
    a(f"s_sub_u32 {sr(c.s_cnt)}, {sr(c.s_cnt)}, 1")
    a(f"s_cmp_lg_u32 {sr(c.s_cnt)}, 0")
    a(f"s_cbranch_scc1 L_{tag}_loop")
    a("s_waitcnt lgkmcnt(0)")
    if ENV("GPRIO"):
        a("s_setprio 0")
    a("s_nop 7")
    a("s_nop 7")
    stamp(a, 2)


def gen_k1(a, fused=False):
    name = fused if fused else "k1_kv_kernel"
    STF = " sc1" if fused else globals()["STF"]
    PFMODE = ENV("PFMODE", "step")
    KVF = {"sc1": " sc1", "nt": " nt", "plain": ""}[ENV("KVF", "sc1")] + ENV("KVX", "")
    kernel_header(a, name)
    a("s_cmp_ge_u32 s2, 256")
    a("s_cbranch_scc1 L_k67c_end" if fused else "s_cbranch_scc1 L_k1_end")
    if fused:
        dbg_setup(a)
    a(f"s_load_dwordx4 s[4:7], s[0:1], {KA_X}")
    a(f"s_load_dwordx4 s[8:11], s[0:1], {KA_WUK}")
    a(f"s_load_dwordx2 s[12:13], s[0:1], {KA_WS}")
    a(f"s_load_dwordx2 s[14:15], s[0:1], {KA_WQ}")
    a("v_lshrrev_b32 v1, 6, v0")
    a("v_and_b32 v2, 63, v0")
    a("s_nop 0")
    a("v_readfirstlane_b32 s32, v1")
    a("s_and_b32 s34, s2, 7")
    a("s_lshl_b32 s34, s34, 2")
    a("s_lshr_b32 s48, s2, 3")
    a("s_and_b32 s48, s48, 3")
    a("s_add_u32 s34, s34, s48")
    a("s_lshr_b32 s33, s2, 5")
    a("s_lshr_b32 s35, s32, 1")
    a("s_and_b32 s36, s32, 1")
    a("s_lshl_b32 s40, s32, 11")
    a("s_waitcnt lgkmcnt(0)")
    stamp(a, 0)
    a("s_lshl_b32 s48, s33, 18")
    a("s_add_u32 s6, s6, s48")
    a("s_addc_u32 s7, s7, 0")
    make_srd(a, 16, "s6", "s7", 256 * 1024)
    a(f"s_mov_b32 s46, {256 * 1024}")
    a("s_cmp_ge_u32 s34, 16")
    a("s_cselect_b32 s8, s10, s8")
    a("s_cselect_b32 s9, s11, s9")
    a("s_and_b32 s48, s34, 15")
    a("s_lshl_b32 s48, s48, 9")
    a("s_add_u32 s8, s8, s48")
    a("s_addc_u32 s9, s9, 0")
    a(f"s_sub_u32 s47, {512 * 8192}, s48")
    make_srd(a, 20, "s8", "s9", "s47")
    make_srd(a, 24, "s4", "s5", 2048 * 1152)
    make_srd(a, 28, "s12", "s13", WS_BYTES)
    if fused:
        dbg_srd(a)
    if fused and ENV("CODEPF", "1") == "1":
        a("s_getpc_b64 s[98:99]")
        a.label("L_pc_here")
        a("s_cmp_lg_u32 s32, 1")
        a("s_cbranch_scc1 L_nocodepf")
        a("s_lshr_b32 s96, s2, 3")
        a("s_mul_i32 s96, s96, 12")
        a("v_add_u32 v16, s96, v2")
        a("v_lshlrev_b32 v16, 7, v16")
        a("v_min_u32 v16, L_code_end-L_pc_here-4, v16")
        a("s_mov_b64 exec, 0xfff")
        a("global_load_dword v17, v16, s[98:99]")
        a("s_mov_b64 exec, -1")
        a.label("L_nocodepf")
        if ENV("TLBPF"):
            a("s_cmp_lg_u32 s32, 2")
            a("s_cbranch_scc1 L_notlbpf")
            a("v_lshlrev_b32 v16, 21, v2")
            a("buffer_load_dword v17, v16, s[28:31], 0 offen")
            a(f"s_mov_b32 s96, {128 * MB}")
            a("s_mov_b64 exec, 0xff")
            a("buffer_load_dword v17, v16, s[28:31], s96 offen")
            a("s_mov_b64 exec, -1")
            a.label("L_notlbpf")
    if fused:
        wflag_zero_and_count(a, 32, 28)
    else:
        wflag_zero(a, 32, 28)
    a("s_lshl_b32 s49, s2, 3")
    a("s_add_u32 s49, s49, s32")
    a("s_mul_i32 s50, s49, 1152")
    a("v_lshlrev_b32 v3, 4, v2")
    for i in range(8, 12):
        a(f"v_mov_b32 v{i}, 0")
    a("buffer_load_dwordx4 v[4:7], v3, s[24:27], s50 offen")
    a("s_mov_b64 exec, 0xff")
    a("buffer_load_dwordx4 v[8:11], v3, s[24:27], s50 offen offset:1024")
    a("s_mov_b64 exec, -1")
    vA = 56
    vW0, vW1 = 66, 67
    vT0, vT1 = 70, 71
    vWa = 72
    WBASE = 3 * 32768
    a("v_lshrrev_b32 v20, 3, v2")
    a("s_lshl_b32 s48, s32, 5")
    a("v_add_u32 v20, s48, v20")
    a("v_lshlrev_b32 v20, 10, v20")
    a("v_lshrrev_b32 v21, 5, v2")
    a("v_and_b32 v22, 7, v2")
    a("v_bfe_u32 v24, v2, 4, 1")
    a("v_lshlrev_b32 v24, 2, v24")
    a("v_xor_b32 v22, v22, v24")
    for j in range(4):
        a(f"v_sub_u32 v23, {(-2 * (j >> 1)) & 3}, v21")
        a("v_and_b32 v23, 3, v23")
        a("v_xor_b32 v23, v23, v22")
        a("v_lshl_add_u32 v23, v23, 4, v20")
        a(f"v_add_u32 {vr(vA + j)}, {j * 8 * 1024}, v23")
    a("v_lshrrev_b32 v20, 5, v2")
    a("v_bfe_u32 v21, v2, 1, 4")
    a("v_and_b32 v22, 1, v2")
    a("s_and_b32 s48, s35, 1")
    a("s_lshl_b32 s48, s48, 2")
    a("s_lshl_b32 s51, s32, 2")
    for j, vd in ((0, vW0), (1, vW1)):
        a(f"v_add_u32 v23, {2 * j}, v20")
        a("v_or_b32 v24, s48, v23")
        a("v_xor_b32 v24, v24, v21")
        a("v_lshrrev_b32 v25, 1, v24")
        a("v_lshlrev_b32 v25, 2, v25")
        a("v_and_b32 v24, 1, v24")
        a("v_add_u32 v25, v25, v24")
        a("v_lshl_add_u32 v25, v22, 1, v25")
        a("v_add_u32 v23, s51, v23")
        a("v_lshlrev_b32 v23, 13, v23")
        a(f"v_lshl_add_u32 {vr(vd)}, v25, 4, v23")
    a("v_and_b32 v62, 15, v2")
    a("v_lshrrev_b32 v61, 4, v2")
    a("v_bfe_u32 v20, v2, 3, 1")
    a("v_lshlrev_b32 v20, 4, v20")
    a("v_and_b32 v21, 7, v2")
    a("v_add_u32 v60, v20, v21")
    a("v_lshrrev_b32 v20, 2, v62")
    a("v_sub_u32 v20, 0, v20")
    a("v_and_b32 v20, 3, v20")
    a("v_xor_b32 v20, v20, v61")
    a("v_bfe_u32 v21, v2, 1, 1")
    a("v_lshl_or_b32 v20, v21, 2, v20")
    a("s_lshl_b32 s48, s35, 6")
    a("v_add_u32 v21, s48, v60")
    a("v_lshlrev_b32 v21, 7, v21")
    a(f"v_lshl_add_u32 {vr(vT0)}, v20, 4, v21")
    a(f"v_xor_b32 {vr(vT1)}, 64, {vr(vT0)}")
    a("v_bfe_u32 v20, v2, 2, 2")
    a("v_and_b32 v21, 1, v61")
    a("v_lshl_or_b32 v21, v21, 2, v20")
    a("v_lshl_add_u32 v22, v61, 3, v20")
    a("v_lshlrev_b32 v22, 9, v22")
    a("v_and_b32 v23, 3, v2")
    a("v_lshl_add_u32 v22, v23, 3, v22")
    a("s_lshl_b32 s48, s36, 8")
    a(f"s_add_u32 s48, s48, {WBASE}")
    a("v_add_u32 v22, s48, v22")
    for nt in range(8):
        a(f"v_xor_b32 v23, {nt}, v21")
        a(f"v_lshl_add_u32 {vr(vWa + nt)}, v23, 5, v22")
    a("s_mov_b32 s37, 0")
    a("s_mov_b32 s38, 0")

    a("s_mov_b32 s44, 0")
    a("s_mov_b32 s53, 0")
    a("s_lshl_b32 s54, s32, 12")
    a(f"s_add_u32 s40, s40, {WBASE}")
    c = GemmCfg()
    c.TN, c.TM, c.R, c.AHEAD, c.NSTEPS = 8, 4, 4, 3, 16
    c.DFRAC = float(ENV("DF1", "0.5"))
    c.NSW, c.WSLOT, c.NST, c.TSLOT, c.TPER = 4, 16384, 3, 32768, 2
    c.TPOS = 0
    c.DMA_EVERY = 4
    c.acc = lambda nt, tt: 128 + (nt * 4 + tt) * 4
    c.tfrag = lambda buf, tt: 96 + buf * 16 + tt * 4
    c.wfrag = lambda r_: 80 + r_ * 4
    c.wread = lambda nt: [(vWa + nt, 0), (vWa + nt, 2048)]
    c.wadv = lambda nt: [vWa + nt]
    c.tread = lambda q, tt: ((vT0, vT1)[q], (32 * (tt >> 1) + 8 * (tt & 1)) * 128)
    c.tadv = lambda q: [(vT0, vT1)[q]]
    c.s_dA, c.s_dB, c.s_sl, c.s_dmaW, c.s_cnt, c.s_slotW = 41, 42, 43, 39, 45, 52
    c.s_dT, c.s_slT, c.s_dmaT, c.s_slotT = 55, 56, 57, 58

    def dmaW():
        def d2():
            a("s_add_u32 m0, s39, s40")
            a("s_nop 0")
            a(f"buffer_load_dwordx4 {vr(vW0)}, s[20:23], s38 offen lds")

        def d3():
            a("s_add_u32 m0, m0, 1024")
            a("s_nop 0")
            a(f"buffer_load_dwordx4 {vr(vW1)}, s[20:23], s38 offen lds")
        return [d2, d3]
    c.dmaW = dmaW

    def dmaT(h):
        def d0():
            a("s_add_u32 m0, s57, s54")
            if h:
                a("s_add_u32 m0, m0, 2048")
            a("s_nop 0")
            a(f"buffer_load_dwordx4 {vr(vA + 2 * h)}, s[16:19], s37 offen lds")

        def d1():
            a("s_add_u32 m0, m0, 1024")
            a("s_nop 0")
            a(f"buffer_load_dwordx4 {vr(vA + 2 * h + 1)}, s[16:19], s37 offen lds")
        return [d0, d1]
    c.dmaT = dmaT

    def advW():
        a(f"s_add_u32 s38, s38, {32 * 8192}")
        a("s_add_u32 s44, s44, 1")
        a(f"s_cmp_lt_u32 s44, {c.NSTEPS}")
        a("s_cselect_b32 s22, s47, 0")
    c.advW = advW

    def advT():
        a("s_add_u32 s37, s37, 128")
        a("s_add_u32 s53, s53, 1")
        a(f"s_cmp_lt_u32 s53, {c.NSTEPS // 2}")
        a("s_cselect_b32 s18, s46, 0")
    c.advT = advT

    def mid(nis):
        stamp(a, 4)
        a(f"s_waitcnt vmcnt({nis})")
        stamp(a, 5)
        for i in range(8):
            a(f"v_lshlrev_b32 v{20 + 2 * i}, 16, v{4 + i}")
            a(f"v_and_b32 v{21 + 2 * i}, 0xffff0000, v{4 + i}")
        a("v_add_f32 v36, v20, v21")
        for i in range(22, 36):
            a(f"v_add_f32 v36, v36, v{i}")
        wave_sum(a, 36, 37, 38)
        a(f"v_mul_f32 v36, {1.0 / 576.0!r}, v36")
        a("v_mov_b32 v39, 0")
        for i in range(20, 28):
            a(f"v_sub_f32 v37, v{i}, v36")
            a("v_fmac_f32 v39, v37, v37")
        a("s_mov_b64 exec, 0xff")
        for i in range(28, 36):
            a(f"v_sub_f32 v37, v{i}, v36")
            a("v_fmac_f32 v39, v37, v37")
        a("s_mov_b64 exec, -1")
        wave_sum(a, 39, 37, 38)
        a(f"v_mul_f32 v39, {1.0 / 576.0!r}, v39")
        round_bf16(a, 39, 37)
        a("v_add_f32 v39, 0x3727c5ac, v39")
        round_bf16(a, 39, 37)
        a("v_sqrt_f32 v39, v39")
        a("s_nop 0")
        round_bf16(a, 39, 37)
        a("v_rcp_f32 v39, v39")
        round_bf16(a, 36, 37)
        for i in range(8):
            a(f"v_sub_f32 v{20 + 2 * i}, v{20 + 2 * i}, v36")
            a(f"v_sub_f32 v{21 + 2 * i}, v{21 + 2 * i}, v36")
            a(f"v_cvt_pk_bf16_f32 v37, v{20 + 2 * i}, v{21 + 2 * i}")
            a(f"v_lshlrev_b32 v{20 + 2 * i}, 16, v37")
            a(f"v_and_b32 v{21 + 2 * i}, 0xffff0000, v37")
            a(f"v_mul_f32 v{20 + 2 * i}, v{20 + 2 * i}, v39")
            a(f"v_mul_f32 v{21 + 2 * i}, v{21 + 2 * i}, v39")
            a(f"v_cvt_pk_bf16_f32 v{4 + i}, v{20 + 2 * i}, v{21 + 2 * i}")
        SCR = WBASE + 3 * 16384
        a("s_lshl_b32 s50, s32, 4")
        a(f"s_add_u32 s50, s50, {SCR}")
        a("v_lshlrev_b32 v37, 7, v2")
        a("v_add_u32 v37, s50, v37")
        a("ds_write_b128 v37, v[4:7]")
        a("s_mov_b64 exec, 0xff")
        a("ds_write_b128 v37, v[8:11] offset:8192")
        a("s_mov_b64 exec, -1")
        a("s_mul_i32 s50, s32, 72")
        a("v_add_u32 v38, s50, v2")
        a("v_lshlrev_b32 v37, 4, v38")
        a(f"v_add_u32 v37, {SCR}, v37")
        a("s_waitcnt lgkmcnt(0)")
        a("s_barrier")
        a("ds_read_b128 v[4:7], v37")
        a("ds_read_b128 v[8:11], v37 offset:1024")
        a("s_lshr_b32 s50, s2, 2")
        a("s_mul_i32 s50, s50, 36864")
        a("s_and_b32 s51, s2, 3")
        a("s_lshl_b32 s51, s51, 7")
        a("s_add_u32 s50, s50, s51")
        a(f"s_add_u32 s50, s50, {XN_OFF}")
        for k in range(2):
            a("v_lshrrev_b32 v36, 3, v38")
            a("v_lshlrev_b32 v36, 9, v36")
            a("v_and_b32 v39, 7, v38")
            a(f"v_lshl_add_u32 v{40 + k}, v39, 4, v36")
            a("v_add_u32 v38, 64, v38")
        a("s_waitcnt lgkmcnt(0)")
        a(f"buffer_store_dwordx4 v[4:7], v40, s[28:31], s50 offen{STF}")
        a("s_mov_b64 exec, 0xff")
        a(f"buffer_store_dwordx4 v[8:11], v41, s[28:31], s50 offen{STF}")
        a("s_mov_b64 exec, -1")
        if PFMODE == "mid":
            prefetch(a, [("s14", "s15", 576 * 8192)], 32, 24, 50, 51, 18, 48)
    c.mid = mid

    if PFMODE == "step":
        make_srd(a, 60, "s14", "s15", 576 * 8192)
        a("s_lshl_b32 s64, s2, 3")
        a("s_add_u32 s64, s64, s32")
        a("s_lshl_b32 s64, s64, 8")
        a("v_lshlrev_b32 v50, 7, v2")

        def extra():
            a("s_mov_b64 exec, 3")
            a("buffer_load_dword v51, v50, s[60:63], s64 offen")
            a("s_mov_b64 exec, -1")
            a(f"s_add_u32 s64, s64, {2048 * 256}")
        c.extra = extra

    def inloop(tag):
        a(f"s_cmp_lg_u32 s45, {ENV('PFIT', '6')}")
        a(f"s_cbranch_scc1 L_{tag}_nopf")
        if PFMODE == "loop":
            prefetch(a, [("s14", "s15", 576 * 8192)], 32, 24, 50, 51, 18, 48)
        if fused:
            wflag_set(a, 32, 5, 28, "xn" + tag, vt=(52, 53))
        a.label(f"L_{tag}_nopf")
    if PFMODE in ("loop", "step") or fused:
        c.inloop = inloop

    a("s_cmp_ge_u32 s34, 16")
    a("s_cbranch_scc1 L_k1_vpath")
    c.swap = False
    gemm_prologue_and_loop(a, c, "k1k")
    VA = 12 if fused else 24
    SB = "s66" if fused else "s48"
    ST = "s68" if fused else "s49"

    def kv_addr(off):
        a("s_and_b32 s48, s34, 15")
        a("s_lshl_b32 s48, s48, 1")
        a("s_add_u32 s48, s48, s36")
        a("s_lshl_b32 s48, s48, 6")
        a("s_lshl_b32 s49, s33, 3")
        a("s_add_u32 s48, s48, s49")
        a("s_lshl_b32 s49, s35, 1")
        a("s_add_u32 s48, s48, s49")
        a("s_lshl_b32 s48, s48, 13")
        a(f"s_add_u32 {SB}, s48, {off}")
        a("v_bfe_u32 v20, v62, 2, 1")
        a("v_xor_b32 v20, v20, v61")
        a("v_lshlrev_b32 v21, 6, v60")
        a(f"v_lshl_add_u32 v{VA}, v20, 4, v21")
        a(f"v_xor_b32 v{VA + 1}, 32, v{VA}")

    def k_addr():
        kv_addr(KP_OFF)

    def v_addr():
        kv_addr(VP_OFF)

    def k_store():
        k = 0
        for tt in range(4):
            for P in range(4):
                t = 32 + (k % 4) * 4
                k += 1
                a0, a1 = c.acc(2 * P, tt), c.acc(2 * P + 1, tt)
                a(f"s_add_u32 {ST}, {SB}, {(tt >> 1) * 8192 + P * 2048}")
                a(f"v_cvt_pk_bf16_f32 v{t}, v{a0}, v{a0 + 1}")
                a(f"v_cvt_pk_bf16_f32 v{t + 1}, v{a0 + 2}, v{a0 + 3}")
                a(f"v_cvt_pk_bf16_f32 v{t + 2}, v{a1}, v{a1 + 1}")
                a(f"v_cvt_pk_bf16_f32 v{t + 3}, v{a1 + 2}, v{a1 + 3}")
                a(f"buffer_store_dwordx4 v[{t}:{t + 3}], v{VA + (tt & 1)}, s[28:31], {ST} offen offset:{(tt & 1) * 512}{STF}")

    def v_store():
        k = 0
        for nt in range(8):
            P, T = nt >> 1, nt & 1
            for Q in range(2):
                t = 32 + (k % 4) * 4
                k += 1
                a0, a1 = c.acc(nt, 2 * Q), c.acc(nt, 2 * Q + 1)
                a(f"s_add_u32 {ST}, {SB}, {Q * 8192 + P * 2048}")
                a(f"v_cvt_pk_bf16_f32 v{t}, v{a0}, v{a0 + 1}")
                a(f"v_cvt_pk_bf16_f32 v{t + 1}, v{a0 + 2}, v{a0 + 3}")
                a(f"v_cvt_pk_bf16_f32 v{t + 2}, v{a1}, v{a1 + 1}")
                a(f"v_cvt_pk_bf16_f32 v{t + 3}, v{a1 + 2}, v{a1 + 3}")
                a(f"buffer_store_dwordx4 v[{t}:{t + 3}], v{VA + T}, s[28:31], {ST} offen offset:{T * 512}{STF}")

    def fin():
        if STAMPS:
            a("s_waitcnt vmcnt(0)")
            stamp(a, 3)
            stamp_flush(a, 8, 1, 2, 32, s_t=70)
    if fused:
        k_addr()
        a("s_mov_b32 s67, 0")
        a("s_branch L_k12_mid")
    else:
        if PFMODE == "end":
            prefetch(a, [("s14", "s15", 576 * 8192)], 32, 16, 50, 51, 18, 48)
        k_addr()
        k_store()
        fin()
        a("s_endpgm")
    a.label("L_k1_vpath")
    c.swap = True
    gemm_prologue_and_loop(a, c, "k1v")
    if fused:
        v_addr()
        a("s_mov_b32 s67, 1")
        a.label("L_k12_mid")

        def pack():
            a("s_cmp_eq_u32 s67, 1")
            a("s_cbranch_scc1 L_k12_vpk")
            for P in range(4):
                for tt in range(4):
                    a0, a1 = c.acc(2 * P, tt), c.acc(2 * P + 1, tt)
                    a(f"v_cvt_pk_bf16_f32 v{a0}, v{a0}, v{a0 + 1}")
                    a(f"v_cvt_pk_bf16_f32 v{a0 + 1}, v{a0 + 2}, v{a0 + 3}")
                    a(f"v_cvt_pk_bf16_f32 v{a0 + 2}, v{a1}, v{a1 + 1}")
                    a(f"v_cvt_pk_bf16_f32 v{a0 + 3}, v{a1 + 2}, v{a1 + 3}")
            a("s_branch L_k12_pkdone")
            a.label("L_k12_vpk")
            for P in range(4):
                for cc in range(4):
                    src = 128 + 32 * P + 8 * cc
                    d = 128 + 32 * P + 4 * cc
                    for j in range(4):
                        a(f"v_cvt_pk_bf16_f32 v{d + j}, v{src + 2 * j}, v{src + 2 * j + 1}")
            a.label("L_k12_pkdone")

        def store(k, sfx):
            kk = f'{k}{sfx}'
            P, cc = k // 4, k % 4
            d = 128 + 32 * P + 4 * cc
            offK = (cc >> 1) * 8192 + P * 2048 + (cc & 1) * 512
            offV = (cc & 1) * 8192 + P * 2048 + (cc >> 1) * 512
            a("s_cmp_eq_u32 s67, 1")
            a(f"s_cbranch_scc1 L_k12_sv{kk}")
            a(f"s_add_u32 s68, s66, {offK}")
            a(f"buffer_store_dwordx4 v[{d}:{d + 3}], v{VA + (cc & 1)}, s[28:31], s68 offen{KVF}")
            a(f"s_branch L_k12_sd{kk}")
            a.label(f"L_k12_sv{kk}")
            a(f"s_add_u32 s68, s66, {offV}")
            a(f"buffer_store_dwordx4 v[{d}:{d + 3}], v{VA + (cc >> 1)}, s[28:31], s68 offen{KVF}")
            a.label(f"L_k12_sd{kk}")
        return pack, store
    if PFMODE == "end":
        prefetch(a, [("s14", "s15", 576 * 8192)], 32, 16, 50, 51, 18, 48)
    v_addr()
    v_store()
    fin()
    a.label("L_k1_end")
    a("s_endpgm")
    return name, "grid=(256,1,1) block=(512,1,1) lds=163840", 256


def gen_empty(a):
    name = "k0_empty_kernel"
    kernel_header(a, name)
    a("s_endpgm")
    return name, "grid=(256,1,1) block=(512,1,1) lds=163840", 256
```

```python
import math
from gen_common import *
from gen_gemm import *


def div18(a, vq, vr_, vin, vtmp):
    a(f"v_mul_u32_u24 {vr(vq)}, 3641, {vr(vin)}")
    a(f"v_lshrrev_b32 {vr(vq)}, 16, {vr(vq)}")
    a(f"v_mul_u32_u24 {vr(vtmp)}, 18, {vr(vq)}")
    a(f"v_sub_u32 {vr(vr_)}, {vr(vin)}, {vr(vtmp)}")


def gen_splitk(name, KA_W, A_OFF, NSTAGE, kid, fuse_ln=None, chain_in=False, chain_out=False, endlabel=None):
    PART = PART2_OFF if fuse_ln is False else PART_OFF

    def g(a):
        if not chain_in:
            kernel_header(a, name)
            a("s_cmp_ge_u32 s2, 256")
            a(f"s_cbranch_scc1 {endlabel or ('L_' + name + '_end')}")
        a(f"s_load_dwordx2 s[8:9], s[0:1], {KA_W}")
        a(f"s_load_dwordx2 s[12:13], s[0:1], {KA_WS}")
        if fuse_ln is not None:
            dbg_setup(a)
            a(f"s_load_dwordx2 s[4:5], s[0:1], {KA_X if fuse_ln else KA_OUT}")
        a("v_lshrrev_b32 v1, 6, v0")
        a("v_and_b32 v2, 63, v0")
        a("s_nop 0")
        a("v_readfirstlane_b32 s32, v1")
        a("s_and_b32 s48, s2, 7")
        a("s_lshr_b32 s49, s2, 3")
        a("s_lshr_b32 s33, s48, 1")
        a("s_lshr_b32 s50, s49, 2")
        a("s_sub_u32 s34, 15, s50")
        a("s_bitcmp1_b32 s48, 0")
        a("s_cselect_b32 s34, s34, s50")
        a("s_and_b32 s35, s49, 3")
        a("s_and_b32 s36, s32, 3")
        a("s_lshr_b32 s37, s32, 2")
        a("s_waitcnt lgkmcnt(0)")
        stamp(a, 0)
        KTOT = NSTAGE * 64 * 4
        make_srd(a, 20, "s8", "s9", KTOT * 1152)
        a(f"s_mov_b32 s47, {KTOT * 1152}")
        make_srd(a, 16, "s12", "s13", WS_BYTES)
        a(f"s_mov_b32 s46, {WS_BYTES}")
        make_srd(a, 28, "s12", "s13", WS_BYTES)
        if fuse_ln is not None:
            dbg_srd(a)
        TS, WS_ = 16384, 18432
        WBASE = 4 * TS
        vA0, vA1, vW0, vW1, vW2, vT, vWa, vWb = 64, 65, 66, 67, 68, 70, 71, 69
        a("s_lshr_b32 s48, s32, 1")
        a("s_lshl_b32 s48, s48, 16")
        a("s_and_b32 s49, s32, 1")
        a("s_lshl_b32 s49, s49, 11")
        a("s_add_u32 s48, s48, s49")
        a("v_lshlrev_b32 v20, 4, v2")
        a(f"v_add_u32 {vr(vA0)}, s48, v20")
        a(f"s_mul_i32 s38, s33, {NSTAGE * 262144}")
        a("s_lshl_b32 s48, s34, 12")
        a("s_add_u32 s38, s38, s48")
        a(f"s_add_u32 s38, s38, {A_OFF}")
        for j, vd in ((0, vW0), (1, vW1), (2, vW2)):
            a(f"v_add_u32 v20, {64 * j}, v2")
            div18(a, 21, 22, 20, 23)
            a("v_and_b32 v23, 1, v22")
            a("v_bfe_u32 v24, v22, 1, 1")
            a("v_lshl_or_b32 v23, v23, 1, v24")
            a("v_and_b32 v24, 28, v22")
            a("v_or_b32 v23, v23, v24")
            a("v_cmp_gt_u32 vcc, 16, v22")
            a("s_nop 1")
            a("v_cndmask_b32 v22, v22, v23, vcc")
            a("s_lshl_b32 s48, s32, 3")
            a("v_add_u32 v21, s48, v21")
            a("v_mul_u32_u24 v21, 1152, v21")
            a(f"v_lshl_add_u32 {vr(vd)}, v22, 4, v21")
        a(f"s_mul_i32 s39, s33, {NSTAGE * 64 * 1152}")
        a("s_mul_i32 s48, s35, 288")
        a("s_add_u32 s39, s39, s48")
        a("s_lshl_b32 s40, s32, 11")
        a("s_mul_i32 s41, s32, 2304")
        a(f"s_add_u32 s41, s41, {WBASE}")
        a("v_and_b32 v62, 15, v2")
        a("v_lshrrev_b32 v61, 4, v2")
        a("v_lshrrev_b32 v20, 1, v61")
        a("s_lshl_b32 s48, s37, 1")
        a("v_add_u32 v20, s48, v20")
        a("v_lshlrev_b32 v20, 12, v20")
        a("s_lshl_b32 s48, s36, 5")
        a("v_add_u32 v21, s48, v62")
        a("v_lshl_add_u32 v20, v21, 5, v20")
        a("v_and_b32 v21, 1, v61")
        a(f"v_lshl_add_u32 {vr(vT)}, v21, 4, v20")
        a("v_lshrrev_b32 v20, 5, v2")
        a("v_lshlrev_b32 v20, 4, v20")
        a("v_bfe_u32 v21, v2, 2, 3")
        a("v_add_u32 v20, v20, v21")
        a("s_lshl_b32 s48, s37, 5")
        a("v_add_u32 v20, s48, v20")
        a("v_mul_u32_u24 v20, 288, v20")
        a(f"v_add_u32 v20, {WBASE}, v20")
        a("v_and_b32 v21, 3, v2")
        a(f"v_lshl_add_u32 {vr(vWa)}, v21, 3, v20")
        a("v_and_b32 v22, 1, v2")
        a("v_lshl_add_u32 v20, v22, 4, v20")
        a("v_bfe_u32 v22, v2, 1, 1")
        a(f"v_lshl_add_u32 {vr(vWb)}, v22, 3, v20")
        a("s_mov_b32 s44, 0")
        c = GemmCfg()
        c.TN, c.TM, c.R, c.AHEAD, c.NSTEPS = 9, 2, int(ENV('SKR', '6')), int(ENV('SKA', '5')), NSTAGE
        c.NSW, c.WSLOT, c.NST, c.TSLOT, c.TPER = 4, WS_, 4, TS, 1
        c.TPOS = 0
        c.DMA_EVERY = 2
        c.swap = False
        c.acc = lambda nt, tt: 128 + (nt * 2 + tt) * 4
        c.tfrag = lambda buf, tt: 112 + buf * 8 + tt * 4
        c.wfrag = lambda r_: 200 + r_ * 4
        c.wread = lambda nt: [(vWb if nt == 8 else vWa, nt * 32), (vWb if nt == 8 else vWa, nt * 32 + 8 * 288)]
        c.wadv = lambda nt: [vWa] if nt == 7 else ([vWb] if nt == 8 else [])
        c.tread = lambda q, tt: (vT, tt * 512)
        c.tadv = lambda q: [vT]
        c.s_dA, c.s_dB, c.s_sl, c.s_dmaW, c.s_cnt, c.s_slotW = 50, 51, 52, 53, 45, 54
        c.s_dT, c.s_slT, c.s_dmaT, c.s_slotT = 55, 56, 57, 58

        def dmaW():
            def d0():
                a("s_add_u32 m0, s53, s41")
                a("s_nop 0")
                a(f"buffer_load_dwordx4 {vr(vW0)}, s[20:23], s39 offen lds")

            def d1():
                a("s_add_u32 m0, m0, 1024")
                a("s_nop 0")
                a(f"buffer_load_dwordx4 {vr(vW1)}, s[20:23], s39 offen lds")

            def d2():
                a("s_add_u32 m0, m0, 1024")
                a("s_mov_b64 exec, 0xffff")
                a(f"buffer_load_dwordx4 {vr(vW2)}, s[20:23], s39 offen lds")
                a("s_mov_b64 exec, -1")
            return [d0, d1, d2]
        c.dmaW = dmaW

        def dmaT(h):
            def d0():
                a("s_add_u32 m0, s57, s40")
                a("s_nop 0")
                a(f"buffer_load_dwordx4 {vr(vA0)}, s[16:19], s38 offen lds")

            def d1():
                a(f"buffer_load_dwordx4 {vr(vA0)}, s[16:19], s38 offen offset:1024 lds")
            return [d0, d1]
        c.dmaT = dmaT

        def advW():
            a(f"s_add_u32 s39, s39, {64 * 1152}")
        c.advW = advW

        def advT():
            a("s_add_u32 s38, s38, 262144")
            a("s_add_u32 s44, s44, 1")
            a(f"s_cmp_lt_u32 s44, {NSTAGE}")
            a("s_cselect_b32 s18, s46, 0")
            a("s_cselect_b32 s22, s47, 0")
        c.advT = advT
        if chain_in:
            def peers_in(vl, vd):
                a(f"v_and_b32 v19, 3, v{vl}")
                a(f"v_lshrrev_b32 v{vd}, 2, v{vl}")
                a(f"v_lshl_add_u32 v{vd}, v19, 3, v{vd}")
                a("s_andn2_b32 s48, s2, 31")
                a("s_lshl_b32 s49, s33, 1")
                a("s_add_u32 s48, s48, s49")
                a(f"v_add_u32 v{vd}, s48, v{vd}")
            c.pre_T = lambda: wflag_wait(a, 32, 4 if fuse_ln else 3, 28, name + "_in", 8, peers_in)
        gemm_prologue_and_loop(a, c, name)
        a("s_waitcnt vmcnt(0)")
        a("s_barrier")
        a("s_mul_i32 s48, s32, 9216")
        a("s_xor_b32 s49, s32, 4")
        a("s_mul_i32 s49, s49, 9216")
        a("v_lshlrev_b32 v3, 4, v2")
        a("v_add_u32 v4, s49, v3")
        a("v_add_u32 v3, s48, v3")
        a("s_cmp_eq_u32 s37, 1")
        a(f"s_cbranch_scc1 L_{name}_e1")
        for nt in range(9):
            a(f"ds_write_b128 v3, {vr(c.acc(nt, 1), 4)} offset:{nt * 1024}")
        a(f"s_branch L_{name}_e2")
        a.label(f"L_{name}_e1")
        for nt in range(9):
            a(f"ds_write_b128 v3, {vr(c.acc(nt, 0), 4)} offset:{nt * 1024}")
        for nt in range(9):
            for r_ in range(4):
                a(f"v_mov_b32 {vr(c.acc(nt, 0) + r_)}, {vr(c.acc(nt, 1) + r_)}")
        a.label(f"L_{name}_e2")
        a("s_waitcnt lgkmcnt(0)")
        a("s_barrier")
        for nt in range(9):
            a(f"ds_read_b128 {vr(c.acc(nt, 1), 4)}, v4 offset:{nt * 1024}")
        a(f"s_mul_i32 s48, s33, {2048 * 1280}")
        a("s_lshl_b32 s49, s34, 7")
        a("s_lshl_b32 s50, s36, 5")
        a("s_add_u32 s49, s49, s50")
        a("s_lshl_b32 s50, s37, 4")
        a("s_add_u32 s49, s49, s50")
        a("s_mul_i32 s49, s49, 1280")
        a("s_add_u32 s48, s48, s49")
        a("s_mul_i32 s49, s35, 320")
        a("s_add_u32 s48, s48, s49")
        a(f"s_add_u32 s48, s48, {PART}")
        a("v_mul_u32_u24 v5, 1280, v62")
        a("v_lshl_add_u32 v6, v61, 3, v5")
        a("v_lshl_add_u32 v5, v61, 4, v5")
        for nt in range(9):
            a(f"s_waitcnt lgkmcnt({8 - nt})")
            for r_ in range(4):
                a(f"v_add_f32 {vr(c.acc(nt, 0) + r_)}, {vr(c.acc(nt, 0) + r_)}, {vr(c.acc(nt, 1) + r_)}")
            t = 8 + 4 * (nt // 2) + 2 * (nt % 2)
            a(f"v_cvt_pk_bf16_f32 v{t}, v{c.acc(nt, 0)}, v{c.acc(nt, 0) + 1}")
            a(f"v_cvt_pk_bf16_f32 v{t + 1}, v{c.acc(nt, 0) + 2}, v{c.acc(nt, 0) + 3}")
            if nt % 2 == 1:
                a(f"buffer_store_dwordx4 v[{t - 2}:{t + 1}], v5, s[28:31], s48 offen offset:{(nt // 2) * 64} sc1")
            if nt == 8:
                a(f"buffer_store_dwordx2 v[{t}:{t + 1}], v6, s[28:31], s48 offen offset:256 sc1")
        if fuse_ln is not None:
            a("s_waitcnt vmcnt(0)")
            stamp(a, 3)
            a("s_barrier")
            ph = 0 if fuse_ln else 1
            wflag_set(a, 32, ph, 28, name)

            def peers(vl, vd):
                a(f"v_lshrrev_b32 v19, 2, v{vl}")
                a(f"v_and_b32 v{vd}, 3, v{vl}")
                a(f"v_lshlrev_b32 v{vd}, 1, v{vd}")
                a(f"v_lshl_add_u32 v{vd}, v19, 3, v{vd}")
                a("s_andn2_b32 s48, s2, 31")
                a("s_lshr_b32 s49, s34, 3")
                a("s_add_u32 s48, s48, s49")
                a(f"v_add_u32 v{vd}, s48, v{vd}")
            wflag_wait(a, 32, ph, 28, name, 16, peers)
            stamp(a, 4)
            a("s_lshl_b32 s49, s35, 2")
            a("s_add_u32 s49, s49, s33")
            a("s_lshl_b32 s49, s49, 3")
            a("s_add_u32 s49, s49, s32")
            a("s_lshl_b32 s48, s34, 7")
            a("s_add_u32 s49, s49, s48")
            reduce_body(a, fuse_ln, " sc1", PART, " sc1" if chain_out else "")
            if chain_out:
                a("s_waitcnt vmcnt(0)")
                if STAMPS:
                    stamp(a, 5)
                    stamp_flush(a, 8, 1, 2, 32, s_t=70, kid=kid)
                a("s_barrier")
                wflag_set(a, 32, 2, 28, name + "_out")
                return
            if STAMPS:
                a("s_waitcnt vmcnt(0)")
                stamp(a, 5)
                stamp_flush(a, 8, 1, 2, 32, s_t=70, kid=kid)
        elif STAMPS:
            a("s_waitcnt vmcnt(0)")
            stamp(a, 3)
            stamp(a, 4); stamp(a, 5)
            stamp_flush(a, 8, 1, 2, 32, s_t=70, kid=kid)
        a.label(f"L_{name}_end")
        a("s_endpgm")
        return name, "grid=(256,1,1) block=(512,1,1) lds=139264", 256
    return g


gen_k3 = gen_splitk("k3_oproj_kernel", KA_WO, CTX_OFF, 16, 2)
gen_k6 = gen_splitk("k6_down_kernel", KA_WD, ACT_OFF, 18, 5)
gen_k34 = gen_splitk("k34_kernel", KA_WO, CTX_OFF, 16, 2, fuse_ln=True)
gen_k67 = gen_splitk("k67_kernel", KA_WD, ACT_OFF, 18, 5, fuse_ln=False)


def reduce_body(a, do_ln, LF='', PART=PART_OFF, SF=''):
    if True:
        a("v_lshrrev_b32 v3, 1, v2")
        a("v_lshlrev_b32 v3, 4, v3")
        a("v_and_b32 v4, 1, v2")
        a("v_lshl_add_u32 v3, v4, 2, v3")
        div18(a, 6, 7, 2, 8)
        a("v_mul_u32_u24 v6, 320, v6")
        a("v_lshl_add_u32 v4, v7, 4, v6")
        a("v_add_u32 v8, 64, v2")
        a(f"v_lshlrev_b32 v9, 4, v2")
        a(f"v_add_u32 v9, {3 * 320 + 160}, v9")
        a("v_lshlrev_b32 v5, 1, v3")
        a("s_mul_i32 s50, s49, 1280")
        a(f"s_add_u32 s50, s50, {PART}")
        a("s_mul_i32 s51, s49, 1152")
        a("s_waitcnt lgkmcnt(0)")
        if not LF:
            stamp(a, 0)
        make_srd(a, 24, "s4", "s5", 2048 * 1152)
        make_srd(a, 28, "s12", "s13", WS_BYTES)
        for i in range(80, 120):
            a(f"v_mov_b32 v{i}, 0")
        for ks in range(4):
            b = 88 + 8 * ks
            a(f"buffer_load_dwordx4 v[{b}:{b + 3}], v4, s[28:31], s50 offen{LF}")
            a("s_mov_b64 exec, 0xff")
            a(f"buffer_load_dwordx4 v[{b + 4}:{b + 7}], v9, s[28:31], s50 offen{LF}")
            a("s_mov_b64 exec, -1")
            if ks < 3:
                a(f"s_add_u32 s50, s50, {2048 * 1280}")
        if do_ln:
            rs, so = "s[24:27]", "s51"
        else:
            a(f"s_add_u32 s52, s51, {H_OFF}")
            rs, so = "s[28:31]", "s52"
        a(f"buffer_load_dwordx2 v[80:81], v5, {rs}, {so} offen")
        a(f"buffer_load_dwordx2 v[82:83], v5, {rs}, {so} offen offset:16")
        a("s_mov_b64 exec, 0xff")
        a(f"buffer_load_dwordx2 v[84:85], v5, {rs}, {so} offen offset:1024")
        a(f"buffer_load_dwordx2 v[86:87], v5, {rs}, {so} offen offset:1040")
        a("s_mov_b64 exec, -1")
        a("s_waitcnt vmcnt(0)")
        for ks in range(4):
            for i in range(8):
                a(f"v_lshlrev_b32 v{16 + 16 * ks + 2 * i}, 16, v{88 + 8 * ks + i}")
                a(f"v_and_b32 v{17 + 16 * ks + 2 * i}, 0xffff0000, v{88 + 8 * ks + i}")
        for i in range(16):
            a(f"v_add_f32 v{16 + i}, v{16 + i}, v{32 + i}")
            a(f"v_add_f32 v{48 + i}, v{48 + i}, v{64 + i}")
        for i in range(16):
            a(f"v_add_f32 v{16 + i}, v{16 + i}, v{48 + i}")
        for i in range(8):
            a(f"v_cvt_pk_bf16_f32 v6, v{16 + 2 * i}, v{17 + 2 * i}")
            a(f"v_lshlrev_b32 v{16 + 2 * i}, 16, v6")
            a(f"v_and_b32 v{17 + 2 * i}, 0xffff0000, v6")
            a(f"v_lshlrev_b32 v6, 16, v{80 + i}")
            a(f"v_and_b32 v7, 0xffff0000, v{80 + i}")
            a(f"v_add_f32 v{16 + 2 * i}, v{16 + 2 * i}, v6")
            a(f"v_add_f32 v{17 + 2 * i}, v{17 + 2 * i}, v7")
            a(f"v_cvt_pk_bf16_f32 v{80 + i}, v{16 + 2 * i}, v{17 + 2 * i}")
        if do_ln:
            a(f"s_add_u32 s52, s51, {H_OFF}")
            rs, so = "s[28:31]", "s52"
        else:
            rs, so = "s[24:27]", "s51"
        OF = ENV("OUTF", "") if not do_ln else ENV("HF", "")
        a(f"buffer_store_dwordx2 v[80:81], v5, {rs}, {so} offen{OF}")
        a(f"buffer_store_dwordx2 v[82:83], v5, {rs}, {so} offen offset:16{OF}")
        a("s_mov_b64 exec, 0xff")
        a(f"buffer_store_dwordx2 v[84:85], v5, {rs}, {so} offen offset:1024{OF}")
        a(f"buffer_store_dwordx2 v[86:87], v5, {rs}, {so} offen offset:1040{OF}")
        a("s_mov_b64 exec, -1")
        if do_ln:
            for i in range(8):
                a(f"v_lshlrev_b32 v{20 + 2 * i}, 16, v{80 + i}")
                a(f"v_and_b32 v{21 + 2 * i}, 0xffff0000, v{80 + i}")
            a("v_add_f32 v36, v20, v21")
            for i in range(22, 36):
                a(f"v_add_f32 v36, v36, v{i}")
            wave_sum(a, 36, 37, 38)
            a(f"v_mul_f32 v36, {1.0 / 576.0!r}, v36")
            a("v_mov_b32 v39, 0")
            for i in range(20, 28):
                a(f"v_sub_f32 v37, v{i}, v36")
                a("v_fmac_f32 v39, v37, v37")
            a("s_mov_b64 exec, 0xff")
            for i in range(28, 36):
                a(f"v_sub_f32 v37, v{i}, v36")
                a("v_fmac_f32 v39, v37, v37")
            a("s_mov_b64 exec, -1")
            wave_sum(a, 39, 37, 38)
            a(f"v_mul_f32 v39, {1.0 / 576.0!r}, v39")
            round_bf16(a, 39, 37)
            a("v_add_f32 v39, 0x3727c5ac, v39")
            round_bf16(a, 39, 37)
            a("v_sqrt_f32 v39, v39")
            a("s_nop 0")
            round_bf16(a, 39, 37)
            a("v_rcp_f32 v39, v39")
            round_bf16(a, 36, 37)
            for i in range(8):
                a(f"v_sub_f32 v{20 + 2 * i}, v{20 + 2 * i}, v36")
                a(f"v_sub_f32 v{21 + 2 * i}, v{21 + 2 * i}, v36")
                a(f"v_cvt_pk_bf16_f32 v37, v{20 + 2 * i}, v{21 + 2 * i}")
                a(f"v_lshlrev_b32 v{20 + 2 * i}, 16, v37")
                a(f"v_and_b32 v{21 + 2 * i}, 0xffff0000, v37")
                a(f"v_mul_f32 v{20 + 2 * i}, v{20 + 2 * i}, v39")
                a(f"v_mul_f32 v{21 + 2 * i}, v{21 + 2 * i}, v39")
                a(f"v_cvt_pk_bf16_f32 v{8 + i}, v{20 + 2 * i}, v{21 + 2 * i}")
            a("v_lshrrev_b32 v37, 2, v2")
            a("v_lshlrev_b32 v37, 17, v37")
            a("v_and_b32 v38, 3, v2")
            a("v_lshl_add_u32 v37, v38, 4, v37")
            a("s_lshl_b32 s50, s49, 6")
            a(f"s_add_u32 s50, s50, {HN_OFF}")
            a(f"buffer_store_dwordx4 v[8:11], v37, s[28:31], s50 offen{SF}")
            a(f"s_add_u32 s50, s50, {16 * 131072}")
            a("s_mov_b64 exec, 0xff")
            a(f"buffer_store_dwordx4 v[12:15], v37, s[28:31], s50 offen{SF}")
            a("s_mov_b64 exec, -1")


def gen_reduce(name, do_ln):
    def g(a):
        kernel_header(a, name)
        a("s_cmp_ge_u32 s2, 256")
        a(f"s_cbranch_scc1 L_{name}_end")
        a(f"s_load_dwordx2 s[4:5], s[0:1], {KA_X if do_ln else KA_OUT}")
        a(f"s_load_dwordx2 s[12:13], s[0:1], {KA_WS}")
        a("v_lshrrev_b32 v1, 6, v0")
        a("v_and_b32 v2, 63, v0")
        a("s_nop 0")
        a("v_readfirstlane_b32 s32, v1")
        a("s_lshl_b32 s49, s2, 3")
        a("s_add_u32 s49, s49, s32")
        reduce_body(a, do_ln)
        if STAMPS:
            a("s_waitcnt vmcnt(0)")
            stamp(a, 1)
            stamp_flush(a, 2, 1, 2, 32, s_t=70, kid=(3 if do_ln else 6))
        a.label(f"L_{name}_end")
        a("s_endpgm")
        return name, "grid=(256,1,1) block=(512,1,1) lds=16384", 120
    return g


gen_k4 = gen_reduce("k4_ln2_kernel", True)
gen_k7 = gen_reduce("k7_out_kernel", False)


def gen_k5(a, chain=False):
    name = "k5_ffn1_kernel"
    STF = " sc1" if chain else globals()["STF"]
    if not chain:
        kernel_header(a, name)
        a("s_cmp_ge_u32 s2, 256")
        a(f"s_cbranch_scc1 L_{name}_end")
    a(f"s_load_dwordx4 s[8:11], s[0:1], {KA_WG}")
    a(f"s_load_dwordx2 s[12:13], s[0:1], {KA_WS}")
    a("v_lshrrev_b32 v1, 6, v0")
    a("v_and_b32 v2, 63, v0")
    a("s_nop 0")
    a("v_readfirstlane_b32 s32, v1")
    a("s_and_b32 s35, s2, 7")
    a("s_lshl_b32 s35, s35, 2")
    a("s_lshr_b32 s48, s2, 3")
    a("s_and_b32 s48, s48, 3")
    a("s_add_u32 s35, s35, s48")
    a("s_lshr_b32 s34, s2, 5")
    a("s_and_b32 s36, s32, 3")
    a("s_lshr_b32 s37, s32, 2")
    a("s_waitcnt lgkmcnt(0)")
    stamp(a, 0)
    a("s_cmp_eq_u32 s37, 1")
    a("s_cselect_b32 s8, s10, s8")
    a("s_cselect_b32 s9, s11, s9")
    make_srd(a, 20, "s8", "s9", 576 * 9216)
    a(f"s_mov_b32 s47, {576 * 9216}")
    make_srd(a, 16, "s12", "s13", WS_BYTES)
    a(f"s_mov_b32 s46, {WS_BYTES}")
    make_srd(a, 28, "s12", "s13", WS_BYTES)
    TS, WS_ = 16384, 18432
    WBASE = 4 * TS
    vA0, vW0, vW1, vW2, vT, vWa, vWb = 64, 66, 67, 68, 69, 70, 71
    a("s_sub_u32 s59, 15, s34")
    a("s_cmp_eq_u32 s37, 1")
    a("s_cselect_b32 s59, s59, s34")
    a("s_lshl_b32 s59, s59, 7")
    a("s_lshl_b32 s48, s36, 5")
    a("s_add_u32 s59, s59, s48")
    a("v_lshrrev_b32 v20, 2, v2")
    a("v_add_u32 v20, s59, v20")
    a("v_lshlrev_b32 v20, 6, v20")
    a("v_lshrrev_b32 v21, 4, v2")
    a("v_sub_u32 v21, 0, v21")
    a("v_and_b32 v21, 3, v21")
    a("v_and_b32 v22, 3, v2")
    a("v_xor_b32 v21, v21, v22")
    a(f"v_lshl_add_u32 {vr(vA0)}, v21, 4, v20")
    a(f"s_mov_b32 s38, {HN_OFF}")
    for j, vd in ((0, vW0), (1, vW1), (2, vW2)):
        a(f"v_add_u32 v20, {64 * j}, v2")
        div18(a, 21, 22, 20, 23)
        a("v_and_b32 v23, 1, v22")
        a("v_bfe_u32 v24, v22, 1, 1")
        a("v_lshl_or_b32 v23, v23, 1, v24")
        a("v_and_b32 v24, 28, v22")
        a("v_or_b32 v23, v23, v24")
        a("v_cmp_gt_u32 vcc, 16, v22")
        a("s_nop 1")
        a("v_cndmask_b32 v22, v22, v23, vcc")
        a("s_lshl_b32 s48, s36, 3")
        a("v_add_u32 v21, s48, v21")
        a("v_mul_u32_u24 v21, 9216, v21")
        a(f"v_lshl_add_u32 {vr(vd)}, v22, 4, v21")
    a("s_mul_i32 s39, s35, 288")
    a("s_lshl_b32 s40, s32, 11")
    a("s_mul_i32 s41, s32, 2304")
    a(f"s_add_u32 s41, s41, {WBASE}")
    a("v_and_b32 v62, 15, v2")
    a("v_lshrrev_b32 v61, 4, v2")
    a("v_lshrrev_b32 v20, 2, v62")
    a("v_sub_u32 v20, 0, v20")
    a("v_and_b32 v20, 3, v20")
    a("v_xor_b32 v20, v20, v61")
    a("s_lshl_b32 s48, s32, 5")
    a("v_add_u32 v21, s48, v62")
    a("v_lshlrev_b32 v21, 6, v21")
    a(f"v_lshl_add_u32 {vr(vT)}, v20, 4, v21")
    a("v_lshrrev_b32 v20, 5, v2")
    a("v_lshlrev_b32 v20, 4, v20")
    a("v_bfe_u32 v21, v2, 2, 3")
    a("v_add_u32 v20, v20, v21")
    a("v_mul_u32_u24 v20, 288, v20")
    a(f"v_add_u32 v20, {WBASE}, v20")
    a("v_and_b32 v21, 3, v2")
    a(f"v_lshl_add_u32 {vr(vWa)}, v21, 3, v20")
    a("v_and_b32 v22, 1, v2")
    a("v_lshl_add_u32 v20, v22, 4, v20")
    a("v_bfe_u32 v22, v2, 1, 1")
    a(f"v_lshl_add_u32 {vr(vWb)}, v22, 3, v20")
    a("s_mov_b32 s44, 0")
    c = GemmCfg()
    c.TN, c.TM, c.R, c.AHEAD, c.NSTEPS = 18, 2, 6, 5, 18
    c.DFRAC = float(ENV("DF5", "0.5"))
    c.NSW, c.WSLOT, c.NST, c.TSLOT, c.TPER = 4, WS_, 4, TS, 1
    c.TPOS = 0
    c.DMA_EVERY = 2
    c.swap = False
    c.acc = lambda nt, tt: 112 + (nt * 2 + tt) * 4
    c.tfrag = lambda buf, tt: 96 + buf * 8 + tt * 4
    c.wfrag = lambda r_: 72 + r_ * 4

    def wread(nt):
        pl, u = nt // 9, nt % 9
        r_ = vWb if u == 8 else vWa
        return [(r_, pl * 9216 + u * 32), (r_, pl * 9216 + u * 32 + 8 * 288)]
    c.wread = wread
    c.wadv = lambda nt: [vWa] if nt == 16 else ([vWb] if nt == 17 else [])
    c.tread = lambda q, tt: (vT, tt * 1024)
    c.tadv = lambda q: [vT]
    c.s_dA, c.s_dB, c.s_sl, c.s_dmaW, c.s_cnt, c.s_slotW = 50, 51, 52, 53, 45, 54
    c.s_dT, c.s_slT, c.s_dmaT, c.s_slotT = 55, 56, 57, 58

    def dmaW():
        def d0():
            a("s_add_u32 m0, s53, s41")
            a("s_nop 0")
            a(f"buffer_load_dwordx4 {vr(vW0)}, s[20:23], s39 offen lds")

        def d1():
            a("s_add_u32 m0, m0, 1024")
            a("s_nop 0")
            a(f"buffer_load_dwordx4 {vr(vW1)}, s[20:23], s39 offen lds")

        def d2():
            a("s_add_u32 m0, m0, 1024")
            a("s_mov_b64 exec, 0xffff")
            a(f"buffer_load_dwordx4 {vr(vW2)}, s[20:23], s39 offen lds")
            a("s_mov_b64 exec, -1")
        return [d0, d1, d2]
    c.dmaW = dmaW

    def dmaT(h):
        def d0():
            a("s_add_u32 m0, s57, s40")
            a("s_nop 0")
            a(f"buffer_load_dwordx4 {vr(vA0)}, s[16:19], s38 offen lds")

        def d1():
            a(f"buffer_load_dwordx4 {vr(vA0)}, s[16:19], s38 offen offset:1024 lds")
        return [d0, d1]
    c.dmaT = dmaT

    def advW():
        a(f"s_add_u32 s39, s39, {32 * 9216}")
    c.advW = advW

    def advT():
        a("s_add_u32 s38, s38, 131072")
        a("s_add_u32 s44, s44, 1")
        a(f"s_cmp_lt_u32 s44, {c.NSTEPS}")
        a("s_cselect_b32 s18, s46, 0")
        a("s_cselect_b32 s22, s47, 0")
    c.advT = advT
    if chain:
        def peers_in(vl, vd):
            a("s_andn2_b32 s48, s2, 31")
            a(f"v_add_u32 v{vd}, s48, v{vl}")
        c.pre_T = lambda: wflag_wait(a, 32, 2, 28, name + "_in", 32, peers_in)
    gemm_prologue_and_loop(a, c, name)
    a(f"s_mov_b32 s48, {-math.log2(math.e)!r}")

    def act4(g0, u0):
        for r_ in range(4):
            a(f"v_mul_f32 v{20 + r_}, s48, v{g0 + r_}")
        for r_ in range(4):
            a(f"v_exp_f32 v{20 + r_}, v{20 + r_}")
        for r_ in range(4):
            a(f"v_add_f32 v{20 + r_}, 1.0, v{20 + r_}")
        for r_ in range(4):
            a(f"v_rcp_f32 v{20 + r_}, v{20 + r_}")
        for r_ in range(4):
            a(f"v_mul_f32 v{g0 + r_}, v{g0 + r_}, v{u0 + r_}")
        for r_ in range(4):
            a(f"v_mul_f32 v{g0 + r_}, v{g0 + r_}, v{20 + r_}")
    a("s_lshl_b32 s49, s59, 5")
    a("s_mul_i32 s50, s35, 9")
    a("s_lshl_b32 s50, s50, 16")
    a("s_add_u32 s49, s49, s50")
    a(f"s_add_u32 s49, s49, {ACT_OFF}")
    a("v_lshlrev_b32 v3, 5, v62")
    a("v_lshrrev_b32 v4, 1, v61")
    a("v_and_b32 v5, 1, v61")
    a("v_lshl_add_u32 v6, v5, 4, v3")
    a("v_lshl_add_u32 v6, v4, 16, v6")
    a("v_lshl_add_u32 v7, v61, 3, v3")
    k = 0
    for P_ in range(4):
        for tt in range(2):
            t = 32 + (k % 4) * 4
            k += 1
            for T_ in range(2):
                g0, u0 = c.acc(2 * P_ + T_, tt), c.acc(9 + 2 * P_ + T_, tt)
                act4(g0, u0)
                a(f"v_cvt_pk_bf16_f32 v{t + 2 * T_}, v{g0}, v{g0 + 1}")
                a(f"v_cvt_pk_bf16_f32 v{t + 2 * T_ + 1}, v{g0 + 2}, v{g0 + 3}")
            a(f"buffer_store_dwordx4 v[{t}:{t + 3}], v6, s[28:31], s49 offen offset:{tt * 512}{STF}")
        a("s_add_u32 s49, s49, 131072")
    for tt in range(2):
        t = 32 + (k % 4) * 4
        k += 1
        g0, u0 = c.acc(8, tt), c.acc(17, tt)
        act4(g0, u0)
        a(f"v_cvt_pk_bf16_f32 v{t}, v{g0}, v{g0 + 1}")
        a(f"v_cvt_pk_bf16_f32 v{t + 1}, v{g0 + 2}, v{g0 + 3}")
        a(f"buffer_store_dwordx2 v[{t}:{t + 1}], v7, s[28:31], s49 offen offset:{tt * 512}{STF}")
    if STAMPS:
        a("s_waitcnt vmcnt(0)")
        stamp(a, 3)
        stamp(a, 4); stamp(a, 5)
        stamp_flush(a, 8, 1, 2, 32, s_t=70, kid=4)
    if chain:
        a("s_waitcnt vmcnt(0)")
        a("s_barrier")
        wflag_set(a, 32, 3, 28, name + "_out")
        return
    a.label(f"L_{name}_end")
    a("s_endpgm")
    return name, "grid=(256,1,1) block=(512,1,1) lds=139264", 256


def gen_k37(a):
    gen_splitk("k37_kernel", KA_WO, CTX_OFF, 16, 2, fuse_ln=True, chain_out=True, endlabel="L_k67c_end")(a)
    gen_k5(a, chain=True)
    gen_splitk("k67c", KA_WD, ACT_OFF, 18, 5, fuse_ln=False, chain_in=True)(a)
    return "k37_kernel", "grid=(256,1,1) block=(512,1,1) lds=139264", 256


def gen_k27(a):
    from gen_attn import gen_k2
    ool = gen_k2(a, chain=True)
    gen_splitk("k34c", KA_WO, CTX_OFF, 16, 2, fuse_ln=True, chain_in=True, chain_out=True)(a)
    gen_k5(a, chain=True)
    gen_splitk("k67c", KA_WD, ACT_OFF, 18, 5, fuse_ln=False, chain_in=True)(a)
    a.L += ool.L
    return "k27_kernel", "grid=(256,1,1) block=(512,1,1) lds=163840", 256


def gen_mega(a):
    from gen_attn import gen_k2
    stores = gen_k1(a, fused="mega_kernel")
    ool = gen_k2(a, k1_stores=stores, chain=True)
    gen_splitk("k34c", KA_WO, CTX_OFF, 16, 2, fuse_ln=True, chain_in=True, chain_out=True)(a)
    gen_k5(a, chain=True)
    gen_splitk("k67c", KA_WD, ACT_OFF, 18, 5, fuse_ln=False, chain_in=True)(a)
    a.L += ool.L
    a.label("L_code_end")
    return "mega_kernel", "grid=(256,1,1) block=(512,1,1) lds=163840", 256
```

```python
import math
from gen_common import *
from gen_gemm import *


def div18(a, vq, vr_, vin, vtmp):
    a(f"v_mul_u32_u24 {vr(vq)}, 3641, {vr(vin)}")
    a(f"v_lshrrev_b32 {vr(vq)}, 16, {vr(vq)}")
    a(f"v_mul_u32_u24 {vr(vtmp)}, 18, {vr(vq)}")
    a(f"v_sub_u32 {vr(vr_)}, {vr(vin)}, {vr(vtmp)}")


def gen_splitk(name, KA_W, A_OFF, NSTAGE, kid, fuse_ln=None, chain_in=False, chain_out=False, endlabel=None):
    PART = PART2_OFF if fuse_ln is False else PART_OFF

    def g(a):
        if not chain_in:
            kernel_header(a, name)
            a("s_cmp_ge_u32 s2, 256")
            a(f"s_cbranch_scc1 {endlabel or ('L_' + name + '_end')}")
        a(f"s_load_dwordx2 s[8:9], s[0:1], {KA_W}")
        a(f"s_load_dwordx2 s[12:13], s[0:1], {KA_WS}")
        if fuse_ln is not None:
            dbg_setup(a)
            a(f"s_load_dwordx2 s[4:5], s[0:1], {KA_X if fuse_ln else KA_OUT}")
        a("v_lshrrev_b32 v1, 6, v0")
        a("v_and_b32 v2, 63, v0")
        a("s_nop 0")
        a("v_readfirstlane_b32 s32, v1")
        a("s_and_b32 s48, s2, 7")
        a("s_lshr_b32 s49, s2, 3")
        a("s_lshr_b32 s33, s48, 1")
        a("s_lshr_b32 s50, s49, 2")
        a("s_sub_u32 s34, 15, s50")
        a("s_bitcmp1_b32 s48, 0")
        a("s_cselect_b32 s34, s34, s50")
        a("s_and_b32 s35, s49, 3")
        a("s_and_b32 s36, s32, 3")
        a("s_lshr_b32 s37, s32, 2")
        a("s_waitcnt lgkmcnt(0)")
        stamp(a, 0)
        KTOT = NSTAGE * 64 * 4
        make_srd(a, 20, "s8", "s9", KTOT * 1152)
        a(f"s_mov_b32 s47, {KTOT * 1152}")
        make_srd(a, 16, "s12", "s13", WS_BYTES)
        a(f"s_mov_b32 s46, {WS_BYTES}")
        make_srd(a, 28, "s12", "s13", WS_BYTES)
        if fuse_ln is not None:
            dbg_srd(a)
        TS, WS_ = 16384, 18432
        WBASE = 4 * TS
        vA0, vA1, vW0, vW1, vW2, vT, vWa, vWb = 64, 65, 66, 67, 68, 70, 71, 69
        a("s_lshr_b32 s48, s32, 1")
        a("s_lshl_b32 s48, s48, 16")
        a("s_and_b32 s49, s32, 1")
        a("s_lshl_b32 s49, s49, 11")
        a("s_add_u32 s48, s48, s49")
        a("v_lshlrev_b32 v20, 4, v2")
        a(f"v_add_u32 {vr(vA0)}, s48, v20")
        a(f"s_mul_i32 s38, s33, {NSTAGE * 262144}")
        a("s_lshl_b32 s48, s34, 12")
        a("s_add_u32 s38, s38, s48")
        a(f"s_add_u32 s38, s38, {A_OFF}")
        for j, vd in ((0, vW0), (1, vW1), (2, vW2)):
            a(f"v_add_u32 v20, {64 * j}, v2")
            div18(a, 21, 22, 20, 23)
            a("v_and_b32 v23, 1, v22")
            a("v_bfe_u32 v24, v22, 1, 1")
            a("v_lshl_or_b32 v23, v23, 1, v24")
            a("v_and_b32 v24, 28, v22")
            a("v_or_b32 v23, v23, v24")
            a("v_cmp_gt_u32 vcc, 16, v22")
            a("s_nop 1")
            a("v_cndmask_b32 v22, v22, v23, vcc")
            a("s_lshl_b32 s48, s32, 3")
            a("v_add_u32 v21, s48, v21")
            a("v_mul_u32_u24 v21, 1152, v21")
            a(f"v_lshl_add_u32 {vr(vd)}, v22, 4, v21")
        a(f"s_mul_i32 s39, s33, {NSTAGE * 64 * 1152}")
        a("s_mul_i32 s48, s35, 288")
        a("s_add_u32 s39, s39, s48")
        a("s_lshl_b32 s40, s32, 11")
        a("s_mul_i32 s41, s32, 2304")
        a(f"s_add_u32 s41, s41, {WBASE}")
        a("v_and_b32 v62, 15, v2")
        a("v_lshrrev_b32 v61, 4, v2")
        a("v_lshrrev_b32 v20, 1, v61")
        a("s_lshl_b32 s48, s37, 1")
        a("v_add_u32 v20, s48, v20")
        a("v_lshlrev_b32 v20, 12, v20")
        a("s_lshl_b32 s48, s36, 5")
        a("v_add_u32 v21, s48, v62")
        a("v_lshl_add_u32 v20, v21, 5, v20")
        a("v_and_b32 v21, 1, v61")
        a(f"v_lshl_add_u32 {vr(vT)}, v21, 4, v20")
        a("v_lshrrev_b32 v20, 5, v2")
        a("v_lshlrev_b32 v20, 4, v20")
        a("v_bfe_u32 v21, v2, 2, 3")
        a("v_add_u32 v20, v20, v21")
        a("s_lshl_b32 s48, s37, 5")
        a("v_add_u32 v20, s48, v20")
        a("v_mul_u32_u24 v20, 288, v20")
        a(f"v_add_u32 v20, {WBASE}, v20")
        a("v_and_b32 v21, 3, v2")
        a(f"v_lshl_add_u32 {vr(vWa)}, v21, 3, v20")
        a("v_and_b32 v22, 1, v2")
        a("v_lshl_add_u32 v20, v22, 4, v20")
        a("v_bfe_u32 v22, v2, 1, 1")
        a(f"v_lshl_add_u32 {vr(vWb)}, v22, 3, v20")
        a("s_mov_b32 s44, 0")
        c = GemmCfg()
        c.TN, c.TM, c.R, c.AHEAD, c.NSTEPS = 9, 2, int(ENV('SKR', '6')), int(ENV('SKA', '5')), NSTAGE
        c.NSW, c.WSLOT, c.NST, c.TSLOT, c.TPER = 4, WS_, 4, TS, 1
        c.TPOS = 0
        c.DMA_EVERY = 2
        c.swap = False
        c.acc = lambda nt, tt: 128 + (nt * 2 + tt) * 4
        c.tfrag = lambda buf, tt: 112 + buf * 8 + tt * 4
        c.wfrag = lambda r_: 200 + r_ * 4
        c.wread = lambda nt: [(vWb if nt == 8 else vWa, nt * 32), (vWb if nt == 8 else vWa, nt * 32 + 8 * 288)]
        c.wadv = lambda nt: [vWa] if nt == 7 else ([vWb] if nt == 8 else [])
        c.tread = lambda q, tt: (vT, tt * 512)
        c.tadv = lambda q: [vT]
        c.s_dA, c.s_dB, c.s_sl, c.s_dmaW, c.s_cnt, c.s_slotW = 50, 51, 52, 53, 45, 54
        c.s_dT, c.s_slT, c.s_dmaT, c.s_slotT = 55, 56, 57, 58

        def dmaW():
            def d0():
                a("s_add_u32 m0, s53, s41")
                a("s_nop 0")
                a(f"buffer_load_dwordx4 {vr(vW0)}, s[20:23], s39 offen lds")

            def d1():
                a("s_add_u32 m0, m0, 1024")
                a("s_nop 0")
                a(f"buffer_load_dwordx4 {vr(vW1)}, s[20:23], s39 offen lds")

            def d2():
                a("s_add_u32 m0, m0, 1024")
                a("s_mov_b64 exec, 0xffff")
                a(f"buffer_load_dwordx4 {vr(vW2)}, s[20:23], s39 offen lds")
                a("s_mov_b64 exec, -1")
            return [d0, d1, d2]
        c.dmaW = dmaW

        def dmaT(h):
            def d0():
                a("s_add_u32 m0, s57, s40")
                a("s_nop 0")
                a(f"buffer_load_dwordx4 {vr(vA0)}, s[16:19], s38 offen lds")

            def d1():
                a(f"buffer_load_dwordx4 {vr(vA0)}, s[16:19], s38 offen offset:1024 lds")
            return [d0, d1]
        c.dmaT = dmaT

        def advW():
            a(f"s_add_u32 s39, s39, {64 * 1152}")
        c.advW = advW

        def advT():
            a("s_add_u32 s38, s38, 262144")
            a("s_add_u32 s44, s44, 1")
            a(f"s_cmp_lt_u32 s44, {NSTAGE}")
            a("s_cselect_b32 s18, s46, 0")
            a("s_cselect_b32 s22, s47, 0")
        c.advT = advT
        if chain_in:
            def peers_in(vl, vd):
                a(f"v_and_b32 v19, 3, v{vl}")
                a(f"v_lshrrev_b32 v{vd}, 2, v{vl}")
                a(f"v_lshl_add_u32 v{vd}, v19, 3, v{vd}")
                a("s_andn2_b32 s48, s2, 31")
                a("s_lshl_b32 s49, s33, 1")
                a("s_add_u32 s48, s48, s49")
                a(f"v_add_u32 v{vd}, s48, v{vd}")
            c.pre_T = lambda: wflag_wait(a, 32, 4 if fuse_ln else 3, 28, name + "_in", 8, peers_in)
        gemm_prologue_and_loop(a, c, name)
        a("s_waitcnt vmcnt(0)")
        a("s_barrier")
        a("s_mul_i32 s48, s32, 9216")
        a("s_xor_b32 s49, s32, 4")
        a("s_mul_i32 s49, s49, 9216")
        a("v_lshlrev_b32 v3, 4, v2")
        a("v_add_u32 v4, s49, v3")
        a("v_add_u32 v3, s48, v3")
        a("s_cmp_eq_u32 s37, 1")
        a(f"s_cbranch_scc1 L_{name}_e1")
        for nt in range(9):
            a(f"ds_write_b128 v3, {vr(c.acc(nt, 1), 4)} offset:{nt * 1024}")
        a(f"s_branch L_{name}_e2")
        a.label(f"L_{name}_e1")
        for nt in range(9):
            a(f"ds_write_b128 v3, {vr(c.acc(nt, 0), 4)} offset:{nt * 1024}")
        for nt in range(9):
            for r_ in range(4):
                a(f"v_mov_b32 {vr(c.acc(nt, 0) + r_)}, {vr(c.acc(nt, 1) + r_)}")
        a.label(f"L_{name}_e2")
        a("s_waitcnt lgkmcnt(0)")
        a("s_barrier")
        for nt in range(9):
            a(f"ds_read_b128 {vr(c.acc(nt, 1), 4)}, v4 offset:{nt * 1024}")
        a(f"s_mul_i32 s48, s33, {2048 * 1280}")
        a("s_lshl_b32 s49, s34, 7")
        a("s_lshl_b32 s50, s36, 5")
        a("s_add_u32 s49, s49, s50")
        a("s_lshl_b32 s50, s37, 4")
        a("s_add_u32 s49, s49, s50")
        a("s_mul_i32 s49, s49, 1280")
        a("s_add_u32 s48, s48, s49")
        a("s_mul_i32 s49, s35, 320")
        a("s_add_u32 s48, s48, s49")
        a(f"s_add_u32 s48, s48, {PART}")
        a("v_mul_u32_u24 v5, 1280, v62")
        a("v_lshl_add_u32 v6, v61, 3, v5")
        a("v_lshl_add_u32 v5, v61, 4, v5")
        for nt in range(9):
            a(f"s_waitcnt lgkmcnt({8 - nt})")
            for r_ in range(4):
                a(f"v_add_f32 {vr(c.acc(nt, 0) + r_)}, {vr(c.acc(nt, 0) + r_)}, {vr(c.acc(nt, 1) + r_)}")
            t = 8 + 4 * (nt // 2) + 2 * (nt % 2)
            a(f"v_cvt_pk_bf16_f32 v{t}, v{c.acc(nt, 0)}, v{c.acc(nt, 0) + 1}")
            a(f"v_cvt_pk_bf16_f32 v{t + 1}, v{c.acc(nt, 0) + 2}, v{c.acc(nt, 0) + 3}")
            if nt % 2 == 1:
                a(f"buffer_store_dwordx4 v[{t - 2}:{t + 1}], v5, s[28:31], s48 offen offset:{(nt // 2) * 64} sc1")
            if nt == 8:
                a(f"buffer_store_dwordx2 v[{t}:{t + 1}], v6, s[28:31], s48 offen offset:256 sc1")
        if fuse_ln is not None:
            a("s_waitcnt vmcnt(0)")
            stamp(a, 3)
            a("s_barrier")
            ph = 0 if fuse_ln else 1
            wflag_set(a, 32, ph, 28, name)

            def peers(vl, vd):
                a(f"v_lshrrev_b32 v19, 2, v{vl}")
                a(f"v_and_b32 v{vd}, 3, v{vl}")
                a(f"v_lshlrev_b32 v{vd}, 1, v{vd}")
                a(f"v_lshl_add_u32 v{vd}, v19, 3, v{vd}")
                a("s_andn2_b32 s48, s2, 31")
                a("s_lshr_b32 s49, s34, 3")
                a("s_add_u32 s48, s48, s49")
                a(f"v_add_u32 v{vd}, s48, v{vd}")
            wflag_wait(a, 32, ph, 28, name, 16, peers)
            stamp(a, 4)
            a("s_lshl_b32 s49, s35, 2")
            a("s_add_u32 s49, s49, s33")
            a("s_lshl_b32 s49, s49, 3")
            a("s_add_u32 s49, s49, s32")
            a("s_lshl_b32 s48, s34, 7")
            a("s_add_u32 s49, s49, s48")
            reduce_body(a, fuse_ln, " sc1", PART, " sc1" if chain_out else "")
            if chain_out:
                a("s_waitcnt vmcnt(0)")
                if STAMPS:
                    stamp(a, 5)
                    stamp_flush(a, 8, 1, 2, 32, s_t=70, kid=kid)
                a("s_barrier")
                wflag_set(a, 32, 2, 28, name + "_out")
                return
            if STAMPS:
                a("s_waitcnt vmcnt(0)")
                stamp(a, 5)
                stamp_flush(a, 8, 1, 2, 32, s_t=70, kid=kid)
        elif STAMPS:
            a("s_waitcnt vmcnt(0)")
            stamp(a, 3)
            stamp(a, 4); stamp(a, 5)
            stamp_flush(a, 8, 1, 2, 32, s_t=70, kid=kid)
        a.label(f"L_{name}_end")
        a("s_endpgm")
        return name, "grid=(256,1,1) block=(512,1,1) lds=139264", 256
    return g


gen_k3 = gen_splitk("k3_oproj_kernel", KA_WO, CTX_OFF, 16, 2)
gen_k6 = gen_splitk("k6_down_kernel", KA_WD, ACT_OFF, 18, 5)
gen_k34 = gen_splitk("k34_kernel", KA_WO, CTX_OFF, 16, 2, fuse_ln=True)
gen_k67 = gen_splitk("k67_kernel", KA_WD, ACT_OFF, 18, 5, fuse_ln=False)


def reduce_body(a, do_ln, LF='', PART=PART_OFF, SF=''):
    if True:
        a("v_lshrrev_b32 v3, 1, v2")
        a("v_lshlrev_b32 v3, 4, v3")
        a("v_and_b32 v4, 1, v2")
        a("v_lshl_add_u32 v3, v4, 2, v3")
        div18(a, 6, 7, 2, 8)
        a("v_mul_u32_u24 v6, 320, v6")
        a("v_lshl_add_u32 v4, v7, 4, v6")
        a("v_add_u32 v8, 64, v2")
        a(f"v_lshlrev_b32 v9, 4, v2")
        a(f"v_add_u32 v9, {3 * 320 + 160}, v9")
        a("v_lshlrev_b32 v5, 1, v3")
        a("s_mul_i32 s50, s49, 1280")
        a(f"s_add_u32 s50, s50, {PART}")
        a("s_mul_i32 s51, s49, 1152")
        a("s_waitcnt lgkmcnt(0)")
        if not LF:
            stamp(a, 0)
        make_srd(a, 24, "s4", "s5", 2048 * 1152)
        make_srd(a, 28, "s12", "s13", WS_BYTES)
        for i in range(80, 120):
            a(f"v_mov_b32 v{i}, 0")
        for ks in range(4):
            b = 88 + 8 * ks
            a(f"buffer_load_dwordx4 v[{b}:{b + 3}], v4, s[28:31], s50 offen{LF}")
            a("s_mov_b64 exec, 0xff")
            a(f"buffer_load_dwordx4 v[{b + 4}:{b + 7}], v9, s[28:31], s50 offen{LF}")
            a("s_mov_b64 exec, -1")
            if ks < 3:
                a(f"s_add_u32 s50, s50, {2048 * 1280}")
        if do_ln:
            rs, so = "s[24:27]", "s51"
        else:
            a(f"s_add_u32 s52, s51, {H_OFF}")
            rs, so = "s[28:31]", "s52"
        a(f"buffer_load_dwordx2 v[80:81], v5, {rs}, {so} offen")
        a(f"buffer_load_dwordx2 v[82:83], v5, {rs}, {so} offen offset:16")
        a("s_mov_b64 exec, 0xff")
        a(f"buffer_load_dwordx2 v[84:85], v5, {rs}, {so} offen offset:1024")
        a(f"buffer_load_dwordx2 v[86:87], v5, {rs}, {so} offen offset:1040")
        a("s_mov_b64 exec, -1")
        a("s_waitcnt vmcnt(0)")
        for ks in range(4):
            for i in range(8):
                a(f"v_lshlrev_b32 v{16 + 16 * ks + 2 * i}, 16, v{88 + 8 * ks + i}")
                a(f"v_and_b32 v{17 + 16 * ks + 2 * i}, 0xffff0000, v{88 + 8 * ks + i}")
        for i in range(16):
            a(f"v_add_f32 v{16 + i}, v{16 + i}, v{32 + i}")
            a(f"v_add_f32 v{48 + i}, v{48 + i}, v{64 + i}")
        for i in range(16):
            a(f"v_add_f32 v{16 + i}, v{16 + i}, v{48 + i}")
        for i in range(8):
            a(f"v_cvt_pk_bf16_f32 v6, v{16 + 2 * i}, v{17 + 2 * i}")
            a(f"v_lshlrev_b32 v{16 + 2 * i}, 16, v6")
            a(f"v_and_b32 v{17 + 2 * i}, 0xffff0000, v6")
            a(f"v_lshlrev_b32 v6, 16, v{80 + i}")
            a(f"v_and_b32 v7, 0xffff0000, v{80 + i}")
            a(f"v_add_f32 v{16 + 2 * i}, v{16 + 2 * i}, v6")
            a(f"v_add_f32 v{17 + 2 * i}, v{17 + 2 * i}, v7")
            a(f"v_cvt_pk_bf16_f32 v{80 + i}, v{16 + 2 * i}, v{17 + 2 * i}")
        if do_ln:
            a(f"s_add_u32 s52, s51, {H_OFF}")
            rs, so = "s[28:31]", "s52"
        else:
            rs, so = "s[24:27]", "s51"
        OF = ENV("OUTF", " nt") if not do_ln else ENV("HF", "")
        if not do_ln and ENV("OUT16", "1") == "1":
            a("v_and_b32 v6, 1, v2")
            a("v_cmp_eq_u32 vcc, 1, v6")
            a("v_lshlrev_b32 v7, 4, v2")
            a("s_nop 0")
            for b in (80, 84):
                a(f"v_cndmask_b32 v16, v{b + 2}, v{b}, vcc")
                a(f"v_cndmask_b32 v17, v{b + 3}, v{b + 1}, vcc")
                a("s_nop 1")
                a("v_mov_b32_dpp v18, v16 quad_perm:[1,0,3,2] row_mask:0xf bank_mask:0xf")
                a("v_mov_b32_dpp v19, v17 quad_perm:[1,0,3,2] row_mask:0xf bank_mask:0xf")
                a(f"v_cndmask_b32 v{b}, v{b}, v18, vcc")
                a(f"v_cndmask_b32 v{b + 1}, v{b + 1}, v19, vcc")
                a(f"v_cndmask_b32 v{b + 2}, v18, v{b + 2}, vcc")
                a(f"v_cndmask_b32 v{b + 3}, v19, v{b + 3}, vcc")
            a(f"buffer_store_dwordx4 v[80:83], v7, {rs}, {so} offen{OF}")
            a("s_mov_b64 exec, 0xff")
            a(f"buffer_store_dwordx4 v[84:87], v7, {rs}, {so} offen offset:1024{OF}")
        else:
            a(f"buffer_store_dwordx2 v[80:81], v5, {rs}, {so} offen{OF}")
            a(f"buffer_store_dwordx2 v[82:83], v5, {rs}, {so} offen offset:16{OF}")
            a("s_mov_b64 exec, 0xff")
            a(f"buffer_store_dwordx2 v[84:85], v5, {rs}, {so} offen offset:1024{OF}")
            a(f"buffer_store_dwordx2 v[86:87], v5, {rs}, {so} offen offset:1040{OF}")
        a("s_mov_b64 exec, -1")
        if do_ln:
            for i in range(8):
                a(f"v_lshlrev_b32 v{20 + 2 * i}, 16, v{80 + i}")
                a(f"v_and_b32 v{21 + 2 * i}, 0xffff0000, v{80 + i}")
            a("v_add_f32 v36, v20, v21")
            for i in range(22, 36):
                a(f"v_add_f32 v36, v36, v{i}")
            wave_sum(a, 36, 37, 38)
            a(f"v_mul_f32 v36, {1.0 / 576.0!r}, v36")
            a("v_mov_b32 v39, 0")
            for i in range(20, 28):
                a(f"v_sub_f32 v37, v{i}, v36")
                a("v_fmac_f32 v39, v37, v37")
            a("s_mov_b64 exec, 0xff")
            for i in range(28, 36):
                a(f"v_sub_f32 v37, v{i}, v36")
                a("v_fmac_f32 v39, v37, v37")
            a("s_mov_b64 exec, -1")
            wave_sum(a, 39, 37, 38)
            a(f"v_mul_f32 v39, {1.0 / 576.0!r}, v39")
            round_bf16(a, 39, 37)
            a("v_add_f32 v39, 0x3727c5ac, v39")
            round_bf16(a, 39, 37)
            a("v_sqrt_f32 v39, v39")
            a("s_nop 0")
            round_bf16(a, 39, 37)
            a("v_rcp_f32 v39, v39")
            round_bf16(a, 36, 37)
            for i in range(8):
                a(f"v_sub_f32 v{20 + 2 * i}, v{20 + 2 * i}, v36")
                a(f"v_sub_f32 v{21 + 2 * i}, v{21 + 2 * i}, v36")
                a(f"v_cvt_pk_bf16_f32 v37, v{20 + 2 * i}, v{21 + 2 * i}")
                a(f"v_lshlrev_b32 v{20 + 2 * i}, 16, v37")
                a(f"v_and_b32 v{21 + 2 * i}, 0xffff0000, v37")
                a(f"v_mul_f32 v{20 + 2 * i}, v{20 + 2 * i}, v39")
                a(f"v_mul_f32 v{21 + 2 * i}, v{21 + 2 * i}, v39")
                a(f"v_cvt_pk_bf16_f32 v{8 + i}, v{20 + 2 * i}, v{21 + 2 * i}")
            a("v_lshrrev_b32 v37, 2, v2")
            a("v_lshlrev_b32 v37, 17, v37")
            a("v_and_b32 v38, 3, v2")
            a("v_lshl_add_u32 v37, v38, 4, v37")
            a("s_lshl_b32 s50, s49, 6")
            a(f"s_add_u32 s50, s50, {HN_OFF}")
            a(f"buffer_store_dwordx4 v[8:11], v37, s[28:31], s50 offen{SF}")
            a(f"s_add_u32 s50, s50, {16 * 131072}")
            a("s_mov_b64 exec, 0xff")
            a(f"buffer_store_dwordx4 v[12:15], v37, s[28:31], s50 offen{SF}")
            a("s_mov_b64 exec, -1")


def gen_reduce(name, do_ln):
    def g(a):
        kernel_header(a, name)
        a("s_cmp_ge_u32 s2, 256")
        a(f"s_cbranch_scc1 L_{name}_end")
        a(f"s_load_dwordx2 s[4:5], s[0:1], {KA_X if do_ln else KA_OUT}")
        a(f"s_load_dwordx2 s[12:13], s[0:1], {KA_WS}")
        a("v_lshrrev_b32 v1, 6, v0")
        a("v_and_b32 v2, 63, v0")
        a("s_nop 0")
        a("v_readfirstlane_b32 s32, v1")
        a("s_lshl_b32 s49, s2, 3")
        a("s_add_u32 s49, s49, s32")
        reduce_body(a, do_ln)
        if STAMPS:
            a("s_waitcnt vmcnt(0)")
            stamp(a, 1)
            stamp_flush(a, 2, 1, 2, 32, s_t=70, kid=(3 if do_ln else 6))
        a.label(f"L_{name}_end")
        a("s_endpgm")
        return name, "grid=(256,1,1) block=(512,1,1) lds=16384", 120
    return g


gen_k4 = gen_reduce("k4_ln2_kernel", True)
gen_k7 = gen_reduce("k7_out_kernel", False)


def gen_k5(a, chain=False):
    name = "k5_ffn1_kernel"
    STF = " sc1" if chain else globals()["STF"]
    if not chain:
        kernel_header(a, name)
        a("s_cmp_ge_u32 s2, 256")
        a(f"s_cbranch_scc1 L_{name}_end")
    a(f"s_load_dwordx4 s[8:11], s[0:1], {KA_WG}")
    a(f"s_load_dwordx2 s[12:13], s[0:1], {KA_WS}")
    a("v_lshrrev_b32 v1, 6, v0")
    a("v_and_b32 v2, 63, v0")
    a("s_nop 0")
    a("v_readfirstlane_b32 s32, v1")
    a("s_and_b32 s35, s2, 7")
    a("s_lshl_b32 s35, s35, 2")
    a("s_lshr_b32 s48, s2, 3")
    a("s_and_b32 s48, s48, 3")
    a("s_add_u32 s35, s35, s48")
    a("s_lshr_b32 s34, s2, 5")
    a("s_and_b32 s36, s32, 3")
    a("s_lshr_b32 s37, s32, 2")
    a("s_waitcnt lgkmcnt(0)")
    stamp(a, 0)
    a("s_cmp_eq_u32 s37, 1")
    a("s_cselect_b32 s8, s10, s8")
    a("s_cselect_b32 s9, s11, s9")
    make_srd(a, 20, "s8", "s9", 576 * 9216)
    a(f"s_mov_b32 s47, {576 * 9216}")
    make_srd(a, 16, "s12", "s13", WS_BYTES)
    a(f"s_mov_b32 s46, {WS_BYTES}")
    make_srd(a, 28, "s12", "s13", WS_BYTES)
    TS, WS_ = 16384, 18432
    WBASE = 4 * TS
    vA0, vW0, vW1, vW2, vT, vWa, vWb = 64, 66, 67, 68, 69, 70, 71
    a("s_sub_u32 s59, 15, s34")
    a("s_cmp_eq_u32 s37, 1")
    a("s_cselect_b32 s59, s59, s34")
    a("s_lshl_b32 s59, s59, 7")
    a("s_lshl_b32 s48, s36, 5")
    a("s_add_u32 s59, s59, s48")
    a("v_lshrrev_b32 v20, 2, v2")
    a("v_add_u32 v20, s59, v20")
    a("v_lshlrev_b32 v20, 6, v20")
    a("v_lshrrev_b32 v21, 4, v2")
    a("v_sub_u32 v21, 0, v21")
    a("v_and_b32 v21, 3, v21")
    a("v_and_b32 v22, 3, v2")
    a("v_xor_b32 v21, v21, v22")
    a(f"v_lshl_add_u32 {vr(vA0)}, v21, 4, v20")
    a(f"s_mov_b32 s38, {HN_OFF}")
    for j, vd in ((0, vW0), (1, vW1), (2, vW2)):
        a(f"v_add_u32 v20, {64 * j}, v2")
        div18(a, 21, 22, 20, 23)
        a("v_and_b32 v23, 1, v22")
        a("v_bfe_u32 v24, v22, 1, 1")
        a("v_lshl_or_b32 v23, v23, 1, v24")
        a("v_and_b32 v24, 28, v22")
        a("v_or_b32 v23, v23, v24")
        a("v_cmp_gt_u32 vcc, 16, v22")
        a("s_nop 1")
        a("v_cndmask_b32 v22, v22, v23, vcc")
        a("s_lshl_b32 s48, s36, 3")
        a("v_add_u32 v21, s48, v21")
        a("v_mul_u32_u24 v21, 9216, v21")
        a(f"v_lshl_add_u32 {vr(vd)}, v22, 4, v21")
    a("s_mul_i32 s39, s35, 288")
    a("s_lshl_b32 s40, s32, 11")
    a("s_mul_i32 s41, s32, 2304")
    a(f"s_add_u32 s41, s41, {WBASE}")
    a("v_and_b32 v62, 15, v2")
    a("v_lshrrev_b32 v61, 4, v2")
    a("v_lshrrev_b32 v20, 2, v62")
    a("v_sub_u32 v20, 0, v20")
    a("v_and_b32 v20, 3, v20")
    a("v_xor_b32 v20, v20, v61")
    a("s_lshl_b32 s48, s32, 5")
    a("v_add_u32 v21, s48, v62")
    a("v_lshlrev_b32 v21, 6, v21")
    a(f"v_lshl_add_u32 {vr(vT)}, v20, 4, v21")
    a("v_lshrrev_b32 v20, 5, v2")
    a("v_lshlrev_b32 v20, 4, v20")
    a("v_bfe_u32 v21, v2, 2, 3")
    a("v_add_u32 v20, v20, v21")
    a("v_mul_u32_u24 v20, 288, v20")
    a(f"v_add_u32 v20, {WBASE}, v20")
    a("v_and_b32 v21, 3, v2")
    a(f"v_lshl_add_u32 {vr(vWa)}, v21, 3, v20")
    a("v_and_b32 v22, 1, v2")
    a("v_lshl_add_u32 v20, v22, 4, v20")
    a("v_bfe_u32 v22, v2, 1, 1")
    a(f"v_lshl_add_u32 {vr(vWb)}, v22, 3, v20")
    a("s_mov_b32 s44, 0")
    c = GemmCfg()
    c.TN, c.TM, c.R, c.AHEAD, c.NSTEPS = 18, 2, 6, 5, 18
    c.DFRAC = float(ENV("DF5", "0.5"))
    c.NSW, c.WSLOT, c.NST, c.TSLOT, c.TPER = 4, WS_, 4, TS, 1
    c.TPOS = 0
    c.DMA_EVERY = 2
    c.swap = False
    c.acc = lambda nt, tt: 112 + (nt * 2 + tt) * 4
    c.tfrag = lambda buf, tt: 96 + buf * 8 + tt * 4
    c.wfrag = lambda r_: 72 + r_ * 4

    def wread(nt):
        pl, u = nt // 9, nt % 9
        r_ = vWb if u == 8 else vWa
        return [(r_, pl * 9216 + u * 32), (r_, pl * 9216 + u * 32 + 8 * 288)]
    c.wread = wread
    c.wadv = lambda nt: [vWa] if nt == 16 else ([vWb] if nt == 17 else [])
    c.tread = lambda q, tt: (vT, tt * 1024)
    c.tadv = lambda q: [vT]
    c.s_dA, c.s_dB, c.s_sl, c.s_dmaW, c.s_cnt, c.s_slotW = 50, 51, 52, 53, 45, 54
    c.s_dT, c.s_slT, c.s_dmaT, c.s_slotT = 55, 56, 57, 58

    def dmaW():
        def d0():
            a("s_add_u32 m0, s53, s41")
            a("s_nop 0")
            a(f"buffer_load_dwordx4 {vr(vW0)}, s[20:23], s39 offen lds")

        def d1():
            a("s_add_u32 m0, m0, 1024")
            a("s_nop 0")
            a(f"buffer_load_dwordx4 {vr(vW1)}, s[20:23], s39 offen lds")

        def d2():
            a("s_add_u32 m0, m0, 1024")
            a("s_mov_b64 exec, 0xffff")
            a(f"buffer_load_dwordx4 {vr(vW2)}, s[20:23], s39 offen lds")
            a("s_mov_b64 exec, -1")
        return [d0, d1, d2]
    c.dmaW = dmaW

    def dmaT(h):
        def d0():
            a("s_add_u32 m0, s57, s40")
            a("s_nop 0")
            a(f"buffer_load_dwordx4 {vr(vA0)}, s[16:19], s38 offen lds")

        def d1():
            a(f"buffer_load_dwordx4 {vr(vA0)}, s[16:19], s38 offen offset:1024 lds")
        return [d0, d1]
    c.dmaT = dmaT

    def advW():
        a(f"s_add_u32 s39, s39, {32 * 9216}")
    c.advW = advW

    def advT():
        a("s_add_u32 s38, s38, 131072")
        a("s_add_u32 s44, s44, 1")
        a(f"s_cmp_lt_u32 s44, {c.NSTEPS}")
        a("s_cselect_b32 s18, s46, 0")
        a("s_cselect_b32 s22, s47, 0")
    c.advT = advT
    if chain:
        def peers_in(vl, vd):
            a("s_andn2_b32 s48, s2, 31")
            a(f"v_add_u32 v{vd}, s48, v{vl}")
        c.pre_T = lambda: wflag_wait(a, 32, 2, 28, name + "_in", 32, peers_in)
    gemm_prologue_and_loop(a, c, name)
    a(f"s_mov_b32 s48, {-math.log2(math.e)!r}")

    def act4(g0, u0):
        for r_ in range(4):
            a(f"v_mul_f32 v{20 + r_}, s48, v{g0 + r_}")
        for r_ in range(4):
            a(f"v_exp_f32 v{20 + r_}, v{20 + r_}")
        for r_ in range(4):
            a(f"v_add_f32 v{20 + r_}, 1.0, v{20 + r_}")
        for r_ in range(4):
            a(f"v_rcp_f32 v{20 + r_}, v{20 + r_}")
        for r_ in range(4):
            a(f"v_mul_f32 v{g0 + r_}, v{g0 + r_}, v{u0 + r_}")
        for r_ in range(4):
            a(f"v_mul_f32 v{g0 + r_}, v{g0 + r_}, v{20 + r_}")
    a("s_lshl_b32 s49, s59, 5")
    a("s_mul_i32 s50, s35, 9")
    a("s_lshl_b32 s50, s50, 16")
    a("s_add_u32 s49, s49, s50")
    a(f"s_add_u32 s49, s49, {ACT_OFF}")
    a("v_lshlrev_b32 v3, 5, v62")
    a("v_lshrrev_b32 v4, 1, v61")
    a("v_and_b32 v5, 1, v61")
    a("v_lshl_add_u32 v6, v5, 4, v3")
    a("v_lshl_add_u32 v6, v4, 16, v6")
    a("v_lshl_add_u32 v7, v61, 3, v3")
    k = 0
    for P_ in range(4):
        for tt in range(2):
            t = 32 + (k % 4) * 4
            k += 1
            for T_ in range(2):
                g0, u0 = c.acc(2 * P_ + T_, tt), c.acc(9 + 2 * P_ + T_, tt)
                act4(g0, u0)
                a(f"v_cvt_pk_bf16_f32 v{t + 2 * T_}, v{g0}, v{g0 + 1}")
                a(f"v_cvt_pk_bf16_f32 v{t + 2 * T_ + 1}, v{g0 + 2}, v{g0 + 3}")
            a(f"buffer_store_dwordx4 v[{t}:{t + 3}], v6, s[28:31], s49 offen offset:{tt * 512}{STF}")
        a("s_add_u32 s49, s49, 131072")
    for tt in range(2):
        t = 32 + (k % 4) * 4
        k += 1
        g0, u0 = c.acc(8, tt), c.acc(17, tt)
        act4(g0, u0)
        a(f"v_cvt_pk_bf16_f32 v{t}, v{g0}, v{g0 + 1}")
        a(f"v_cvt_pk_bf16_f32 v{t + 1}, v{g0 + 2}, v{g0 + 3}")
        a(f"buffer_store_dwordx2 v[{t}:{t + 1}], v7, s[28:31], s49 offen offset:{tt * 512}{STF}")
    if STAMPS:
        a("s_waitcnt vmcnt(0)")
        stamp(a, 3)
        stamp(a, 4); stamp(a, 5)
        stamp_flush(a, 8, 1, 2, 32, s_t=70, kid=4)
    if chain:
        a("s_waitcnt vmcnt(0)")
        a("s_barrier")
        wflag_set(a, 32, 3, 28, name + "_out")
        return
    a.label(f"L_{name}_end")
    a("s_endpgm")
    return name, "grid=(256,1,1) block=(512,1,1) lds=139264", 256


def gen_k37(a):
    gen_splitk("k37_kernel", KA_WO, CTX_OFF, 16, 2, fuse_ln=True, chain_out=True, endlabel="L_k67c_end")(a)
    gen_k5(a, chain=True)
    gen_splitk("k67c", KA_WD, ACT_OFF, 18, 5, fuse_ln=False, chain_in=True)(a)
    return "k37_kernel", "grid=(256,1,1) block=(512,1,1) lds=139264", 256


def gen_k27(a):
    from gen_attn import gen_k2
    ool = gen_k2(a, chain=True)
    gen_splitk("k34c", KA_WO, CTX_OFF, 16, 2, fuse_ln=True, chain_in=True, chain_out=True)(a)
    gen_k5(a, chain=True)
    gen_splitk("k67c", KA_WD, ACT_OFF, 18, 5, fuse_ln=False, chain_in=True)(a)
    a.L += ool.L
    return "k27_kernel", "grid=(256,1,1) block=(512,1,1) lds=163840", 256


def gen_mega(a):
    from gen_attn import gen_k2
    stores = gen_k1(a, fused="mega_kernel")
    ool = gen_k2(a, k1_stores=stores, chain=True)
    gen_splitk("k34c", KA_WO, CTX_OFF, 16, 2, fuse_ln=True, chain_in=True, chain_out=True)(a)
    gen_k5(a, chain=True)
    gen_splitk("k67c", KA_WD, ACT_OFF, 18, 5, fuse_ln=False, chain_in=True)(a)
    a.L += ool.L
    a.label("L_code_end")
    return "mega_kernel", "grid=(256,1,1) block=(512,1,1) lds=163840", 256
```

```python
from gen_common import *
import math

QS_OFF = 100 * MB
SCALE_C = (128 ** -0.5) * math.log2(math.e)
NEGBIG = 0xf149f2ca
THR = 65536.0
FLOOR0 = 0xe0ad78ec


class Vm:
    def __init__(self):
        self.q = []

    def issue(self, tag):
        self.q.append(tag)

    def need(self, a, tags):
        idx = -1
        for i, t in enumerate(self.q):
            if t in tags:
                idx = i
        if idx < 0:
            return
        n = len(self.q) - 1 - idx
        assert n <= 63
        a(f"s_waitcnt vmcnt({n})")
        self.q = self.q[idx + 1:]


def gen_k12(a):
    from gen_gemm import gen_k1
    stores = gen_k1(a, fused=True)
    return gen_k2(a, k1_stores=stores)


def gen_k2(a, k1_stores=None, chain=False):
    fused = k1_stores is not None
    name = "k12_kernel" if fused else ("k27_kernel" if chain else "k2_attn_kernel")
    STF = " sc1" if (fused or chain) else globals()["STF"]
    if not fused:
        kernel_header(a, name)
    O = 192
    S = 160
    Q = 128
    NEGM = 112
    P = 96
    FR = 64
    PT = 48
    vK = 32
    vV = 40
    vL = 44
    vFloor = 45
    vLim = 46
    vLane16 = 27
    if not fused:
        a("s_cmp_ge_u32 s2, 256")
        a("s_cbranch_scc1 L_k67c_end" if chain else "s_cbranch_scc1 L_k2_end")
    else:
        a("s_waitcnt vmcnt(0)")
        a("s_barrier")
    a(f"s_load_dwordx2 s[4:5], s[0:1], {KA_WQ}")
    a(f"s_load_dwordx2 s[6:7], s[0:1], {KA_WS}")
    a(f"s_load_dwordx2 s[8:9], s[0:1], {KA_WO}")
    a(f"s_load_dwordx4 s[12:15], s[0:1], {KA_WG}")
    a(f"s_load_dwordx2 s[10:11], s[0:1], {KA_WD}")
    a("v_lshrrev_b32 v1, 6, v0")
    a("v_and_b32 v2, 63, v0")
    a("s_nop 0")
    a("v_readfirstlane_b32 s32, v1")
    a("s_and_b32 s33, s2, 7")
    a("s_lshl_b32 s33, s33, 2")
    a("s_lshr_b32 s48, s2, 3")
    a("s_and_b32 s48, s48, 3")
    a("s_add_u32 s33, s33, s48")
    a("s_lshr_b32 s34, s2, 5")
    a("s_and_b32 s35, s32, 3")
    a("s_lshr_b32 s36, s32, 2")
    a(f"v_lshlrev_b32 {vr(vLane16)}, 4, v2")
    a("s_waitcnt lgkmcnt(0)")
    stamp(a, 3 if fused else 0)
    a("s_lshl_b32 s48, s33, 8")
    a("s_add_u32 s4, s4, s48")
    a("s_addc_u32 s5, s5, 0")
    a(f"s_sub_u32 s49, {576 * 8192}, s48")
    make_srd(a, 16, "s4", "s5", "s49")
    make_srd(a, 20, "s6", "s7", WS_BYTES)
    make_srd(a, 24, "s6", "s7", WS_BYTES)
    make_srd(a, 28, "s6", "s7", WS_BYTES)
    a("s_sub_u32 s48, 15, s34")
    a("s_cmp_eq_u32 s36, 1")
    a("s_cselect_b32 s48, s48, s34")
    a("s_lshl_b32 s48, s48, 2")
    a("s_add_u32 s48, s48, s35")
    a("s_mul_i32 s50, s48, 36864")
    a(f"s_add_u32 s50, s50, {XN_OFF}")
    vWq0, vWq1 = 24, 25
    a("v_lshrrev_b32 v3, 4, v2")
    a("v_bfe_u32 v4, v2, 2, 2")
    a("v_xor_b32 v4, v4, v3")
    a("v_lshlrev_b32 v4, 6, v4")
    a("v_and_b32 v5, 3, v2")
    a("v_lshl_add_u32 v4, v5, 4, v4")
    a("s_lshl_b32 s48, s32, 3")
    a("v_add_u32 v3, s48, v3")
    a(f"v_lshl_add_u32 {vr(vWq0)}, v3, 13, v4")
    a(f"v_add_u32 {vr(vWq1)}, {4 * 8192}, {vr(vWq0)}")
    a("s_lshl_b32 s51, s32, 11")
    a("s_add_u32 s51, s51, 65536")
    vm = Vm()
    XR = 20 if fused else 36
    XF = 48
    WR = 32
    vWa = 28

    def dma_wq(st):
        a(f"s_add_u32 m0, s51, {(st % 6) * 16384}")
        a(f"s_mov_b32 s52, {st * 64 * 8192}")
        a(f"buffer_load_dwordx4 {vr(vWq0)}, s[16:19], s52 offen lds")
        vm.issue(("W", st))
        a("s_add_u32 m0, m0, 1024")
        a("s_nop 0")
        a(f"buffer_load_dwordx4 {vr(vWq1)}, s[16:19], s52 offen lds")
        vm.issue(("W", st))

    def ld_x(s):
        if s % 4 == 0 and s > 0:
            a("s_add_u32 s50, s50, 4096")
        a(f"buffer_load_dwordx4 {vr(XF + 4 * (s % XR), 4)}, {vr(vLane16)}, s[20:23], s50 offen offset:{(s % 4) * 1024}")
        vm.issue(("X", s))

    LEAD = 4
    XR = 20 if fused else 36
    QO = (lambda dt: 144 + 32 * dt) if fused else (lambda dt: O + 16 * dt)
    if not fused:
        for st in range(LEAD):
            dma_wq(st)
            for s_ in range(4 * st, 4 * st + 4):
                ld_x(s_)
    else:
        for st in range(LEAD):
            dma_wq(st)

        def xn_peers(vl, vd):
            a("s_lshl_b32 s48, s34, 4")
            a("s_sub_u32 s49, 224, s48")
            a(f"v_cmp_gt_u32 vcc, 16, v{vl}")
            a("v_mov_b32 v19, s49")
            a(f"v_mov_b32 v{vd}, s48")
            a(f"v_cndmask_b32 v{vd}, v19, v{vd}, vcc")
            a(f"v_add_u32 v{vd}, v{vd}, v{vl}")
        k1_stores[0]()
        zcount_wait(a, 32, "z")
        wflag_wait(a, 32, 5, 28, "xn", 32, xn_peers)
        for s_ in range(4 * LEAD):
            ld_x(s_)
    a("s_lshl_b32 s48, s33, 19")
    a("s_bfe_u32 s59, s32, 0x10001")
    a("s_and_b32 s49, s32, 1")
    a("s_lshl_b32 s49, s49, 12")
    a("s_add_u32 s40, s48, s49")
    a(f"s_add_u32 s58, s40, {KP_OFF}")
    a("s_xor_b32 s49, s59, 1")
    a("s_lshl_b32 s49, s49, 13")
    a("s_add_u32 s40, s58, s49")
    a("s_lshl_b32 s49, s35, 12")
    a("s_add_u32 s41, s48, s49")
    a(f"s_add_u32 s41, s41, {VP_OFF}")
    a("s_lshl_b32 s42, s32, 12")
    a("s_add_u32 s45, s42, 32768")
    a("s_lshl_b32 s37, s34, 1")
    a("s_add_u32 s37, s37, 2")

    def dma_k(sK, track=None):
        a("s_mov_b32 m0, s42")
        a("s_xor_b32 s42, s42, 65536")
        for j in range(4):
            a(f"buffer_load_dwordx4 {vr(vLane16)}, s[24:27], {sK} offen offset:{j * 1024} lds")
            if track: track.issue(("KV", 0))

    def dma_v(sV, track=None):
        a("s_mov_b32 m0, s45")
        a("s_xor_b32 s45, s45, 65536")
        for j in range(4):
            a(f"buffer_load_dwordx4 {vr(vLane16)}, s[24:27], {sV} offen offset:{j * 1024} lds")
            if track: track.issue(("KV", 0))

    a("v_lshrrev_b32 v3, 5, v2")
    a("v_bfe_u32 v4, v2, 2, 2")
    a("v_lshl_add_u32 v3, v3, 3, v4")
    a("v_lshlrev_b32 v3, 8, v3")
    a("v_bfe_u32 v5, v2, 4, 1")
    a("v_lshl_add_u32 v3, v5, 5, v3")
    a("v_and_b32 v5, 3, v2")
    a("v_lshl_add_u32 v3, v5, 3, v3")
    a("v_add_u32 v3, 65536, v3")
    for dt in range(4):
        a(f"v_xor_b32 v5, {dt}, v4")
        a(f"v_lshl_add_u32 {vr(vWa + dt)}, v5, 6, v3")
    for dt in range(4):
        for i in range(16):
            a(f"v_mov_b32 {vr(QO(dt) + i)}, 0")
    lg = Lgkm()
    seq = [(st, s, dt) for st in range(9) for s in range(4) for dt in range(4)]
    AH = 3
    STQ = int(os.environ.get('STQ', '8'))
    STAG = int(os.environ.get('STAG', '0'))
    WBL = os.environ.get('KVF', 'sc1') != 'sc1'
    WBST = int(os.environ.get('WBST', '6'))
    LATE0 = 144 - 16 * STQ

    def rd_wq(idx):
        st, s, dt = seq[idx]
        ring = idx % 4
        for i2 in range(2):
            a(f"ds_read_b64_tr_b16 {vr(WR + 4 * ring + 2 * i2, 2)}, {vr(vWa + dt)} offset:{(16 * s + 4 * i2) * 256}")
            lg.issue(("W", ring))
        if s == 3:
            d = 16384 if (st % 6) != 5 else -5 * 16384
            a(f"v_add_u32 {vr(vWa + dt)}, {d & 0xffffffff}, {vr(vWa + dt)}")

    vm.need(a, [("W", 0)])
    a("s_barrier")
    for i in range(AH):
        rd_wq(i)
    for idx, (st, s, dt) in enumerate(seq):
        if s == 0 and dt == 0:
            if st + 1 < 9:
                vm.need(a, [("W", st + 1)])
            if fused and WBL and st == WBST:
                vm.need(a, [("ST", 0)])
            if fused and st == 8 and not STAG and not WBL:
                a("s_waitcnt vmcnt(0)")
                vm.q = []
            if fused and st == 8 and STAG:
                a("s_cmp_ge_u32 s2, 128")
                a("s_cbranch_scc1 L_k12_nw8")
                a("s_waitcnt vmcnt(0)")
                a.label("L_k12_nw8")
            a("s_barrier")
            if fused and WBL and st == WBST:
                a("s_cmp_lg_u32 s32, 0")
                a("s_cbranch_scc1 L_k12_nowb")
                a("buffer_wbl2 sc1")
                a.label("L_k12_nowb")
            if fused and st == 8 and not WBL:
                if STAG:
                    a("s_cmp_ge_u32 s2, 128")
                    a("s_cbranch_scc1 L_ws_kv")
                wflag_set(a, 32, 6, 28, "kv")
            if st + LEAD < 9:
                dma_wq(st + LEAD)
                for s2_ in range(4 * (st + LEAD), 4 * (st + LEAD) + 4):
                    ld_x(s2_)
            if st + LEAD == 9 and not fused:
                dma_k("s58", vm)
                dma_v("s41", vm)
        if dt == 0:
            vm.need(a, [("X", 4 * st + s)])
        if idx + AH < len(seq):
            rd_wq(idx + AH)
        lg.need(a, [("W", idx % 4)])
        a(f"v_mfma_f32_32x32x16_bf16 {vr(QO(dt), 16)}, {vr(WR + 4 * (idx % 4), 4)}, {vr(XF + 4 * ((4 * st + s) % XR), 4)}, {vr(QO(dt), 16)}")
        if fused and not STAG and idx % STQ == STQ - 1 and idx // STQ < 16:
            k1_stores[1](idx // STQ, "")
            vm.issue(("ST", 0))
        if fused and STAG and idx % STQ == STQ - 1:
            if idx // STQ < 16:
                a("s_cmp_ge_u32 s2, 128")
                a(f"s_cbranch_scc1 L_k12_se{idx}")
                k1_stores[1](idx // STQ, "e")
                a.label(f"L_k12_se{idx}")
            elif 0 <= (idx - LATE0) // STQ < 16 and idx >= LATE0:
                a("s_cmp_lt_u32 s2, 128")
                a(f"s_cbranch_scc1 L_k12_sl{idx}")
                k1_stores[1]((idx - LATE0) // STQ, "l")
                a.label(f"L_k12_sl{idx}")
    a("s_nop 7")
    a("s_nop 7")
    stamp(a, 4 if fused else 1)
    if fused:
        def kv_peers(vl, vd):
            a(f"v_lshrrev_b32 v19, 1, v{vl}")
            a(f"v_and_b32 v{vd}, 1, v{vl}")
            a(f"v_lshlrev_b32 v{vd}, 2, v{vd}")
            a(f"v_lshl_add_u32 v{vd}, v19, 5, v{vd}")
            a("s_bfe_u32 s48, s33, 0x20001")
            a("s_lshl_b32 s48, s48, 3")
            a("s_lshr_b32 s49, s33, 3")
            a("s_add_u32 s48, s48, s49")
            a(f"v_add_u32 v{vd}, s48, v{vd}")
        if WBL:
            a("s_waitcnt vmcnt(0)")
            wflag_set(a, 32, 6, 28, "kv")
        wflag_wait(a, 32, 6, 28, "kv", 8 if STAG else 16, kv_peers)
        dma_k("s58")
        dma_v("s41")
    a(f"s_mov_b32 s48, {SCALE_C!r}")
    for dt in range(4):
        for i in range(16):
            a(f"v_mul_f32 {vr(QO(dt) + i)}, s48, {vr(QO(dt) + i)}")
    for dt in range(4):
        for i in range(8):
            a(f"v_cvt_pk_bf16_f32 {vr(Q + 8 * dt + i)}, {vr(QO(dt) + 2 * i)}, {vr(QO(dt) + 2 * i + 1)}")
    a("s_barrier")
    a("s_lshl_b32 s48, s35, 13")
    a("s_add_u32 s48, s48, 131072")
    a(f"v_add_u32 v22, s48, {vr(vLane16)}")
    a("s_cmp_eq_u32 s36, 0")
    a("s_cbranch_scc1 L_k2_qw2")
    for i in range(8):
        a(f"ds_write_b128 v22, {vr(Q + 4 * i, 4)} offset:{i * 1024}")
    a.label("L_k2_qw2")
    a("v_and_b32 v3, 31, v2")
    a("v_lshrrev_b32 v4, 5, v2")
    a("s_lshl_b32 s48, s36, 14")
    a("v_bfe_u32 v5, v2, 2, 2")
    a("v_xor_b32 v5, v5, v4")
    a("v_lshlrev_b32 v6, 6, v3")
    a("v_add_u32 v6, s48, v6")
    a(f"v_lshl_add_u32 {vr(vK)}, v5, 4, v6")
    a(f"v_xor_b32 {vr(vK + 1)}, 32, {vr(vK)}")
    a(f"v_add_u32 {vr(vV)}, 32768, {vr(vK)}")
    a(f"v_add_u32 {vr(vV + 1)}, 32768, {vr(vK + 1)}")
    a("v_lshlrev_b32 v6, 2, v4")
    a(f"v_sub_u32 {vr(vLim)}, v3, v6")
    a("s_sub_u32 s56, 15, s34")
    a("s_lshl_b32 s56, s56, 7")
    a("s_lshl_b32 s48, s35, 5")
    a("s_add_u32 s56, s56, s48")
    a("s_lshl_b32 s39, s34, 7")
    a("s_add_u32 s39, s39, s48")
    a("s_sub_u32 s53, s37, 1")
    a("s_cmp_eq_u32 s36, 1")
    a("s_cselect_b32 s39, s56, s39")
    a("s_cselect_b32 s53, 100, s53")
    make_srd(a, 16, "s8", "s9", 4096 * 576 * 2)
    a("s_lshl_b32 s46, s2, 3")
    a("s_add_u32 s46, s46, s32")
    a(f"s_mul_i32 s46, s46, {11 * 128}")
    a("s_mov_b32 s47, 8")
    a("v_lshlrev_b32 v20, 7, v2")

    def dstamp(k):
        if not STAMPS:
            return
        a("s_waitcnt lgkmcnt(0)")
        a("s_memtime s[70:71]")
        a("s_waitcnt lgkmcnt(0)")
        a(f"s_mov_b32 s{72 + (8 if fused else 3) + k}, s70")
    SA, SB = S, S + 16
    PA, PB = P, P + 8
    PSA, PSB = 8, 9

    def sm_part(Sx, Px, ps, part):
        out = []
        b = 8 * part
        for k in range(4):
            t0, t1 = PT + (2 * k) % 8, PT + (2 * k + 1) % 8
            out.append(f"v_exp_f32 {vr(t0)}, {vr(Sx + b + 2 * k)}")
            out.append(f"v_exp_f32 {vr(t1)}, {vr(Sx + b + 2 * k + 1)}")
        for k in range(4):
            t0, t1 = PT + (2 * k) % 8, PT + (2 * k + 1) % 8
            if part == 0 and k == 0:
                out.append(f"v_add_f32 {vr(ps)}, {vr(t0)}, {vr(t1)}")
            else:
                out.append(f"v_add_f32 {vr(ps)}, {vr(ps)}, {vr(t0)}")
                out.append(f"v_add_f32 {vr(ps)}, {vr(ps)}, {vr(t1)}")
            out.append(f"v_cvt_pk_bf16_f32 {vr(Px + 4 * part + k)}, {vr(t0)}, {vr(t1)}")
        ex = [o for o in out if o.startswith("v_exp")]
        co = [o for o in out if not o.startswith("v_exp")]
        res = ex[:3]
        ex = ex[3:]
        while ex or co:
            if ex:
                res.append(ex.pop(0))
            take = 2 if len(co) > 2 * len(ex) else 1
            for _ in range(take):
                if co:
                    res.append(co.pop(0))
        return res

    ool = Asm()
    TOUCH = int(os.environ.get("TOUCH", "0"))

    def mask(Sx, sT, t, tag):
        a(f"s_lshl_b32 s48, {sT}, 6")
        a("s_sub_i32 s48, s39, s48")
        a(f"s_cmp_lt_i32 s48, {31 + 32 * t}")
        a(f"s_cbranch_scc1 L_k2_{tag}_mask")
        a.label(f"L_k2_{tag}_nomask")
        o = ool
        o.label(f"L_k2_{tag}_mask")
        o(f"s_sub_i32 s48, s48, {32 * t}")
        o(f"v_add_u32 v11, s48, {vr(vLim)}")
        o(f"v_mov_b32 v10, {NEGBIG}")
        o("s_nop 7")
        for i in range(18):
            if i < 16:
                cst = 8 * (i // 4) + (i % 4)
                o(f"v_cmp_le_i32 s[{60 + 2 * (i % 3)}:{61 + 2 * (i % 3)}], {cst}, v11")
            else:
                o("s_nop 0")
            if i >= 2:
                j = (i - 2) % 3
                o(f"v_cndmask_b32 {vr(Sx + i - 2)}, v10, {vr(Sx + i - 2)}, s[{60 + 2 * j}:{61 + 2 * j}]")
        o(f"s_branch L_k2_{tag}_nomask")

    def tile_of(dst, src, add):
        a(f"s_add_u32 {dst}, {src}, {add}")
        a(f"s_lshl_b32 s49, {dst}, 1")
        a("s_sub_u32 s49, s49, s37")
        a("s_add_u32 s49, s49, s36")
        a(f"s_cmp_lt_u32 {dst}, s37")
        a(f"s_cselect_b32 {dst}, {dst}, s49")

    def chk(Sx, Sy, Px, ps, tag):
        a(f"v_cmp_nge_f32 vcc, s57, {vr(ps)}")
        a(f"s_cbranch_vccnz L_k2_{tag}_rare")
        a.label(f"L_k2_{tag}_go")
        a(f"v_add_f32 {vr(vL)}, {vr(vL)}, {vr(ps)}")
        o = ool
        o.label(f"L_k2_{tag}_rare")
        o(f"s_mov_b32 s57, {THR!r}")
        o("s_nop 7")
        o("s_nop 3")
        o(f"v_max3_f32 v10, {vr(Sx)}, {vr(Sx + 1)}, {vr(vFloor)}")
        for i in range(2, 16, 2):
            o(f"v_max3_f32 v10, v10, {vr(Sx + i)}, {vr(Sx + i + 1)}")
        o("v_mov_b32 v11, v10")
        o("s_nop 1")
        o("v_permlane32_swap_b32 v10, v11")
        o("s_nop 1")
        o("v_max_f32 v10, v10, v11")
        o(f"v_mov_b32 {vr(vFloor)}, 0")
        o("v_max_f32 v11, 0, v10")
        o("v_exp_f32 v11, -v11")
        for i in range(16):
            o(f"v_sub_f32 {vr(Sx + i)}, {vr(Sx + i)}, v10")
        for i in range(16):
            o(f"v_sub_f32 {vr(Sy + i)}, {vr(Sy + i)}, v10")
        for i in range(16):
            o(f"v_sub_f32 {vr(NEGM + i)}, {vr(NEGM + i)}, v10")
        for i in range(64):
            o(f"v_mul_f32 {vr(O + i)}, {vr(O + i)}, v11")
        o(f"v_mul_f32 {vr(vL)}, {vr(vL)}, v11")
        for part in range(2):
            for x in sm_part(Sx, Px, ps, part):
                o(x)
            o("s_nop 0")
        o(f"s_branch L_k2_{tag}_go")

    def togK_l():
        return [f"v_xor_b32 {vr(vK + i)}, 0x10000, {vr(vK + i)}" for i in range(2)]

    def togV_l():
        return [f"v_xor_b32 {vr(vV + i)}, 0x10000, {vr(vV + i)}" for i in range(2)]

    def rd(n, lg):
        seg, i = (n % 32) // 8, n % 8
        dst = vr(FR + 4 * (n % 8), 4)
        if os.environ.get("A_NOLDS"):
            return
        if seg in (0, 2):
            a(f"ds_read_b128 {dst}, {vr(vK + (i & 1))} offset:{(seg // 2) * 8192 + (i >> 1) * 2048}")
        else:
            dt = i % 4
            a(f"ds_read_b128 {dst}, {vr(vV + i // 4)} offset:{(seg // 2) * 8192 + dt * 2048}")
        lg.issue(("F", n % 8))

    def mfma(n):
        seg, i = n // 8, n % 8
        fr = vr(FR + 4 * (n % 8), 4)
        if seg in (0, 2):
            Sx = SB if seg == 0 else SA
            c_ = vr(NEGM, 16) if i == 0 else vr(Sx, 16)
            a(f"v_mfma_f32_32x32x16_bf16 {vr(Sx, 16)}, {fr}, {vr(Q + 4 * i, 4)}, {c_}")
        else:
            dt = i % 4
            Px = PA if seg == 1 else PB
            a(f"v_mfma_f32_32x32x16_bf16 {vr(O + 16 * dt, 16)}, {fr}, {vr(Px + 4 * (i // 4), 4)}, {vr(O + 16 * dt, 16)}")

    def spread(lst, positions):
        d = {p: [] for p in positions}
        k = len(lst)
        m = len(positions)
        idx = 0
        for j, p in enumerate(positions):
            cnt = k // m + (1 if j < k % m else 0)
            d[p] = lst[idx:idx + cnt]
            idx += cnt
        return d

    def dma_list(kind, sreg):
        m0s = "s42" if kind == "K" else "s45"

        def first():
            a(f"s_mov_b32 m0, {m0s}")
            a(f"s_xor_b32 {m0s}, {m0s}, 65536")
            a(f"buffer_load_dwordx4 {vr(vLane16)}, s[24:27], {sreg} offen lds")
        fs = [first]
        for j in range(1, 4):
            fs.append(lambda j=j: a(f"buffer_load_dwordx4 {vr(vLane16)}, s[24:27], {sreg} offen offset:{j * 1024} lds"))
        return fs

    def pf():
        a("s_mov_b64 exec, 0x7ff")
        a("buffer_load_dword v21, v20, s[16:19], s46 offen")
        a("s_mov_b64 exec, -1")
        a("s_sub_u32 s47, s47, 1")
        a(f"s_add_u32 s46, s46, {2048 * 11 * 128}")
        a("s_bitcmp1_b32 s47, 0")
        a(f"s_cbranch_scc0 L_k2_pfrot")
        a.label("L_k2_pfdone")
        o = ool
        o.label("L_k2_pfrot")
        o(f"s_sub_u32 s46, s46, {2 * 2048 * 11 * 128}")
        o("s_mov_b32 s16, s12")
        o("s_and_b32 s17, s13, 0xffff")
        o("s_cmp_gt_i32 s47, 0")
        o(f"s_cselect_b32 s18, {576 * 4608 * 2}, 0")
        o("s_mov_b64 s[12:13], s[14:15]")
        o("s_mov_b64 s[14:15], s[10:11]")
        o("s_branch L_k2_pfdone")

    def ctx_addr(a, sq):
        a("s_lshl_b32 s48, s33, 14")
        a(f"s_add_u32 s48, s48, {sq}")
        a("s_lshl_b32 s48, s48, 5")
        a(f"s_add_u32 s48, s48, {CTX_OFF}")
        a("v_and_b32 v3, 31, v2")
        a("v_lshrrev_b32 v4, 5, v2")
        a("v_lshlrev_b32 v3, 5, v3")
        a("v_lshl_add_u32 v3, v4, 4, v3")

    def dma_offsets():
        a("s_add_u32 s50, s38, s59")
        tile_of("s50", "s50", 2)
        a("s_lshl_b32 s50, s50, 14")
        a("s_add_u32 s50, s50, s40")
        tile_of("s51", "s38", 2)
        a("s_mov_b32 s43, s51")
        a("s_lshl_b32 s51, s51, 14")
        a("s_add_u32 s51, s51, s41")
        a("s_cmp_lt_i32 s38, 15")
        a(f"s_cselect_b32 s26, {WS_BYTES}, 0")
        if TOUCH:
            a("s_add_u32 s66, s38, s59")
            tile_of("s66", "s66", 2 + TOUCH)
            a("s_min_u32 s66, s66, 31")
            a("s_lshl_b32 s66, s66, 14")
            a("s_add_u32 s66, s66, s40")
            tile_of("s67", "s38", 2 + TOUCH)
            a("s_min_u32 s67, s67, 31")
            a("s_lshl_b32 s67, s67, 14")
            a("s_add_u32 s67, s67, s41")

    DQ = int(os.environ.get("DQ", "2"))
    DPOS = eval(os.environ.get("DPOS", "[0,2,4,6,8,10,12,14]"))
    if TOUCH:
        a("v_and_b32 v26, 31, v2")
        a("v_lshlrev_b32 v26, 7, v26")
        a("s_mov_b32 s68, 0")
        a("s_mov_b32 s69, -1")
    R0 = int(os.environ.get('R0', '26'))
    AHD = 8
    for i in range(64):
        a(f"v_mov_b32 {vr(O + i)}, 0")
    for i in range(16):
        a(f"v_mov_b32 {vr(NEGM + i)}, 0")
    for i in range(8):
        a(f"v_mov_b32 {vr(PB + i)}, 0")
    a(f"v_mov_b32 {vr(vL)}, 0")
    a(f"v_mov_b32 {vr(vFloor)}, {FLOOR0}")
    a("s_mov_b32 s57, -1.0")
    a("s_mov_b32 s38, -1")
    a("s_mov_b32 s55, 0")
    a("s_waitcnt vmcnt(0) lgkmcnt(0)")
    a("s_barrier")
    if fused and STAG:
        a("s_cmp_lt_u32 s2, 128")
        a("s_cbranch_scc1 L_ws_kvl")
        wflag_set(a, 32, 6, 28, "kvl")
    a("s_lshl_b32 s50, s59, 14")
    a("s_add_u32 s50, s50, s40")
    dma_k("s50")
    a("s_mov_b64 exec, 1")
    a("buffer_load_dword v21, v20, s[20:23], s40 offen")
    if TOUCH:
        a("buffer_load_dword v21, v20, s[20:23], s40 offen")
    a("s_mov_b64 exec, -1")
    lg = Lgkm()
    for n in range(16, 24):
        rd(n, lg)
    dma_offsets()
    for n in range(16, 24):
        lg.need(a, [("F", n % 8)])
        mfma(n)
    for x in togK_l():
        a(x)
    a("s_nop 7")
    mask(SA, "s55", 0, "p0")
    dstamp(0)

    def post4(a_):
        pass

    if os.environ.get("PRIO"):
        a(f"s_cmp_eq_u32 s36, {os.environ['PRIO']}")
        a("s_cbranch_scc0 L_k2_loop")
        a("s_setprio 1")
    a.label("L_k2_loop")
    lg = Lgkm()
    a(f"s_waitcnt vmcnt({2 if TOUCH else 1})")
    if fused and STAG:
        a("s_cmp_eq_u32 s38, 3")
        a("s_cbranch_scc1 L_k2_kv2")
        a.label("L_k2_kv2_done")
        o = ool
        o.label("L_k2_kv2")

        def kv_peers2(vl, vd):
            o(f"v_lshrrev_b32 v19, 1, v{vl}")
            o(f"v_and_b32 v{vd}, 1, v{vl}")
            o(f"v_lshlrev_b32 v{vd}, 2, v{vd}")
            o(f"v_lshl_add_u32 v{vd}, v19, 5, v{vd}")
            o("s_bfe_u32 s48, s33, 0x20001")
            o("s_lshl_b32 s48, s48, 3")
            o("s_lshr_b32 s49, s33, 3")
            o("s_add_u32 s48, s48, s49")
            o("s_add_u32 s48, s48, 128")
            o(f"v_add_u32 v{vd}, s48, v{vd}")
        wflag_wait(o, 32, 6, 28, "kv2", 8, kv_peers2, barrier=False)
        o("s_branch L_k2_kv2_done")
    a("s_barrier")
    dl = dma_list("K", "s50") + dma_list("V", "s51")
    if os.environ.get("A_NODMA"):
        dl = []
    novalu = os.environ.get("A_NOVALU")
    valu = {}
    valu.update(spread(sm_part(SA, PA, PSA, 0), list(range(R0, 32))))
    valu.update(spread(sm_part(SA, PA, PSA, 1), list(range(0, 8))))
    valu.update(spread(["s_nop 1", "s_nop 1"] + sm_part(SB, PB, PSB, 0), list(range(8, 16))))
    valu[15] = valu[15] + togK_l()
    valu.update(spread(sm_part(SB, PB, PSB, 1), list(range(16, 24))))
    valu[23] = valu[23] + togV_l()
    valu.update({p: [] for p in range(24, R0)})
    if novalu:
        for k in valu:
            valu[k] = [x for x in valu[k] if x.startswith("v_xor")]
    order = list(range(R0, 32)) + list(range(0, R0))
    for n in range(32, R0 + AHD):
        rd(n, lg)
    for k, n in enumerate(order):
        nn = n + AHD if n >= R0 else n + AHD
        lg.need(a, [("F", n % 8)]) if n < R0 else None
        mfma(n)
        if n >= R0:
            rd(n + AHD, lg)
        elif n + AHD < 32:
            rd(n + AHD, lg)
        for x in valu[n]:
            a(x)
        if dl and k in DPOS:
            dl.pop(0)()
            if not dl:
                pf()
                if TOUCH:
                    a("v_mov_b32 v23, s66")
                    a("v_mov_b32 v19, s67")
                    a("v_cndmask_b32 v23, v23, v19, s[68:69]")
                    a("v_add_u32 v23, v23, v26")
                    a("buffer_load_dword v21, v23, s[20:23], 0 offen")
        if n == 31:
            a("s_cmp_eq_u32 s38, s53")
            a("s_cbranch_scc1 L_k2_fin_small")
            a.label("L_k2_fin_small_done")
            a("s_mov_b32 s54, s55")
            a("s_mov_b32 s55, s43")
            a("s_add_u32 s38, s38, 1")
            o = ool
            o.label("L_k2_fin_small")
            o(f"v_mov_b32 v10, {vr(vL)}")
            o(f"v_mov_b32 v11, {vr(vL)}")
            ctx_addr(o, "s52")
            o("v_permlane32_swap_b32 v10, v11")
            o("s_nop 1")
            o("v_add_f32 v10, v10, v11")
            o("v_rcp_f32 v10, v10")
            o("s_nop 0")
            for c4 in range(8):
                for i in range(8):
                    o(f"v_mul_f32 {vr(O + 8 * c4 + i)}, {vr(O + 8 * c4 + i)}, v10")
                for i in range(4):
                    o(f"v_cvt_pk_bf16_f32 {vr(O + 8 * c4 + i)}, {vr(O + 8 * c4 + 2 * i)}, {vr(O + 8 * c4 + 2 * i + 1)}")
                o(f"buffer_store_dwordx4 {vr(O + 8 * c4, 4)}, v3, s[20:23], s48 offen{STF}")
                o("s_add_u32 s48, s48, 65536")
            o("s_nop 1")
            for i in range(64):
                o(f"v_mov_b32 {vr(O + i)}, 0")
            o(f"v_mov_b32 {vr(vL)}, 0")
            o(f"v_mov_b32 {vr(vFloor)}, {FLOOR0}")
            o("s_mov_b32 s57, -1.0")
            o("s_branch L_k2_fin_small_done")
        if n == 7:
            mask(SB, "s54", 1, "m1")
            chk(SA, SB, PA, PSA, "a")
            a("s_cmp_eq_u32 s38, s53")
            a("s_cbranch_scc1 L_k2_sw1")
            a.label("L_k2_sw1_done")
            o = ool
            o.label("L_k2_sw1")
            for i in range(8):
                o(f"ds_read_b128 {vr(Q + 4 * i, 4)}, v22 offset:{i * 1024}")
            o("s_mov_b32 s52, s39")
            o("s_mov_b32 s39, s56")
            o("s_branch L_k2_sw1_done")
        if n == 23:
            mask(SA, "s55", 0, "m0")
            chk(SB, SA, PB, PSB, "b")
        if n == 24:
            dma_offsets()
    a("s_waitcnt lgkmcnt(0)")
    a("s_cmp_lt_i32 s38, 16")
    a("s_cbranch_scc1 L_k2_loop")
    for n in range(R0, 32):
        mfma(n)
    dstamp(1)
    a(f"v_mov_b32 v12, {vr(NEGM)}")
    a(f"v_mov_b32 v10, {vr(vL)}")
    a(f"v_mov_b32 v11, {vr(vL)}")
    a("s_nop 1")
    a("v_permlane32_swap_b32 v10, v11")
    a("s_nop 1")
    a("v_add_f32 v13, v10, v11")
    a("s_barrier")
    a("s_and_b32 s48, s42, 0x10000")
    a("s_and_b32 s49, s45, 0x18000")
    a("s_lshl_b32 s50, s35, 13")
    a("s_add_u32 s48, s48, s50")
    a("s_add_u32 s49, s49, s50")
    a("s_cmp_eq_u32 s36, 1")
    a("s_cselect_b32 s50, s48, s49")
    a("s_cselect_b32 s49, s49, s48")
    a(f"v_add_u32 v3, s49, {vr(vLane16)}")
    a(f"v_add_u32 v4, s50, {vr(vLane16)}")
    a("s_lshl_b32 s49, s32, 9")
    a("s_add_u32 s49, s49, 131072")
    a("s_xor_b32 s50, s49, 2048")
    a("v_lshlrev_b32 v5, 3, v2")
    a("v_add_u32 v6, s50, v5")
    a("v_add_u32 v5, s49, v5")
    a("ds_write_b64 v5, v[12:13]")
    a("s_cmp_eq_u32 s36, 1")
    a("s_cbranch_scc1 L_k2_m1")
    for i in range(8):
        a(f"ds_write_b128 v3, {vr(O + 32 + 4 * i, 4)} offset:{i * 1024}")
    a("s_branch L_k2_m2")
    a.label("L_k2_m1")
    for i in range(8):
        a(f"ds_write_b128 v3, {vr(O + 4 * i, 4)} offset:{i * 1024}")
    for i in range(32):
        a(f"v_mov_b32 {vr(O + i)}, {vr(O + 32 + i)}")
    a.label("L_k2_m2")
    a("s_waitcnt lgkmcnt(0)")
    a("s_barrier")
    a("ds_read_b64 v[14:15], v6")
    for i in range(8):
        a(f"ds_read_b128 {vr(O + 32 + 4 * i, 4)}, v4 offset:{i * 1024}")
    a("s_waitcnt lgkmcnt(8)")
    a("v_min_f32 v16, v12, v14")
    a("v_sub_f32 v17, v16, v12")
    a("v_sub_f32 v18, v16, v14")
    a("v_exp_f32 v17, v17")
    a("v_exp_f32 v18, v18")
    a("s_nop 0")
    a("v_mul_f32 v19, v13, v17")
    a("v_fmac_f32 v19, v15, v18")
    a("v_rcp_f32 v19, v19")
    a("s_nop 0")
    a("v_mul_f32 v17, v17, v19")
    a("v_mul_f32 v18, v18, v19")
    a("s_waitcnt lgkmcnt(0)")
    for i in range(32):
        a(f"v_mul_f32 {vr(O + i)}, {vr(O + i)}, v17")
        a(f"v_fmac_f32 {vr(O + i)}, {vr(O + 32 + i)}, v18")
    for i in range(16):
        a(f"v_cvt_pk_bf16_f32 {vr(S + i)}, {vr(O + 2 * i)}, {vr(O + 2 * i + 1)}")
    ctx_addr(a, "s56")
    a("s_lshl_b32 s49, s36, 18")
    a("s_add_u32 s48, s48, s49")
    for i in range(4):
        a(f"buffer_store_dwordx4 {vr(S + 4 * i, 4)}, v3, s[20:23], s48 offen{STF}")
        a("s_add_u32 s48, s48, 65536")
    a.label("L_k2_fin")
    if STAMPS:
        a("s_waitcnt vmcnt(0)")
        stamp(a, 10 if fused else 2)
        stamp_flush(a, 11 if fused else 5, 1, 2, 32, s_t=70, kid=(0 if fused else 1))
    if chain:
        if HOIST:
            a("s_waitcnt vmcnt(4) lgkmcnt(0)")
            a("s_barrier")
        else:
            a("s_waitcnt vmcnt(0)")
            a("s_barrier")
            wflag_set(a, 32, 4, 28, "k2out")
        return ool
    a.label("L_k2_end")
    a("s_endpgm")
    a.L += ool.L
    return name, "grid=(256,1,1) block=(512,1,1) lds=163840", 256
```

```python
MB = 1 << 20
XN_OFF = 0
KP_OFF = 4 * MB
VP_OFF = 20 * MB
CTX_OFF = 36 * MB
PART_OFF = 52 * MB
H_OFF = 72 * MB
HN_OFF = 76 * MB
ACT_OFF = 80 * MB
PART2_OFF = 128 * MB
WS_BYTES = 268435456

KA_X, KA_CKV, KA_WQ, KA_WUK, KA_WUV, KA_WO, KA_BX, KA_WG, KA_WU, KA_WD, KA_OUT, KA_DBG, KA_WS = [8 * i for i in range(13)]


class Asm:
    def __init__(self):
        self.L = []

    def __call__(self, s):
        for line in s.split("\n"):
            line = line.strip()
            if line:
                self.L.append("    " + line)

    def label(self, l):
        self.L.append(l + ":")

    def comment(self, s):
        self.L.append("    ; " + s)

    def text(self):
        return "\n".join(self.L) + "\n"


class Lgkm:
    def __init__(self):
        self.q = []

    def issue(self, tag):
        self.q.append(tag)

    def need(self, a, tags):
        idx = -1
        for i, t in enumerate(self.q):
            if t in tags:
                idx = i
        if idx < 0:
            return
        n = len(self.q) - 1 - idx
        assert n <= 15, n
        a(f"s_waitcnt lgkmcnt({n})")
        self.q = self.q[idx + 1:]


def vr(b, n=1):
    return f"v{b}" if n == 1 else f"v[{b}:{b + n - 1}]"


def sr(b, n=1):
    return f"s{b}" if n == 1 else f"s[{b}:{b + n - 1}]"


def kernel_header(a, name):
    a.L.append(f".globl {name}")
    a.L.append(".p2align 8")
    a.L.append(f".type {name},@function")
    a.label(name)


def kernel_desc(name, vgpr=256, sgpr=102):
    acc = (vgpr + 3) // 4 * 4
    return f""".amdhsa_kernel {name}
  .amdhsa_next_free_vgpr {vgpr}
  .amdhsa_next_free_sgpr {sgpr}
  .amdhsa_accum_offset {acc}
  .amdhsa_group_segment_fixed_size 0
  .amdhsa_kernarg_size 104
  .amdhsa_user_sgpr_count 2
  .amdhsa_user_sgpr_kernarg_segment_ptr 1
  .amdhsa_system_sgpr_workgroup_id_x 1
.end_amdhsa_kernel
"""


def wave_sum(a, v, t0, t1):
    a("s_nop 1")
    a(f"v_add_f32_dpp {vr(v)}, {vr(v)}, {vr(v)} quad_perm:[1,0,3,2] row_mask:0xf bank_mask:0xf")
    a("s_nop 1")
    a(f"v_add_f32_dpp {vr(v)}, {vr(v)}, {vr(v)} quad_perm:[2,3,0,1] row_mask:0xf bank_mask:0xf")
    a("s_nop 1")
    a(f"v_add_f32_dpp {vr(v)}, {vr(v)}, {vr(v)} row_half_mirror row_mask:0xf bank_mask:0xf")
    a("s_nop 1")
    a(f"v_add_f32_dpp {vr(v)}, {vr(v)}, {vr(v)} row_mirror row_mask:0xf bank_mask:0xf")
    a(f"v_mov_b32 {vr(t0)}, {vr(v)}")
    a("s_nop 1")
    a(f"v_permlane16_swap_b32 {vr(v)}, {vr(t0)}")
    a("s_nop 1")
    a(f"v_add_f32 {vr(v)}, {vr(v)}, {vr(t0)}")
    a(f"v_mov_b32 {vr(t0)}, {vr(v)}")
    a("s_nop 1")
    a(f"v_permlane32_swap_b32 {vr(v)}, {vr(t0)}")
    a("s_nop 1")
    a(f"v_add_f32 {vr(v)}, {vr(v)}, {vr(t0)}")


def round_bf16(a, v, t):
    a(f"v_cvt_pk_bf16_f32 {vr(t)}, {vr(v)}, {vr(v)}")
    a(f"v_lshlrev_b32 {vr(v)}, 16, {vr(t)}")


def make_srd(a, s, base_lo, base_hi, nrec):
    a(f"s_mov_b32 {sr(s)}, {base_lo}")
    a(f"s_and_b32 {sr(s + 1)}, {base_hi}, 0xffff")
    a(f"s_mov_b32 {sr(s + 2)}, {nrec}")
    a(f"s_mov_b32 {sr(s + 3)}, 0x00020000")


STAMP_OFF = 200 * MB
import os
STAMPS = bool(os.environ.get("STAMPS"))


def stamp(a, idx, s_t=70, srd=28):
    if not STAMPS:
        return
    a("s_waitcnt lgkmcnt(0)")
    a(f"s_memtime s[{s_t}:{s_t + 1}]")
    a("s_waitcnt lgkmcnt(0)")
    a(f"v_mov_b32 v254, s{s_t}") if False else None
    a(f"s_mov_b32 s{s_t + 2 + idx}, s{s_t}")
    if idx == 0:
        a(f"s_memrealtime s[{s_t}:{s_t + 1}]")
        a("s_waitcnt lgkmcnt(0)")
        a(f"s_mov_b32 s{s_t + 2 + 14}, s{s_t}")


def stamp_flush(a, n, vtmp0, vtmp1, s_w, s_t=90, srd=28, kid=0):
    if not STAMPS:
        return
    if s_t == 70:
        a(f"s_memrealtime s[{s_t}:{s_t + 1}]")
        a("s_waitcnt lgkmcnt(0)")
        a(f"s_mov_b32 s{s_t + 2 + 15}, s{s_t}")
    a(f"s_lshl_b32 s{s_t}, s2, 3")
    a(f"s_add_u32 s{s_t}, s{s_t}, s{s_w}")
    a(f"s_lshl_b32 s{s_t}, s{s_t}, 6")
    a(f"s_add_u32 s{s_t}, s{s_t}, {STAMP_OFF + kid * MB}")
    a(f"v_mov_b32 v{vtmp0}, 0")
    for i in list(range(n)) + ([14, 15] if s_t == 70 else []):
        a(f"v_mov_b32 v{vtmp1}, s{s_t + 2 + i}")
        a(f"buffer_store_dword v{vtmp1}, v{vtmp0}, s[{srd}:{srd + 3}], s{s_t} offen offset:{4 * i}")


def prefetch(a, ptrs, s_w, srd, vtmp, vdst, lanes, s_tmp):
    if os.environ.get("NOPF"):
        return
    a(f"s_lshl_b32 s{s_tmp}, s2, 3")
    a(f"s_add_u32 s{s_tmp}, s{s_tmp}, s{s_w}")
    a(f"s_mul_i32 s{s_tmp}, s{s_tmp}, {lanes * 128}")
    a(f"v_and_b32 v{vtmp}, 63, v0")
    a(f"v_lshlrev_b32 v{vtmp}, 7, v{vtmp}")
    a(f"s_mov_b64 exec, {(1 << lanes) - 1}")
    for i, (lo, hi, nb) in enumerate(ptrs):
        make_srd(a, srd, lo, hi, nb)
        a(f"buffer_load_dword v{vdst + i}, v{vtmp}, s[{srd}:{srd + 3}], s{s_tmp} offen")
    a("s_mov_b64 exec, -1")

STF = os.environ.get("STF", "")


DBG_SRD = 92


def dbg_setup(a):
    a(f"s_load_dwordx2 s[90:91], s[0:1], {KA_DBG}")


def dbg_srd(a):
    make_srd(a, DBG_SRD, "s90", "s91", 256)


def flag_set(a, s_w, val, tag, vt=(16, 17)):
    a(f"s_cmp_lg_u32 s{s_w}, 0")
    a(f"s_cbranch_scc1 L_fs_{tag}")
    a(f"v_mov_b32 v{vt[0]}, {val}")
    a(f"v_mov_b32 v{vt[1]}, s2")
    a("s_mov_b64 exec, 1")
    a(f"buffer_store_byte v{vt[0]}, v{vt[1]}, s[{DBG_SRD}:{DBG_SRD + 3}], 0 offen sc1")
    a("s_mov_b64 exec, -1")
    a.label(f"L_fs_{tag}")


def flag_wait(a, s_w, val, tag, mask_code, vt=(16, 17, 18)):
    a(f"s_cmp_lg_u32 s{s_w}, 0")
    a(f"s_cbranch_scc1 L_fw_{tag}_done")
    a(f"v_and_b32 v{vt[0]}, 63, v0")
    mask_code(vt[0], vt[1])
    a(f"v_lshlrev_b32 v{vt[0]}, 2, v{vt[0]}")
    a("s_mov_b32 s96, 0x100000")
    a.label(f"L_fw_{tag}_loop")
    a(f"buffer_load_dword v{vt[2]}, v{vt[0]}, s[{DBG_SRD}:{DBG_SRD + 3}], 0 offen sc1")
    a("s_waitcnt vmcnt(0)")
    a(f"v_or_b32 v{vt[2]}, 0x80808080, v{vt[2]}")
    a(f"v_subrev_u32 v{vt[2]}, {val * 0x01010101}, v{vt[2]}")
    a(f"v_and_b32 v{vt[2]}, v{vt[2]}, v{vt[1]}")
    a(f"v_cmp_ne_u32 vcc, v{vt[2]}, v{vt[1]}")
    a("s_nop 1")
    a(f"s_cbranch_vccz L_fw_{tag}_done")
    a(f"s_sleep {os.environ.get('SLP', '8')}")
    a("s_sub_u32 s96, s96, 1")
    a("s_cmp_lg_u32 s96, 0")
    a(f"s_cbranch_scc1 L_fw_{tag}_loop")
    a.label(f"L_fw_{tag}_done")
    a("s_barrier")


FLG_OFF = 120 * MB
NPHASE = 8


def wflag_zero(a, s_w, srd, vt=(16, 17)):
    a(f"s_lshl_b32 s96, s{s_w}, 8")
    a("s_add_u32 s96, s96, s2")
    a("s_lshl_b32 s96, s96, 7")
    a(f"s_add_u32 s96, s96, {FLG_OFF}")
    a(f"v_mov_b32 v{vt[0]}, 0")
    a("s_mov_b64 exec, 1")
    a(f"buffer_store_dword v{vt[0]}, v{vt[0]}, s[{srd}:{srd + 3}], s96 offen sc1")
    a("s_mov_b64 exec, -1")


def wflag_set(a, s_w, ph, srd, tag, vt=(16, 17)):
    a(f"s_cmp_lg_u32 s{s_w}, 0")
    a(f"s_cbranch_scc1 L_ws_{tag}")
    a("s_lshl_b32 s96, s2, 7")
    a(f"s_add_u32 s96, s96, {FLG_OFF + ph * 256 * 128}")
    a(f"v_mov_b32 v{vt[0]}, 1")
    a(f"v_mov_b32 v{vt[1]}, 0")
    a("s_mov_b64 exec, 1")
    a(f"buffer_store_dword v{vt[0]}, v{vt[1]}, s[{srd}:{srd + 3}], s96 offen sc1")
    a("s_mov_b64 exec, -1")
    a.label(f"L_ws_{tag}")


def wflag_wait(a, s_w, ph, srd, tag, npeers, peer_code, vt=(16, 17, 18), barrier=True):
    a(f"s_cmp_lg_u32 s{s_w}, 0")
    a(f"s_cbranch_scc1 L_ww_{tag}_done")
    a(f"v_and_b32 v{vt[0]}, 63, v0")
    peer_code(vt[0], vt[1])
    a(f"v_lshlrev_b32 v{vt[1]}, 7, v{vt[1]}")
    a(f"s_mov_b32 s97, {FLG_OFF + ph * 256 * 128}")
    a("s_mov_b32 s96, 0x100000")
    a(f"s_mov_b64 exec, {(1 << npeers) - 1}")
    a.label(f"L_ww_{tag}_loop")
    a(f"buffer_load_dword v{vt[2]}, v{vt[1]}, s[{srd}:{srd + 3}], s97 offen sc1")
    a("s_waitcnt vmcnt(0)")
    a(f"v_cmp_ne_u32 vcc, 1, v{vt[2]}")
    a("s_nop 1")
    a(f"s_cbranch_vccz L_ww_{tag}_ok")
    a(f"s_sleep {os.environ.get('SLP', '2')}")
    a("s_sub_u32 s96, s96, 1")
    a("s_cmp_lg_u32 s96, 0")
    a(f"s_cbranch_scc1 L_ww_{tag}_loop")
    a.label(f"L_ww_{tag}_ok")
    a("s_mov_b64 exec, -1")
    a.label(f"L_ww_{tag}_done")
    if barrier:
        a("s_barrier")


def zcount_add(a, s_w, tag, vt=(16, 17)):
    a(f"s_cmp_lg_u32 s{s_w}, 0")
    a(f"s_cbranch_scc1 L_zc_{tag}")
    a(f"v_mov_b32 v{vt[0]}, 1")
    a(f"v_mov_b32 v{vt[1]}, 0")
    a("s_mov_b64 exec, 1")
    a(f"buffer_atomic_add v{vt[0]}, v{vt[1]}, s[{DBG_SRD}:{DBG_SRD + 3}], 0 offen sc1")
    a("s_mov_b64 exec, -1")
    a.label(f"L_zc_{tag}")


def zcount_wait(a, s_w, tag, vt=(16, 17)):
    a(f"s_cmp_lg_u32 s{s_w}, 0")
    a(f"s_cbranch_scc1 L_zw_{tag}_done")
    a(f"v_lshlrev_b32 v{vt[1]}, 6, v0")
    a("s_mov_b32 s96, 0x100000")
    a("s_mov_b64 exec, 15")
    a.label(f"L_zw_{tag}_loop")
    a(f"buffer_load_dword v{vt[0]}, v{vt[1]}, s[{DBG_SRD}:{DBG_SRD + 3}], 0 offen sc1")
    a("s_waitcnt vmcnt(0)")
    a(f"v_cmp_ne_u32 vcc, 64, v{vt[0]}")
    a("s_nop 1")
    a(f"s_cbranch_vccz L_zw_{tag}_ok")
    a("s_sleep 8")
    a("s_sub_u32 s96, s96, 1")
    a("s_cmp_lg_u32 s96, 0")
    a(f"s_cbranch_scc1 L_zw_{tag}_loop")
    a.label(f"L_zw_{tag}_ok")
    a("s_mov_b64 exec, -1")
    a.label(f"L_zw_{tag}_done")


def wflag_zero_and_count(a, s_w, srd, vt=(16, 17)):
    a(f"s_cmp_lg_u32 s{s_w}, 0")
    a("s_cbranch_scc1 L_zac")
    a("s_lshl_b32 s96, s2, 7")
    a(f"s_add_u32 s96, s96, {FLG_OFF}")
    a(f"v_mov_b32 v{vt[0]}, 0")
    a(f"v_lshlrev_b32 v{vt[1]}, 15, v0")
    a("s_mov_b64 exec, 0xff")
    a(f"buffer_store_dword v{vt[0]}, v{vt[1]}, s[{srd}:{srd + 3}], s96 offen sc1")
    a("s_and_b32 s96, s2, 3")
    a("s_lshl_b32 s96, s96, 6")
    a(f"v_mov_b32 v{vt[1]}, 1")
    a("s_mov_b64 exec, 1")
    a("s_waitcnt vmcnt(0)")
    a(f"buffer_atomic_add v{vt[1]}, v{vt[0]}, s[{DBG_SRD}:{DBG_SRD + 3}], s96 offen sc1")
    a("s_mov_b64 exec, -1")
    a.label("L_zac")


HOIST = os.environ.get("HOIST", "0") == "1"


def late_signal(a, ph, tag, nyoung):
    if HOIST:
        a(f"s_waitcnt vmcnt({nyoung})")
        a("s_barrier")
        wflag_set(a, 32, ph, 28, tag)
```

```python
import math
from gen_common import *
from gen_gemm import *


def div18(a, vq, vr_, vin, vtmp):
    a(f"v_mul_u32_u24 {vr(vq)}, 3641, {vr(vin)}")
    a(f"v_lshrrev_b32 {vr(vq)}, 16, {vr(vq)}")
    a(f"v_mul_u32_u24 {vr(vtmp)}, 18, {vr(vq)}")
    a(f"v_sub_u32 {vr(vr_)}, {vr(vin)}, {vr(vtmp)}")


def gen_splitk(name, KA_W, A_OFF, NSTAGE, kid, fuse_ln=None, chain_in=False, chain_out=False, endlabel=None):
    PART = PART2_OFF if fuse_ln is False else PART_OFF

    def g(a):
        if not chain_in:
            kernel_header(a, name)
            a("s_cmp_ge_u32 s2, 256")
            a(f"s_cbranch_scc1 {endlabel or ('L_' + name + '_end')}")
        a(f"s_load_dwordx2 s[8:9], s[0:1], {KA_W}")
        a(f"s_load_dwordx2 s[12:13], s[0:1], {KA_WS}")
        if fuse_ln is not None:
            dbg_setup(a)
            a(f"s_load_dwordx2 s[4:5], s[0:1], {KA_X if fuse_ln else KA_OUT}")
        a("v_lshrrev_b32 v1, 6, v0")
        a("v_and_b32 v2, 63, v0")
        a("s_nop 0")
        a("v_readfirstlane_b32 s32, v1")
        a("s_and_b32 s48, s2, 7")
        a("s_lshr_b32 s49, s2, 3")
        a("s_lshr_b32 s33, s48, 1")
        a("s_lshr_b32 s50, s49, 2")
        a("s_sub_u32 s34, 15, s50")
        a("s_bitcmp1_b32 s48, 0")
        a("s_cselect_b32 s34, s34, s50")
        a("s_and_b32 s35, s49, 3")
        a("s_and_b32 s36, s32, 3")
        a("s_lshr_b32 s37, s32, 2")
        a("s_waitcnt lgkmcnt(0)")
        stamp(a, 0)
        KTOT = NSTAGE * 64 * 4
        make_srd(a, 20, "s8", "s9", KTOT * 1152)
        a(f"s_mov_b32 s47, {KTOT * 1152}")
        make_srd(a, 16, "s12", "s13", WS_BYTES)
        a(f"s_mov_b32 s46, {WS_BYTES}")
        make_srd(a, 28, "s12", "s13", WS_BYTES)
        if fuse_ln is not None:
            dbg_srd(a)
        TS, WS_ = 16384, 18432
        WBASE = 4 * TS
        vA0, vA1, vW0, vW1, vW2, vT, vWa, vWb = 64, 65, 66, 67, 68, 70, 71, 69
        a("s_lshr_b32 s48, s32, 1")
        a("s_lshl_b32 s48, s48, 16")
        a("s_and_b32 s49, s32, 1")
        a("s_lshl_b32 s49, s49, 11")
        a("s_add_u32 s48, s48, s49")
        a("v_lshlrev_b32 v20, 4, v2")
        a(f"v_add_u32 {vr(vA0)}, s48, v20")
        a(f"s_mul_i32 s38, s33, {NSTAGE * 262144}")
        a("s_lshl_b32 s48, s34, 12")
        a("s_add_u32 s38, s38, s48")
        a(f"s_add_u32 s38, s38, {A_OFF}")
        for j, vd in ((0, vW0), (1, vW1), (2, vW2)):
            a(f"v_add_u32 v20, {64 * j}, v2")
            div18(a, 21, 22, 20, 23)
            a("v_and_b32 v23, 1, v22")
            a("v_bfe_u32 v24, v22, 1, 1")
            a("v_lshl_or_b32 v23, v23, 1, v24")
            a("v_and_b32 v24, 28, v22")
            a("v_or_b32 v23, v23, v24")
            a("v_cmp_gt_u32 vcc, 16, v22")
            a("s_nop 1")
            a("v_cndmask_b32 v22, v22, v23, vcc")
            a("s_lshl_b32 s48, s32, 3")
            a("v_add_u32 v21, s48, v21")
            a("v_mul_u32_u24 v21, 1152, v21")
            a(f"v_lshl_add_u32 {vr(vd)}, v22, 4, v21")
        a(f"s_mul_i32 s39, s33, {NSTAGE * 64 * 1152}")
        a("s_mul_i32 s48, s35, 288")
        a("s_add_u32 s39, s39, s48")
        a("s_lshl_b32 s40, s32, 11")
        a("s_mul_i32 s41, s32, 2304")
        a(f"s_add_u32 s41, s41, {WBASE}")
        a("v_and_b32 v62, 15, v2")
        a("v_lshrrev_b32 v61, 4, v2")
        a("v_lshrrev_b32 v20, 1, v61")
        a("s_lshl_b32 s48, s37, 1")
        a("v_add_u32 v20, s48, v20")
        a("v_lshlrev_b32 v20, 12, v20")
        a("s_lshl_b32 s48, s36, 5")
        a("v_add_u32 v21, s48, v62")
        a("v_lshl_add_u32 v20, v21, 5, v20")
        a("v_and_b32 v21, 1, v61")
        a(f"v_lshl_add_u32 {vr(vT)}, v21, 4, v20")
        a("v_lshrrev_b32 v20, 5, v2")
        a("v_lshlrev_b32 v20, 4, v20")
        a("v_bfe_u32 v21, v2, 2, 3")
        a("v_add_u32 v20, v20, v21")
        a("s_lshl_b32 s48, s37, 5")
        a("v_add_u32 v20, s48, v20")
        a("v_mul_u32_u24 v20, 288, v20")
        a(f"v_add_u32 v20, {WBASE}, v20")
        a("v_and_b32 v21, 3, v2")
        a(f"v_lshl_add_u32 {vr(vWa)}, v21, 3, v20")
        a("v_and_b32 v22, 1, v2")
        a("v_lshl_add_u32 v20, v22, 4, v20")
        a("v_bfe_u32 v22, v2, 1, 1")
        a(f"v_lshl_add_u32 {vr(vWb)}, v22, 3, v20")
        a("s_mov_b32 s44, 0")
        c = GemmCfg()
        c.TN, c.TM, c.R, c.AHEAD, c.NSTEPS = 9, 2, int(ENV('SKR', '6')), int(ENV('SKA', '5')), NSTAGE
        c.NSW, c.WSLOT, c.NST, c.TSLOT, c.TPER = 4, WS_, 4, TS, 1
        c.TPOS = 0
        c.DMA_EVERY = 2
        c.swap = False
        c.acc = lambda nt, tt: 128 + (nt * 2 + tt) * 4
        c.tfrag = lambda buf, tt: 112 + buf * 8 + tt * 4
        c.wfrag = lambda r_: 200 + r_ * 4
        c.wread = lambda nt: [(vWb if nt == 8 else vWa, nt * 32), (vWb if nt == 8 else vWa, nt * 32 + 8 * 288)]
        c.wadv = lambda nt: [vWa] if nt == 7 else ([vWb] if nt == 8 else [])
        c.tread = lambda q, tt: (vT, tt * 512)
        c.tadv = lambda q: [vT]
        c.s_dA, c.s_dB, c.s_sl, c.s_dmaW, c.s_cnt, c.s_slotW = 50, 51, 52, 53, 45, 54
        c.s_dT, c.s_slT, c.s_dmaT, c.s_slotT = 55, 56, 57, 58

        def dmaW():
            def d0():
                a("s_add_u32 m0, s53, s41")
                a("s_nop 0")
                a(f"buffer_load_dwordx4 {vr(vW0)}, s[20:23], s39 offen lds")

            def d1():
                a("s_add_u32 m0, m0, 1024")
                a("s_nop 0")
                a(f"buffer_load_dwordx4 {vr(vW1)}, s[20:23], s39 offen lds")

            def d2():
                a("s_add_u32 m0, m0, 1024")
                a("s_mov_b64 exec, 0xffff")
                a(f"buffer_load_dwordx4 {vr(vW2)}, s[20:23], s39 offen lds")
                a("s_mov_b64 exec, -1")
            return [d0, d1, d2]
        c.dmaW = dmaW

        def dmaT(h):
            def d0():
                a("s_add_u32 m0, s57, s40")
                a("s_nop 0")
                a(f"buffer_load_dwordx4 {vr(vA0)}, s[16:19], s38 offen lds")

            def d1():
                a(f"buffer_load_dwordx4 {vr(vA0)}, s[16:19], s38 offen offset:1024 lds")
            return [d0, d1]
        c.dmaT = dmaT

        def advW():
            a(f"s_add_u32 s39, s39, {64 * 1152}")
        c.advW = advW

        def advT():
            a("s_add_u32 s38, s38, 262144")
            a("s_add_u32 s44, s44, 1")
            a(f"s_cmp_lt_u32 s44, {NSTAGE}")
            a("s_cselect_b32 s18, s46, 0")
            a("s_cselect_b32 s22, s47, 0")
        c.advT = advT
        if chain_in:
            def peers_in(vl, vd):
                a(f"v_and_b32 v19, 3, v{vl}")
                a(f"v_lshrrev_b32 v{vd}, 2, v{vl}")
                a(f"v_lshl_add_u32 v{vd}, v19, 3, v{vd}")
                a("s_andn2_b32 s48, s2, 31")
                a("s_lshl_b32 s49, s33, 1")
                a("s_add_u32 s48, s48, s49")
                a(f"v_add_u32 v{vd}, s48, v{vd}")
            def pre_T():
                late_signal(a, 4 if fuse_ln else 3, name + "_ls", 9)
                wflag_wait(a, 32, 4 if fuse_ln else 3, 28, name + "_in", 8, peers_in)
            c.pre_T = pre_T
        gemm_prologue_and_loop(a, c, name)
        a("s_waitcnt vmcnt(0)")
        a("s_barrier")
        a("s_mul_i32 s48, s32, 9216")
        a("s_xor_b32 s49, s32, 4")
        a("s_mul_i32 s49, s49, 9216")
        a("v_lshlrev_b32 v3, 4, v2")
        a("v_add_u32 v4, s49, v3")
        a("v_add_u32 v3, s48, v3")
        a("s_cmp_eq_u32 s37, 1")
        a(f"s_cbranch_scc1 L_{name}_e1")
        for nt in range(9):
            a(f"ds_write_b128 v3, {vr(c.acc(nt, 1), 4)} offset:{nt * 1024}")
        a(f"s_branch L_{name}_e2")
        a.label(f"L_{name}_e1")
        for nt in range(9):
            a(f"ds_write_b128 v3, {vr(c.acc(nt, 0), 4)} offset:{nt * 1024}")
        for nt in range(9):
            for r_ in range(4):
                a(f"v_mov_b32 {vr(c.acc(nt, 0) + r_)}, {vr(c.acc(nt, 1) + r_)}")
        a.label(f"L_{name}_e2")
        a("s_waitcnt lgkmcnt(0)")
        a("s_barrier")
        for nt in range(9):
            a(f"ds_read_b128 {vr(c.acc(nt, 1), 4)}, v4 offset:{nt * 1024}")
        a(f"s_mul_i32 s48, s33, {2048 * 1280}")
        a("s_lshl_b32 s49, s34, 7")
        a("s_lshl_b32 s50, s36, 5")
        a("s_add_u32 s49, s49, s50")
        a("s_lshl_b32 s50, s37, 4")
        a("s_add_u32 s49, s49, s50")
        a("s_mul_i32 s49, s49, 1280")
        a("s_add_u32 s48, s48, s49")
        a("s_mul_i32 s49, s35, 320")
        a("s_add_u32 s48, s48, s49")
        a(f"s_add_u32 s48, s48, {PART}")
        a("v_mul_u32_u24 v5, 1280, v62")
        a("v_lshl_add_u32 v6, v61, 3, v5")
        a("v_lshl_add_u32 v5, v61, 4, v5")
        for nt in range(9):
            a(f"s_waitcnt lgkmcnt({8 - nt})")
            for r_ in range(4):
                a(f"v_add_f32 {vr(c.acc(nt, 0) + r_)}, {vr(c.acc(nt, 0) + r_)}, {vr(c.acc(nt, 1) + r_)}")
            t = 8 + 4 * (nt // 2) + 2 * (nt % 2)
            a(f"v_cvt_pk_bf16_f32 v{t}, v{c.acc(nt, 0)}, v{c.acc(nt, 0) + 1}")
            a(f"v_cvt_pk_bf16_f32 v{t + 1}, v{c.acc(nt, 0) + 2}, v{c.acc(nt, 0) + 3}")
            if nt % 2 == 1:
                a(f"buffer_store_dwordx4 v[{t - 2}:{t + 1}], v5, s[28:31], s48 offen offset:{(nt // 2) * 64} sc1")
            if nt == 8:
                a(f"buffer_store_dwordx2 v[{t}:{t + 1}], v6, s[28:31], s48 offen offset:256 sc1")
        if fuse_ln is not None:
            a("s_waitcnt vmcnt(0)")
            stamp(a, 3)
            a("s_barrier")
            ph = 0 if fuse_ln else 1
            wflag_set(a, 32, ph, 28, name)

            def peers(vl, vd):
                a(f"v_lshrrev_b32 v19, 2, v{vl}")
                a(f"v_and_b32 v{vd}, 3, v{vl}")
                a(f"v_lshlrev_b32 v{vd}, 1, v{vd}")
                a(f"v_lshl_add_u32 v{vd}, v19, 3, v{vd}")
                a("s_andn2_b32 s48, s2, 31")
                a("s_lshr_b32 s49, s34, 3")
                a("s_add_u32 s48, s48, s49")
                a(f"v_add_u32 v{vd}, s48, v{vd}")
            wflag_wait(a, 32, ph, 28, name, 16, peers)
            stamp(a, 4)
            a("s_lshl_b32 s49, s35, 2")
            a("s_add_u32 s49, s49, s33")
            a("s_lshl_b32 s49, s49, 3")
            a("s_add_u32 s49, s49, s32")
            a("s_lshl_b32 s48, s34, 7")
            a("s_add_u32 s49, s49, s48")
            reduce_body(a, fuse_ln, " sc1", PART, " sc1" if chain_out else "")
            if chain_out:
                if not HOIST:
                    a("s_waitcnt vmcnt(0)")
                if STAMPS:
                    stamp(a, 5)
                    stamp_flush(a, 8, 1, 2, 32, s_t=70, kid=kid)
                if not HOIST:
                    a("s_barrier")
                    wflag_set(a, 32, 2, 28, name + "_out")
                return
            if STAMPS:
                a("s_waitcnt vmcnt(0)")
                stamp(a, 5)
                stamp_flush(a, 8, 1, 2, 32, s_t=70, kid=kid)
        elif STAMPS:
            a("s_waitcnt vmcnt(0)")
            stamp(a, 3)
            stamp(a, 4); stamp(a, 5)
            stamp_flush(a, 8, 1, 2, 32, s_t=70, kid=kid)
        a.label(f"L_{name}_end")
        a("s_endpgm")
        return name, "grid=(256,1,1) block=(512,1,1) lds=139264", 256
    return g


gen_k3 = gen_splitk("k3_oproj_kernel", KA_WO, CTX_OFF, 16, 2)
gen_k6 = gen_splitk("k6_down_kernel", KA_WD, ACT_OFF, 18, 5)
gen_k34 = gen_splitk("k34_kernel", KA_WO, CTX_OFF, 16, 2, fuse_ln=True)
gen_k67 = gen_splitk("k67_kernel", KA_WD, ACT_OFF, 18, 5, fuse_ln=False)


def reduce_body(a, do_ln, LF='', PART=PART_OFF, SF=''):
    if True:
        a("v_lshrrev_b32 v3, 1, v2")
        a("v_lshlrev_b32 v3, 4, v3")
        a("v_and_b32 v4, 1, v2")
        a("v_lshl_add_u32 v3, v4, 2, v3")
        div18(a, 6, 7, 2, 8)
        a("v_mul_u32_u24 v6, 320, v6")
        a("v_lshl_add_u32 v4, v7, 4, v6")
        a("v_add_u32 v8, 64, v2")
        a(f"v_lshlrev_b32 v9, 4, v2")
        a(f"v_add_u32 v9, {3 * 320 + 160}, v9")
        a("v_lshlrev_b32 v5, 1, v3")
        a("s_mul_i32 s50, s49, 1280")
        a(f"s_add_u32 s50, s50, {PART}")
        a("s_mul_i32 s51, s49, 1152")
        a("s_waitcnt lgkmcnt(0)")
        if not LF:
            stamp(a, 0)
        make_srd(a, 24, "s4", "s5", 2048 * 1152)
        make_srd(a, 28, "s12", "s13", WS_BYTES)
        for i in range(80, 120):
            a(f"v_mov_b32 v{i}, 0")
        for ks in range(4):
            b = 88 + 8 * ks
            a(f"buffer_load_dwordx4 v[{b}:{b + 3}], v4, s[28:31], s50 offen{LF}")
            a("s_mov_b64 exec, 0xff")
            a(f"buffer_load_dwordx4 v[{b + 4}:{b + 7}], v9, s[28:31], s50 offen{LF}")
            a("s_mov_b64 exec, -1")
            if ks < 3:
                a(f"s_add_u32 s50, s50, {2048 * 1280}")
        if do_ln:
            rs, so = "s[24:27]", "s51"
        else:
            a(f"s_add_u32 s52, s51, {H_OFF}")
            rs, so = "s[28:31]", "s52"
        a(f"buffer_load_dwordx2 v[80:81], v5, {rs}, {so} offen")
        a(f"buffer_load_dwordx2 v[82:83], v5, {rs}, {so} offen offset:16")
        a("s_mov_b64 exec, 0xff")
        a(f"buffer_load_dwordx2 v[84:85], v5, {rs}, {so} offen offset:1024")
        a(f"buffer_load_dwordx2 v[86:87], v5, {rs}, {so} offen offset:1040")
        a("s_mov_b64 exec, -1")
        a("s_waitcnt vmcnt(0)")
        for ks in range(4):
            for i in range(8):
                a(f"v_lshlrev_b32 v{16 + 16 * ks + 2 * i}, 16, v{88 + 8 * ks + i}")
                a(f"v_and_b32 v{17 + 16 * ks + 2 * i}, 0xffff0000, v{88 + 8 * ks + i}")
        for i in range(16):
            a(f"v_add_f32 v{16 + i}, v{16 + i}, v{32 + i}")
            a(f"v_add_f32 v{48 + i}, v{48 + i}, v{64 + i}")
        for i in range(16):
            a(f"v_add_f32 v{16 + i}, v{16 + i}, v{48 + i}")
        for i in range(8):
            a(f"v_cvt_pk_bf16_f32 v6, v{16 + 2 * i}, v{17 + 2 * i}")
            a(f"v_lshlrev_b32 v{16 + 2 * i}, 16, v6")
            a(f"v_and_b32 v{17 + 2 * i}, 0xffff0000, v6")
            a(f"v_lshlrev_b32 v6, 16, v{80 + i}")
            a(f"v_and_b32 v7, 0xffff0000, v{80 + i}")
            a(f"v_add_f32 v{16 + 2 * i}, v{16 + 2 * i}, v6")
            a(f"v_add_f32 v{17 + 2 * i}, v{17 + 2 * i}, v7")
            a(f"v_cvt_pk_bf16_f32 v{80 + i}, v{16 + 2 * i}, v{17 + 2 * i}")
        if do_ln:
            a(f"s_add_u32 s52, s51, {H_OFF}")
            rs, so = "s[28:31]", "s52"
        else:
            rs, so = "s[24:27]", "s51"
        OF = ENV("OUTF", " sc1") if not do_ln else ENV("HF", "")
        if not do_ln and ENV("OUT16", "1") == "1":
            a("v_and_b32 v6, 1, v2")
            a("v_cmp_eq_u32 vcc, 1, v6")
            a("v_lshlrev_b32 v7, 4, v2")
            a("s_nop 0")
            for b in (80, 84):
                a(f"v_cndmask_b32 v16, v{b + 2}, v{b}, vcc")
                a(f"v_cndmask_b32 v17, v{b + 3}, v{b + 1}, vcc")
                a("s_nop 1")
                a("v_mov_b32_dpp v18, v16 quad_perm:[1,0,3,2] row_mask:0xf bank_mask:0xf")
                a("v_mov_b32_dpp v19, v17 quad_perm:[1,0,3,2] row_mask:0xf bank_mask:0xf")
                a(f"v_cndmask_b32 v{b}, v{b}, v18, vcc")
                a(f"v_cndmask_b32 v{b + 1}, v{b + 1}, v19, vcc")
                a(f"v_cndmask_b32 v{b + 2}, v18, v{b + 2}, vcc")
                a(f"v_cndmask_b32 v{b + 3}, v19, v{b + 3}, vcc")
            a(f"buffer_store_dwordx4 v[80:83], v7, {rs}, {so} offen{OF}")
            a("s_mov_b64 exec, 0xff")
            a(f"buffer_store_dwordx4 v[84:87], v7, {rs}, {so} offen offset:1024{OF}")
        else:
            a(f"buffer_store_dwordx2 v[80:81], v5, {rs}, {so} offen{OF}")
            a(f"buffer_store_dwordx2 v[82:83], v5, {rs}, {so} offen offset:16{OF}")
            a("s_mov_b64 exec, 0xff")
            a(f"buffer_store_dwordx2 v[84:85], v5, {rs}, {so} offen offset:1024{OF}")
            a(f"buffer_store_dwordx2 v[86:87], v5, {rs}, {so} offen offset:1040{OF}")
        a("s_mov_b64 exec, -1")
        if do_ln:
            for i in range(8):
                a(f"v_lshlrev_b32 v{20 + 2 * i}, 16, v{80 + i}")
                a(f"v_and_b32 v{21 + 2 * i}, 0xffff0000, v{80 + i}")
            a("v_add_f32 v36, v20, v21")
            for i in range(22, 36):
                a(f"v_add_f32 v36, v36, v{i}")
            wave_sum(a, 36, 37, 38)
            a(f"v_mul_f32 v36, {1.0 / 576.0!r}, v36")
            a("v_mov_b32 v39, 0")
            for i in range(20, 28):
                a(f"v_sub_f32 v37, v{i}, v36")
                a("v_fmac_f32 v39, v37, v37")
            a("s_mov_b64 exec, 0xff")
            for i in range(28, 36):
                a(f"v_sub_f32 v37, v{i}, v36")
                a("v_fmac_f32 v39, v37, v37")
            a("s_mov_b64 exec, -1")
            wave_sum(a, 39, 37, 38)
            a(f"v_mul_f32 v39, {1.0 / 576.0!r}, v39")
            round_bf16(a, 39, 37)
            a("v_add_f32 v39, 0x3727c5ac, v39")
            round_bf16(a, 39, 37)
            a("v_sqrt_f32 v39, v39")
            a("s_nop 0")
            round_bf16(a, 39, 37)
            a("v_rcp_f32 v39, v39")
            round_bf16(a, 36, 37)
            for i in range(8):
                a(f"v_sub_f32 v{20 + 2 * i}, v{20 + 2 * i}, v36")
                a(f"v_sub_f32 v{21 + 2 * i}, v{21 + 2 * i}, v36")
                a(f"v_cvt_pk_bf16_f32 v37, v{20 + 2 * i}, v{21 + 2 * i}")
                a(f"v_lshlrev_b32 v{20 + 2 * i}, 16, v37")
                a(f"v_and_b32 v{21 + 2 * i}, 0xffff0000, v37")
                a(f"v_mul_f32 v{20 + 2 * i}, v{20 + 2 * i}, v39")
                a(f"v_mul_f32 v{21 + 2 * i}, v{21 + 2 * i}, v39")
                a(f"v_cvt_pk_bf16_f32 v{8 + i}, v{20 + 2 * i}, v{21 + 2 * i}")
            a("v_lshrrev_b32 v37, 2, v2")
            a("v_lshlrev_b32 v37, 17, v37")
            a("v_and_b32 v38, 3, v2")
            a("v_lshl_add_u32 v37, v38, 4, v37")
            a("s_lshl_b32 s50, s49, 6")
            a(f"s_add_u32 s50, s50, {HN_OFF}")
            a(f"buffer_store_dwordx4 v[8:11], v37, s[28:31], s50 offen{SF}")
            a(f"s_add_u32 s50, s50, {16 * 131072}")
            a("s_mov_b64 exec, 0xff")
            a(f"buffer_store_dwordx4 v[12:15], v37, s[28:31], s50 offen{SF}")
            a("s_mov_b64 exec, -1")


def gen_reduce(name, do_ln):
    def g(a):
        kernel_header(a, name)
        a("s_cmp_ge_u32 s2, 256")
        a(f"s_cbranch_scc1 L_{name}_end")
        a(f"s_load_dwordx2 s[4:5], s[0:1], {KA_X if do_ln else KA_OUT}")
        a(f"s_load_dwordx2 s[12:13], s[0:1], {KA_WS}")
        a("v_lshrrev_b32 v1, 6, v0")
        a("v_and_b32 v2, 63, v0")
        a("s_nop 0")
        a("v_readfirstlane_b32 s32, v1")
        a("s_lshl_b32 s49, s2, 3")
        a("s_add_u32 s49, s49, s32")
        reduce_body(a, do_ln)
        if STAMPS:
            a("s_waitcnt vmcnt(0)")
            stamp(a, 1)
            stamp_flush(a, 2, 1, 2, 32, s_t=70, kid=(3 if do_ln else 6))
        a.label(f"L_{name}_end")
        a("s_endpgm")
        return name, "grid=(256,1,1) block=(512,1,1) lds=16384", 120
    return g


gen_k4 = gen_reduce("k4_ln2_kernel", True)
gen_k7 = gen_reduce("k7_out_kernel", False)


def gen_k5(a, chain=False):
    name = "k5_ffn1_kernel"
    STF = " sc1" if chain else globals()["STF"]
    if not chain:
        kernel_header(a, name)
        a("s_cmp_ge_u32 s2, 256")
        a(f"s_cbranch_scc1 L_{name}_end")
    a(f"s_load_dwordx4 s[8:11], s[0:1], {KA_WG}")
    a(f"s_load_dwordx2 s[12:13], s[0:1], {KA_WS}")
    a("v_lshrrev_b32 v1, 6, v0")
    a("v_and_b32 v2, 63, v0")
    a("s_nop 0")
    a("v_readfirstlane_b32 s32, v1")
    a("s_and_b32 s35, s2, 7")
    a("s_lshl_b32 s35, s35, 2")
    a("s_lshr_b32 s48, s2, 3")
    a("s_and_b32 s48, s48, 3")
    a("s_add_u32 s35, s35, s48")
    a("s_lshr_b32 s34, s2, 5")
    a("s_and_b32 s36, s32, 3")
    a("s_lshr_b32 s37, s32, 2")
    a("s_waitcnt lgkmcnt(0)")
    stamp(a, 0)
    a("s_cmp_eq_u32 s37, 1")
    a("s_cselect_b32 s8, s10, s8")
    a("s_cselect_b32 s9, s11, s9")
    make_srd(a, 20, "s8", "s9", 576 * 9216)
    a(f"s_mov_b32 s47, {576 * 9216}")
    make_srd(a, 16, "s12", "s13", WS_BYTES)
    a(f"s_mov_b32 s46, {WS_BYTES}")
    make_srd(a, 28, "s12", "s13", WS_BYTES)
    TS, WS_ = 16384, 18432
    WBASE = 4 * TS
    vA0, vW0, vW1, vW2, vT, vWa, vWb = 64, 66, 67, 68, 69, 70, 71
    a("s_sub_u32 s59, 15, s34")
    a("s_cmp_eq_u32 s37, 1")
    a("s_cselect_b32 s59, s59, s34")
    a("s_lshl_b32 s59, s59, 7")
    a("s_lshl_b32 s48, s36, 5")
    a("s_add_u32 s59, s59, s48")
    a("v_lshrrev_b32 v20, 2, v2")
    a("v_add_u32 v20, s59, v20")
    a("v_lshlrev_b32 v20, 6, v20")
    a("v_lshrrev_b32 v21, 4, v2")
    a("v_sub_u32 v21, 0, v21")
    a("v_and_b32 v21, 3, v21")
    a("v_and_b32 v22, 3, v2")
    a("v_xor_b32 v21, v21, v22")
    a(f"v_lshl_add_u32 {vr(vA0)}, v21, 4, v20")
    a(f"s_mov_b32 s38, {HN_OFF}")
    for j, vd in ((0, vW0), (1, vW1), (2, vW2)):
        a(f"v_add_u32 v20, {64 * j}, v2")
        div18(a, 21, 22, 20, 23)
        a("v_and_b32 v23, 1, v22")
        a("v_bfe_u32 v24, v22, 1, 1")
        a("v_lshl_or_b32 v23, v23, 1, v24")
        a("v_and_b32 v24, 28, v22")
        a("v_or_b32 v23, v23, v24")
        a("v_cmp_gt_u32 vcc, 16, v22")
        a("s_nop 1")
        a("v_cndmask_b32 v22, v22, v23, vcc")
        a("s_lshl_b32 s48, s36, 3")
        a("v_add_u32 v21, s48, v21")
        a("v_mul_u32_u24 v21, 9216, v21")
        a(f"v_lshl_add_u32 {vr(vd)}, v22, 4, v21")
    a("s_mul_i32 s39, s35, 288")
    a("s_lshl_b32 s40, s32, 11")
    a("s_mul_i32 s41, s32, 2304")
    a(f"s_add_u32 s41, s41, {WBASE}")
    a("v_and_b32 v62, 15, v2")
    a("v_lshrrev_b32 v61, 4, v2")
    a("v_lshrrev_b32 v20, 2, v62")
    a("v_sub_u32 v20, 0, v20")
    a("v_and_b32 v20, 3, v20")
    a("v_xor_b32 v20, v20, v61")
    a("s_lshl_b32 s48, s32, 5")
    a("v_add_u32 v21, s48, v62")
    a("v_lshlrev_b32 v21, 6, v21")
    a(f"v_lshl_add_u32 {vr(vT)}, v20, 4, v21")
    a("v_lshrrev_b32 v20, 5, v2")
    a("v_lshlrev_b32 v20, 4, v20")
    a("v_bfe_u32 v21, v2, 2, 3")
    a("v_add_u32 v20, v20, v21")
    a("v_mul_u32_u24 v20, 288, v20")
    a(f"v_add_u32 v20, {WBASE}, v20")
    a("v_and_b32 v21, 3, v2")
    a(f"v_lshl_add_u32 {vr(vWa)}, v21, 3, v20")
    a("v_and_b32 v22, 1, v2")
    a("v_lshl_add_u32 v20, v22, 4, v20")
    a("v_bfe_u32 v22, v2, 1, 1")
    a(f"v_lshl_add_u32 {vr(vWb)}, v22, 3, v20")
    a("s_mov_b32 s44, 0")
    c = GemmCfg()
    c.TN, c.TM, c.R, c.AHEAD, c.NSTEPS = 18, 2, 6, 5, 18
    c.DFRAC = float(ENV("DF5", "0.5"))
    c.NSW, c.WSLOT, c.NST, c.TSLOT, c.TPER = 4, WS_, 4, TS, 1
    c.TPOS = 0
    c.DMA_EVERY = 2
    c.swap = False
    c.acc = lambda nt, tt: 112 + (nt * 2 + tt) * 4
    c.tfrag = lambda buf, tt: 96 + buf * 8 + tt * 4
    c.wfrag = lambda r_: 72 + r_ * 4

    def wread(nt):
        pl, u = nt // 9, nt % 9
        r_ = vWb if u == 8 else vWa
        return [(r_, pl * 9216 + u * 32), (r_, pl * 9216 + u * 32 + 8 * 288)]
    c.wread = wread
    c.wadv = lambda nt: [vWa] if nt == 16 else ([vWb] if nt == 17 else [])
    c.tread = lambda q, tt: (vT, tt * 1024)
    c.tadv = lambda q: [vT]
    c.s_dA, c.s_dB, c.s_sl, c.s_dmaW, c.s_cnt, c.s_slotW = 50, 51, 52, 53, 45, 54
    c.s_dT, c.s_slT, c.s_dmaT, c.s_slotT = 55, 56, 57, 58

    def dmaW():
        def d0():
            a("s_add_u32 m0, s53, s41")
            a("s_nop 0")
            a(f"buffer_load_dwordx4 {vr(vW0)}, s[20:23], s39 offen lds")

        def d1():
            a("s_add_u32 m0, m0, 1024")
            a("s_nop 0")
            a(f"buffer_load_dwordx4 {vr(vW1)}, s[20:23], s39 offen lds")

        def d2():
            a("s_add_u32 m0, m0, 1024")
            a("s_mov_b64 exec, 0xffff")
            a(f"buffer_load_dwordx4 {vr(vW2)}, s[20:23], s39 offen lds")
            a("s_mov_b64 exec, -1")
        return [d0, d1, d2]
    c.dmaW = dmaW

    def dmaT(h):
        def d0():
            a("s_add_u32 m0, s57, s40")
            a("s_nop 0")
            a(f"buffer_load_dwordx4 {vr(vA0)}, s[16:19], s38 offen lds")

        def d1():
            a(f"buffer_load_dwordx4 {vr(vA0)}, s[16:19], s38 offen offset:1024 lds")
        return [d0, d1]
    c.dmaT = dmaT

    def advW():
        a(f"s_add_u32 s39, s39, {32 * 9216}")
    c.advW = advW

    def advT():
        a("s_add_u32 s38, s38, 131072")
        a("s_add_u32 s44, s44, 1")
        a(f"s_cmp_lt_u32 s44, {c.NSTEPS}")
        a("s_cselect_b32 s18, s46, 0")
        a("s_cselect_b32 s22, s47, 0")
    c.advT = advT
    if chain:
        def peers_in(vl, vd):
            a("s_andn2_b32 s48, s2, 31")
            a(f"v_add_u32 v{vd}, s48, v{vl}")
        def pre_T():
            late_signal(a, 2, name + "_ls", 9)
            wflag_wait(a, 32, 2, 28, name + "_in", 32, peers_in)
        c.pre_T = pre_T
    gemm_prologue_and_loop(a, c, name)
    a(f"s_mov_b32 s48, {-math.log2(math.e)!r}")

    def act4(g0, u0):
        for r_ in range(4):
            a(f"v_mul_f32 v{20 + r_}, s48, v{g0 + r_}")
        for r_ in range(4):
            a(f"v_exp_f32 v{20 + r_}, v{20 + r_}")
        for r_ in range(4):
            a(f"v_add_f32 v{20 + r_}, 1.0, v{20 + r_}")
        for r_ in range(4):
            a(f"v_rcp_f32 v{20 + r_}, v{20 + r_}")
        for r_ in range(4):
            a(f"v_mul_f32 v{g0 + r_}, v{g0 + r_}, v{u0 + r_}")
        for r_ in range(4):
            a(f"v_mul_f32 v{g0 + r_}, v{g0 + r_}, v{20 + r_}")
    a("s_lshl_b32 s49, s59, 5")
    a("s_mul_i32 s50, s35, 9")
    a("s_lshl_b32 s50, s50, 16")
    a("s_add_u32 s49, s49, s50")
    a(f"s_add_u32 s49, s49, {ACT_OFF}")
    a("v_lshlrev_b32 v3, 5, v62")
    a("v_lshrrev_b32 v4, 1, v61")
    a("v_and_b32 v5, 1, v61")
    a("v_lshl_add_u32 v6, v5, 4, v3")
    a("v_lshl_add_u32 v6, v4, 16, v6")
    a("v_lshl_add_u32 v7, v61, 3, v3")
    k = 0
    for P_ in range(4):
        for tt in range(2):
            t = 32 + (k % 4) * 4
            k += 1
            for T_ in range(2):
                g0, u0 = c.acc(2 * P_ + T_, tt), c.acc(9 + 2 * P_ + T_, tt)
                act4(g0, u0)
                a(f"v_cvt_pk_bf16_f32 v{t + 2 * T_}, v{g0}, v{g0 + 1}")
                a(f"v_cvt_pk_bf16_f32 v{t + 2 * T_ + 1}, v{g0 + 2}, v{g0 + 3}")
            a(f"buffer_store_dwordx4 v[{t}:{t + 3}], v6, s[28:31], s49 offen offset:{tt * 512}{STF}")
        a("s_add_u32 s49, s49, 131072")
    for tt in range(2):
        t = 32 + (k % 4) * 4
        k += 1
        g0, u0 = c.acc(8, tt), c.acc(17, tt)
        act4(g0, u0)
        a(f"v_cvt_pk_bf16_f32 v{t}, v{g0}, v{g0 + 1}")
        a(f"v_cvt_pk_bf16_f32 v{t + 1}, v{g0 + 2}, v{g0 + 3}")
        a(f"buffer_store_dwordx2 v[{t}:{t + 1}], v7, s[28:31], s49 offen offset:{tt * 512}{STF}")
    if STAMPS:
        a("s_waitcnt vmcnt(0)")
        stamp(a, 3)
        stamp(a, 4); stamp(a, 5)
        stamp_flush(a, 8, 1, 2, 32, s_t=70, kid=4)
    if chain:
        if HOIST:
            a("s_waitcnt vmcnt(10)")
            a("s_barrier")
        else:
            a("s_waitcnt vmcnt(0)")
            a("s_barrier")
            wflag_set(a, 32, 3, 28, name + "_out")
        return
    a.label(f"L_{name}_end")
    a("s_endpgm")
    return name, "grid=(256,1,1) block=(512,1,1) lds=139264", 256


def gen_k37(a):
    gen_splitk("k37_kernel", KA_WO, CTX_OFF, 16, 2, fuse_ln=True, chain_out=True, endlabel="L_k67c_end")(a)
    gen_k5(a, chain=True)
    gen_splitk("k67c", KA_WD, ACT_OFF, 18, 5, fuse_ln=False, chain_in=True)(a)
    return "k37_kernel", "grid=(256,1,1) block=(512,1,1) lds=139264", 256


def gen_k27(a):
    from gen_attn import gen_k2
    ool = gen_k2(a, chain=True)
    gen_splitk("k34c", KA_WO, CTX_OFF, 16, 2, fuse_ln=True, chain_in=True, chain_out=True)(a)
    gen_k5(a, chain=True)
    gen_splitk("k67c", KA_WD, ACT_OFF, 18, 5, fuse_ln=False, chain_in=True)(a)
    a.L += ool.L
    return "k27_kernel", "grid=(256,1,1) block=(512,1,1) lds=163840", 256


def gen_mega(a):
    from gen_attn import gen_k2
    stores = gen_k1(a, fused="mega_kernel")
    ool = gen_k2(a, k1_stores=stores, chain=True)
    gen_splitk("k34c", KA_WO, CTX_OFF, 16, 2, fuse_ln=True, chain_in=True, chain_out=True)(a)
    gen_k5(a, chain=True)
    gen_splitk("k67c", KA_WD, ACT_OFF, 18, 5, fuse_ln=False, chain_in=True)(a)
    a.L += ool.L
    a.label("L_code_end")
    return "mega_kernel", "grid=(256,1,1) block=(512,1,1) lds=163840", 256
```
